```python
import torch

def _softmax(x, axis=-1):
    return torch.softmax(x, dim=axis)
def _gelu(x):
    return torch.nn.functional.gelu(x, approximate="tanh")
def _silu(x):
    return torch.nn.functional.silu(x)
def _sigmoid(x):
    return torch.sigmoid(x)
def _layernorm(x, axis=-1, eps=1e-5):
    m = x.mean(dim=axis, keepdim=True)
    v = x.var(dim=axis, keepdim=True, unbiased=False)
    return (x - m) / torch.sqrt(v + eps)
def _scatter_add(tgt, idx, src, axis=0):
    return tgt.clone().index_add_(axis, idx, src)
def _segment_sum(src, seg, n):
    out = torch.zeros((n,) + src.shape[1:], dtype=src.dtype)
    return out.index_add_(0, seg, src)
def _pad(x, pw):
    flat = tuple(v for pair in reversed(pw) for v in pair)
    return torch.nn.functional.pad(x, flat)

kernel_name = 'recurrent_scan__mha_block_cached__moe_arch_mod__prompt'

def setup_inputs():

    _w = (lambda a: (lambda t: t.to(torch.bfloat16) if t.is_floating_point() else t)(torch.as_tensor(a)))
    def _A_setup():
        B, Sq, D = 1, 2048, 512
        H, Sk, Dh = 32, 2048, 128
        return {
            "x": _w((lambda *s: torch.randn(*s, dtype=torch.bfloat16) * 0.05)(B, Sq, D)),
            "k_cache": _w((lambda *s: torch.randn(*s, dtype=torch.bfloat16) * 1.6)(B, H, Sk, Dh)),
            "v_cache": _w((lambda *s: torch.randn(*s, dtype=torch.bfloat16) * 0.2)(B, H, Sk, Dh)),
            "wq": _w((lambda *s: torch.randn(*s, dtype=torch.bfloat16) * 1.6)(D, H * Dh) * (D ** -0.5)),
            "wo": _w((lambda *s: torch.randn(*s, dtype=torch.bfloat16) * 0.2)(H * Dh, D) * ((H * Dh) ** -0.5)),
        }
    _A_in = _A_setup()

    def _B_setup():
        B, S, D, F, C = 1, 2048, 512, 1376, 1
        return {
            "x": _w((lambda *s: torch.randn(*s, dtype=torch.bfloat16) * 0.05)(B, S, D)),
            "w_r": _w((lambda *s: torch.randn(*s, dtype=torch.bfloat16) * 0.2)(D)),
            "w_gate": _w((lambda *s: torch.randn(*s, dtype=torch.bfloat16) * 0.1)(D, F)),
            "w_up": _w((lambda *s: torch.randn(*s, dtype=torch.bfloat16) * 0.1)(D, F)),
            "w_down": _w((lambda *s: torch.randn(*s, dtype=torch.bfloat16) * 0.1)(F, D)),
        }
    _B_in = _B_setup()

    return {
        "A_x": _A_in["x"],
        "A_k_cache": _A_in["k_cache"],
        "A_v_cache": _A_in["v_cache"],
        "A_wq": _A_in["wq"],
        "A_wo": _A_in["wo"],
        "B_x": _B_in["x"],
        "B_w_r": _B_in["w_r"],
        "B_w_gate": _B_in["w_gate"],
        "B_w_up": _B_in["w_up"],
        "B_w_down": _B_in["w_down"],
    }

def reference(A_x, A_k_cache, A_v_cache, A_wq, A_wo, B_x, B_w_r, B_w_gate, B_w_up, B_w_down):
    def _A_ref(x, k_cache, v_cache, wq, wo):
        B, Sq, D = x.shape
        H, Dh = 32, 128
        q = (lambda x, *d: x.permute(*d))((x @ wq).reshape(B, Sq, H, Dh), 0, 2, 1, 3)
        scores = torch.einsum("bhqd,bhkd->bhqk", q, k_cache) * (Dh ** -0.5)
        p = _softmax(scores, axis=-1)
        o = torch.einsum("bhqk,bhkd->bhqd", p, v_cache)
        return (lambda x, *d: x.permute(*d))(o, 0, 2, 1, 3).reshape(B, Sq, H * Dh) @ wo

    def _B_ref(x, w_r, w_gate, w_up, w_down):
        B, S, D = x.shape
        C = 1
        r = x @ w_r
        idx = torch.argsort(-r, axis=-1)[:, :C]
        idx_e = (lambda x, n, axis: torch.repeat_interleave(x, n, dim=axis))(idx.reshape(B, C, 1), D, axis=2)
        x_sel = (lambda x, i, axis: torch.take_along_dim(x, i, dim=axis))(x, idx_e, axis=1)
        g = _silu(x_sel @ w_gate)
        u = x_sel @ w_up
        y = (g * u) @ w_down
        r_sel = _sigmoid((lambda x, i, axis: torch.take_along_dim(x, i, dim=axis))(r, idx, axis=1))
        y = y * r_sel.reshape(B, C, 1)
        b_off = (torch.arange(B) * S).reshape(B, 1)
        flat_idx = (idx + b_off).reshape(B * C)
        zero = (x * 0.0).reshape(B * S, D)
        upd = _scatter_add(zero, flat_idx, y.reshape(B * C, D), axis=0)
        return x + upd.reshape(B, S, D)

    x = A_x
    xn = _layernorm(x, axis=-1)
    s = _A_ref(xn, A_k_cache, A_v_cache, A_wq, A_wo)
    g = _silu(_B_ref(xn, B_w_r, B_w_gate, B_w_up, B_w_down))
    return x + s * g
```

```python
import re

TRANS = ('v_exp_f32', 'v_log_f32', 'v_rcp_f32', 'v_rsq_f32', 'v_sqrt_f32', 'v_sin_f32', 'v_cos_f32')
REG_RE = re.compile(r'\b([vas])(\d+)\b|\b([vas])\[(\d+):(\d+)\]|\b(vcc|exec|m0|scc)\b')


def v(i, n=1): return f"v{i}" if n == 1 else f"v[{i}:{i+n-1}]"
def a(i, n=1): return f"a{i}" if n == 1 else f"a[{i}:{i+n-1}]"
def s(i, n=1): return f"s{i}" if n == 1 else f"s[{i}:{i+n-1}]"


def regs_of(tok):
    out = set()
    for m in REG_RE.finditer(tok):
        if m.group(1): out.add((m.group(1), int(m.group(2))))
        elif m.group(3):
            for i in range(int(m.group(4)), int(m.group(5)) + 1): out.add((m.group(3), i))
        else: out.add((m.group(6), 0))
    return out


class I:
    __slots__ = ('txt', 'op', 'kind', 'defs', 'uses', 'cuse', 'abuse', 'dpp', 'states', 'wide', 'data')

    def __init__(self, txt):
        self.txt = txt
        t = txt.split(';')[0].strip()
        self.defs = set(); self.uses = set(); self.cuse = set(); self.abuse = set(); self.dpp = False
        self.states = 1; self.wide = False; self.data = set()
        if not t or t.endswith(':') or t.startswith('.'):
            self.op = ''; self.kind = 'meta'; self.states = 0
            if t.endswith(':'): self.kind = 'label'
            return
        sp = t.split(None, 1)
        op = sp[0]; rest = sp[1] if len(sp) > 1 else ''
        self.op = op
        ops = [x.strip() for x in rest.split(',')]
        R = [regs_of(x) for x in ops]
        allr = set().union(*R) if R else set()
        if op.startswith('v_mfma'):
            self.kind = 'mfma'; self.defs = R[0]; self.abuse = R[1] | R[2]; self.cuse = R[3]; self.uses = self.abuse | self.cuse
        elif op.startswith('v_'):
            base = op.replace('_e32', '').replace('_e64', '').replace('_dpp', '')
            self.kind = 'trans' if base in TRANS else 'valu'
            self.dpp = ('row_' in rest) or ('quad_perm' in rest) or op.endswith('_dpp')
            if 'permlane' in op and 'swap' in op:
                self.defs = R[0] | R[1]; self.uses = R[0] | R[1]
            elif op.startswith('v_add_co') or op.startswith('v_addc_co') or op.startswith('v_sub_co'):
                self.defs = R[0] | R[1]; self.uses = set().union(*R[2:])
            elif op == 'v_nop':
                pass
            else:
                self.defs = R[0]; self.uses = set().union(*R[1:]) if len(R) > 1 else set()
                if 'fmac' in op or 'dot2c' in op or op.startswith('v_mac') or self.dpp or op.startswith('v_writelane'):
                    self.uses |= R[0]
        elif op.startswith('ds_'):
            self.kind = 'lds'
            if op.startswith('ds_read') or 'permute' in op or 'swizzle' in op or '_rtn' in op:
                self.defs = R[0]; self.uses = set().union(*R[1:])
            else:
                self.uses = allr; self.data = set().union(*R[1:]) if len(R) > 1 else set()
        elif op.startswith('buffer_') or op.startswith('global_'):
            self.kind = 'vmem'
            if op in ('buffer_wbl2', 'buffer_inv'):
                pass
            elif re.search(r'\blds\b', rest):
                self.kind = 'dma'; self.uses = allr | {('m0', 0)}
            elif 'load' in op:
                self.defs = R[0]; self.uses = set().union(*R[1:])
            elif 'atomic' in op:
                self.uses = allr
                if 'sc0' in rest: self.defs = R[0]
            else:
                self.uses = allr
                self.data = R[0] if op.startswith('buffer_') else R[1]
                self.wide = op.endswith('x4') or op.endswith('x3')
        elif op.startswith('s_'):
            if op == 's_waitcnt': self.kind = 'wait'
            elif op == 's_nop': self.kind = 'nop'; self.states = int(rest, 0) + 1
            elif op == 's_barrier': self.kind = 'barrier'
            elif op.startswith('s_cbranch') or op in ('s_branch', 's_endpgm'): self.kind = 'branch'
            elif op.startswith('s_load') or op.startswith('s_buffer_load') or op in ('s_memtime', 's_memrealtime') or op.startswith('s_atomic'):
                self.kind = 'smem'; self.defs = R[0]; self.uses = set().union(*R[1:]) if len(R) > 1 else set()
            elif op.startswith('s_cmp') or op.startswith('s_bitcmp') or op in ('s_setprio', 's_sleep'):
                self.kind = 'salu'; self.uses = allr
            else:
                self.kind = 'salu'; self.defs = R[0]; self.uses = set().union(*R[1:]) if len(R) > 1 else set()
                if 'saveexec' in op: self.defs |= {('exec', 0)}
        else:
            raise ValueError('unknown op ' + txt)


def isv(r): return r[0] in ('v', 'a')


VAL = ('valu', 'trans')


def need_states(ins, c):
    if c.kind in ('label', 'nop', 'wait', 'barrier', 'branch', 'meta'): return 0, ''
    st = 0; nm = 0; after = 0
    best = 0; bwhy = ''
    k = len(ins) - 1
    while k >= 0 and st < 12:
        p = ins[k]
        need = 0; why = ''
        if p.kind in VAL:
            pv = {r for r in p.defs if isv(r)}
            ps = {r for r in p.defs if not isv(r)}
            if c.kind == 'mfma' and pv & c.uses: need = 2; why = 'valu->mfma'
            if c.kind in VAL and c.dpp and pv & c.uses: need = max(need, 2); why = 'valu->dpp'
            if 'permlane' in c.op and pv & c.uses: need = max(need, 2); why = 'valu->permlane'
            if (c.op.startswith('v_readlane') or c.op.startswith('v_readfirstlane')) and pv & c.uses: need = max(need, 1); why = 'valu->readlane'
            if p.kind == 'trans' and c.kind in ('valu', 'lds', 'vmem') and pv & c.uses: need = max(need, 1); why = why or 'trans->use'
            if ps and c.kind in ('vmem', 'dma') and ps & c.uses: need = max(need, 5); why = 'valu sgpr->vmem'
            if ps and c.kind in VAL and ps & c.uses:
                need = max(need, 4 if ('readlane' in c.op or 'writelane' in c.op) else 2); why = 'valu sgpr->valu'
            if ps and c.kind in ('salu', 'smem') and ps & c.uses: need = max(need, 1); why = 'valu sgpr->salu'
            need -= st
        elif p.kind == 'mfma':
            tmin = max(4 * (st + 1), 16 * nm + 4 * (after + 1))
            d = p.defs
            tn = 0
            if c.kind == 'mfma':
                if d & c.abuse: tn = 40; why = 'mfma D->AB'
                elif d & c.cuse and d != c.cuse: tn = 32; why = 'mfma D->C partial'
                elif d & c.defs and d != c.cuse: tn = 40; why = 'mfma WAW'
            elif c.kind in VAL + ('lds', 'vmem', 'dma'):
                if d & (c.uses | c.defs): tn = 40; why = 'mfma D->' + c.kind
            need = max(0, (tn - tmin + 3) // 4)
            if c.kind in VAL and p.cuse & c.defs and 3 - st > need: need = 3 - st; why = 'mfma C WAR'
        elif p.kind == 'salu':
            if ('m0', 0) in p.defs and c.kind == 'dma': need = 1 - st; why = 'm0->dma'
        elif p.kind == 'vmem' and p.wide:
            if p.data & c.defs: need = 2 - st; why = 'widestore WAR'
        if need > best: best = need; bwhy = f"{why}: [{p.txt}] -> [{c.txt}]"
        st += p.states
        if p.kind == 'mfma': nm += 1
        elif nm == 0: after += p.states
        k -= 1
    return best, bwhy


def autonop(lines, report=None):
    out = []; objs = []
    for x in lines:
        c = I(x)
        n, why = need_states(objs, c)
        if n > 0:
            if report is not None: report.append((n, why))
            t = f"s_nop {n-1}"
            out.append(t); objs.append(I(t))
        out.append(x)
        if c.kind != 'meta': objs.append(c)
    return out


def check(lines, name=''):
    ins = [I(x) for x in lines]
    ins = [x for x in ins if x.kind != 'meta']
    probs = []
    for j, c in enumerate(ins):
        n, why = need_states(ins[max(0, j - 16):j], c)
        if n > 0: probs.append(f"{name} hazard short by {n}: {why}")
    vq = []; lq = []
    for c in ins:
        if c.kind == 'wait':
            m = re.search(r'vmcnt\((\d+)\)', c.txt)
            if m:
                k = int(m.group(1)); assert k <= 63
                while len(vq) > k: vq.pop(0)
            m = re.search(r'lgkmcnt\((\d+)\)', c.txt)
            if m:
                k = int(m.group(1)); assert k <= 15
                if k > 0 and any(x[1] for x in lq): probs.append(f"{name} counted lgkmcnt with smem outstanding: {c.txt}")
                while len(lq) > k: lq.pop(0)
            continue
        if c.kind in ('label', 'nop', 'barrier', 'branch'): continue
        touched = c.uses | c.defs
        for q, nmq in ((vq, 'vm'), (lq, 'lgkm')):
            for e in q:
                t = touched
                if (nmq == 'lgkm' and c.kind == 'lds') or (nmq == 'vm' and c.kind == 'vmem'): t = c.uses
                if e[0] & t: probs.append(f"{name} pending {nmq} reg touched: [{e[2]}] -> [{c.txt}]")
        if c.kind in ('vmem', 'dma'): vq.append((c.defs, False, c.txt))
        if c.kind == 'lds': lq.append((c.defs, False, c.txt))
        if c.kind == 'smem': lq.append((c.defs, True, c.txt))
    return probs


class Em:
    def __init__(self):
        self.L = []
        self.vm = []

    def __call__(self, txt, tag=None):
        for t in txt.split('\n'):
            t = t.strip()
            if not t: continue
            if '@@' in t:
                t, tag_ = t.split('@@'); t = t.strip(); tag_ = tag_.strip()
            else:
                tag_ = tag
            if t.startswith('WAITVM'):
                p = t.split()
                tags = p[1].split(',')
                n = self.vmwait(tags)
                t = f"s_waitcnt vmcnt({n})" + (" lgkmcnt(0)" if len(p) > 2 else "")
            self.L.append(t)
            op = t.split()[0]
            if op.startswith('buffer_') or op.startswith('global_'):
                self.vm.append(tag_)

    def vmwait(self, tags):
        last = -1
        for i, t in enumerate(self.vm):
            if t in tags: last = i
        for t in tags: assert t in self.vm, f"tag {t} never issued"
        return min(63, len(self.vm) - 1 - last)

    def weave(self, mf, gaps):
        for i, m in enumerate(mf):
            self(m)
            for f in gaps.get(i, []): self(f)
        for k in gaps:
            assert 0 <= k < len(mf), f"gap {k} out of range {len(mf)}"
```

```python
import sys, struct, math
sys.path.insert(0, 'dev')
from asmlib import *

OPT = dict(dump=0, msum=(1, 3))
for arg in sys.argv[2:]:
    k, val = arg.split('=')
    OPT[k] = eval(val)

def f2u(x): return struct.unpack('<I', struct.pack('<f', x))[0]
def fh(x): return f"0x{f2u(x):08x}"
MF = 'v_mfma_f32_16x16x32_bf16'
LOG2E = 1.4426950408889634
QSCALE = LOG2E / math.sqrt(128.0)

WS_O = 0
WS_ST = 16 << 20
WS_KEY = WS_ST + 16384
WS_Y = WS_ST + 32768
WS_DBG = 32 << 20
WS_SIZE = 268435456
NFFN = 172

def srd(e, d, lo, hi, size):
    e(f"s_mov_b32 {s(d)}, {s(lo)}\ns_mov_b32 {s(d+1)}, {s(hi)}\ns_mov_b32 {s(d+2)}, {size}\ns_mov_b32 {s(d+3)}, 0x20000")

def allreduce(e, regs, tmps, op='v_add_f32'):
    for sh in (8, 4, 2, 1):
        for r in regs: e(f"{op}_dpp {v(r)}, {v(r)}, {v(r)} row_ror:{sh} row_mask:0xf bank_mask:0xf")
    for sw in ('v_permlane16_swap_b32', 'v_permlane32_swap_b32'):
        for r, t in zip(regs, tmps): e(f"v_mov_b32 {v(t)}, {v(r)}")
        for r, t in zip(regs, tmps): e(f"{sw} {v(t)}, {v(r)}")
        for r, t in zip(regs, tmps): e(f"{op} {v(r)}, {v(r)}, {v(t)}")

def unpack(e, dst, src):
    e(f"v_lshlrev_b32 {v(dst)}, 16, {v(src)}\nv_and_b32 {v(dst+1)}, 0xffff0000, {v(src)}")

def bfr1(e, r):
    e(f"v_cvt_pk_bf16_f32 {v(r)}, {v(r)}, {v(r)}\nv_lshlrev_b32 {v(r)}, 16, {v(r)}")

def bfr2(e, r0, r1):
    e(f"v_cvt_pk_bf16_f32 {v(r0)}, {v(r0)}, {v(r1)}\nv_and_b32 {v(r1)}, 0xffff0000, {v(r0)}\nv_lshlrev_b32 {v(r0)}, 16, {v(r0)}")

def stats_compute(e, RAW0, RAW1, RAWW, T, srow):
    X = [T + 8, T + 16]; W = T + 24; D = [T + 32, T + 36]
    M = [T + 0, T + 2]; RS = [T + 1, T + 3]; KEY = [T + 4, T + 5]
    A = [T + 6, T + 7]; TM = [T + 40, T + 41]; MEAN = [T + 42, T + 43]
    for i, raw in enumerate((RAW0, RAW1)):
        for j in range(4): unpack(e, X[i] + 2 * j, raw + j)
    for j in range(4): unpack(e, W + 2 * j, RAWW + j)
    for j in range(4):
        for i in range(2): e(f"v_add_f32 {v(D[i]+j)}, {v(X[i]+2*j)}, {v(X[i]+2*j+1)}")
    for i in range(2): e(f"v_add_f32 {v(D[i])}, {v(D[i])}, {v(D[i]+1)}\nv_add_f32 {v(D[i]+2)}, {v(D[i]+2)}, {v(D[i]+3)}")
    for i in range(2): e(f"v_add_f32 {v(A[i])}, {v(D[i])}, {v(D[i]+2)}")
    allreduce(e, A, TM)
    for i in range(2): e(f"v_mul_f32 {v(MEAN[i])}, {fh(1/512)}, {v(A[i])}")
    for j in range(8):
        for i in range(2):
            e(f"v_sub_f32 {v(D[i])}, {v(X[i]+j)}, {v(MEAN[i])}")
        for i in range(2):
            if j == 0: e(f"v_mul_f32 {v(A[i])}, {v(D[i])}, {v(D[i])}")
            else: e(f"v_fmac_f32 {v(A[i])}, {v(D[i])}, {v(D[i])}")
    allreduce(e, A, TM)
    for i in range(2): e(f"v_mul_f32 {v(A[i])}, {fh(1/512)}, {v(A[i])}")
    for i in range(2): bfr2(e, A[i], MEAN[i])
    for i in range(2): e(f"v_add_f32 {v(A[i])}, {fh(1e-5)}, {v(A[i])}\nv_mov_b32 {v(M[i])}, {v(MEAN[i])}")
    bfr2(e, A[0], A[1])
    for i in range(2): e(f"v_sqrt_f32 {v(A[i])}, {v(A[i])}")
    bfr2(e, A[0], A[1])
    for i in range(2): e(f"v_rcp_f32 {v(RS[i])}, {v(A[i])}")
    for j in range(8):
        for i in range(2): e(f"v_sub_f32 {v(X[i]+j)}, {v(X[i]+j)}, {v(M[i])}")
    for j in range(4):
        for i in range(2): bfr2(e, X[i] + 2 * j, X[i] + 2 * j + 1)
    for j in range(8):
        for i in range(2): e(f"v_mul_f32 {v(X[i]+j)}, {v(X[i]+j)}, {v(RS[i])}")
    for j in range(4):
        for i in range(2): bfr2(e, X[i] + 2 * j, X[i] + 2 * j + 1)
    for j in range(8):
        for i in range(2):
            if j == 0: e(f"v_mul_f32 {v(A[i])}, {v(X[i]+j)}, {v(W+j)}")
            else: e(f"v_fmac_f32 {v(A[i])}, {v(X[i]+j)}, {v(W+j)}")
    allreduce(e, A, TM)
    bfr2(e, A[0], A[1])
    for i in range(2):
        e(f"v_ashrrev_i32 {v(TM[i])}, 31, {v(A[i])}\nv_or_b32 {v(TM[i])}, 0x80000000, {v(TM[i])}")
        e(f"v_xor_b32 {v(A[i])}, {v(A[i])}, {v(TM[i])}\nv_and_b32 {v(A[i])}, 0xffff0000, {v(A[i])}")
        e(f"v_sub_u32 {v(TM[i])}, {2047 - i}, {v(D[0])}" if False else f"v_mov_b32 {v(TM[i])}, {s(srow)}")
        e(f"v_sub_u32 {v(TM[i])}, {2047 - i}, {v(TM[i])}\nv_or_b32 {v(KEY[i])}, {v(A[i])}, {v(TM[i])}")

def k0():
    e = Em()
    e("s_cmp_ge_u32 s2, 256\ns_cbranch_scc1 K0_end")
    e("s_load_dwordx2 s[4:5], s[0:1], 0\ns_load_dwordx2 s[6:7], s[0:1], 48\ns_load_dwordx2 s[8:9], s[0:1], 96")
    e("v_and_b32 v1, 63, v0\nv_lshrrev_b32 v2, 6, v0\nv_lshlrev_b32 v3, 4, v1\nv_readfirstlane_b32 s3, v2")
    e("s_lshl_b32 s10, s2, 3\ns_lshl_b32 s11, s3, 1\ns_add_u32 s10, s10, s11\ns_lshl_b32 s11, s10, 10")
    e("s_waitcnt lgkmcnt(0)")
    srd(e, 12, 4, 5, 2097152); srd(e, 16, 6, 7, 1024); srd(e, 20, 8, 9, WS_SIZE)
    e("buffer_load_dwordx4 v[4:7], v3, s[12:15], s11 offen\nbuffer_load_dwordx4 v[8:11], v3, s[12:15], s11 offen offset:1024")
    e("buffer_load_dwordx4 v[12:15], v3, s[16:19], 0 offen\ns_waitcnt vmcnt(0)")
    stats_compute(e, 4, 8, 12, 16, 10)
    e(f"s_lshl_b32 s24, s10, 3\ns_add_u32 s24, s24, {WS_ST}\ns_lshl_b32 s25, s10, 2\ns_add_u32 s25, s25, {WS_KEY}")
    e("v_mov_b32 v3, 0\ns_mov_b64 exec, 1")
    e("buffer_store_dwordx4 v[16:19], v3, s[20:23], s24 offen\nbuffer_store_dwordx2 v[20:21], v3, s[20:23], s25 offen")
    e("s_waitcnt vmcnt(0)\nK0_end:\ns_endpgm")
    return e.L

S0, S1 = 0, 64
QF = 128
NEGM = 192
LACC = 208
ONES = 216
VA = 220
KA = 228
DKV = 232
LV = 236
TMP = 240
AO, AK, AV = 0, 128, 192
XVO = 128
WVO = 136
XRA = 140
CSA = 144
CSACC = 148
CSW = 146
STQ = 248
def CSV(db): return 192 + 4 * db if db < 6 else 240 + 4 * (db - 6)
SX, SWQ, SK, SV_, SWS = 4, 8, 12, 16, 20
MK, MV = 24, 28
OFFK, OFFV, CNT, SH, SQB, XSO, WSO = 32, 33, 34, 35, 36, 37, 38
MX = 39
XBASE = [0, 32768, 131072]
def xslot(st): return {2: 0, 5: 0, 0: 1, 3: 1, 6: 1, 1: 2, 4: 2, 7: 2}[st]
def wslot(st): return 1 + st % 3

def dma(voff, srd_, soff, ioff, tag):
    return f"buffer_load_dwordx4 {v(voff)}, {s(srd_,4)}, {soff} offen offset:{ioff} lds @@{tag}"

def qbuf(st):
    return (0, 64, 96) if st & 1 else (128, 192, 224)

def q_issue(st):
    it = []
    it.append(('S', f"s_mov_b32 {s(XSO)}, {st*128}"))
    it.append(('S', f"s_mov_b32 {s(WSO)}, {st*64*8192}"))
    it.append(('S', f"s_mov_b32 m0, {s(MV + wslot(st))}"))
    for i in range(4): it.append(('D', dma(WVO + i, SWQ, s(WSO), 1024 * i, f"q{st}")))
    it.append(('S', f"s_mov_b32 m0, {s(MX + xslot(st))}"))
    for i in range(4): it.append(('D', dma(XVO + i, SX, s(XSO), 1024 * i, f"q{st}")))
    it.append(('S', f"s_add_u32 m0, {s(MX + xslot(st))}, 4096"))
    for i in range(4, 8): it.append(('D', dma(XVO + i, SX, s(XSO), 1024 * (i & 3), f"q{st}")))
    return it

def kv_issue(which, j, tag=None):
    it = []
    isk = which == 'K'
    off = OFFK if isk else OFFV
    it.append(('S', f"s_mov_b32 {s(off)}, {j*16384}"))
    it.append(('S', f"s_mov_b32 m0, {s((MK if isk else MV) + (j & 3))}"))
    for i in range(4):
        it.append(('D', dma(DKV + (0 if isk else 2) + (i >> 1), SK if isk else SV_, s(off), 1024 * i, tag or f"{which}{j}")))
    return it

def q_reads(st):
    W, X, C = qbuf(st)
    L = []
    xo = XBASE[xslot(st)]; xr = XRA
    if xo >= 65536: xo -= 131072; xr += 2
    wo = wslot(st) * 16384
    for ks in range(2):
        for d2 in range(2):
            for jh in range(2):
                L.append(f"ds_read_b64_tr_b16 {a(C + 8*ks + 4*d2 + 2*jh, 2)}, {v(CSA + d2)} offset:{wo + ks*8192 + jh*1024}")
    for qb in range(4):
        for ks in range(2):
            L.append(f"ds_read_b128 {a(X + 16*ks + 4*qb, 4)}, {v(xr + ks)} offset:{xo + qb*2048}")
    for db in range(8):
        for ks in range(2):
            for jh in range(2):
                L.append(f"ds_read_b64_tr_b16 {a(W + 32*ks + 4*db + 2*jh, 2)}, {v(VA + db)} offset:{wo + ks*8192 + jh*1024}")
    return L

def qacc(db, qb): return 4 * (8 * qb + db)

def q_mfmas(st):
    W, X, C = qbuf(st)
    M = []
    for d2 in range(2):
        for ks in range(2):
            c = '0' if (st == 0 and ks == 0) else v(CSACC + 4 * d2, 4)
            M.append(f"{MF} {v(CSACC + 4*d2, 4)}, {a(C + 8*ks + 4*d2, 4)}, {v(ONES, 4)}, {c}")
    for db in range(8):
        for qb in range(4):
            for ks in range(2):
                d = v(qacc(db, qb), 4)
                c = '0' if (st == 0 and ks == 0) else d
                M.append(f"{MF} {d}, {a(W + 32*ks + 4*db, 4)}, {a(X + 16*ks + 4*qb, 4)}, {c}")
    return M

def pack_gaps(n, dq, lq, start=0, lstart=0, fixed=None):
    gaps = dict(fixed or {})
    dq = list(dq); lq = list(lq)
    p = start
    tog = 0
    while (dq or lq) and p < n:
        if p in gaps: p += 1; continue
        if dq and dq[0][0] == 'S':
            g = []
            if lq and p >= lstart:
                g.append(lq.pop(0)); g.append(dq.pop(0)[1])
            else:
                g.append(dq.pop(0)[1])
                if dq and dq[0][0] == 'S': g.append(dq.pop(0)[1])
            gaps[p] = g
        elif dq and (tog == 0 or not lq or p < lstart):
            gaps[p] = [dq.pop(0)[1]]; tog = 1
        elif lq and p >= lstart:
            g = [lq.pop(0)]
            if lq: g.append(lq.pop(0))
            gaps[p] = g; tog = 0
        p += 1
    assert not dq and not lq, (len(dq), len(lq))
    return gaps

def sgrp(buf, qb, ks): return buf + (2 * qb + ks) * 8

def k_reads(j, dst=AK):
    L = []
    for ks in range(2):
        for jh in range(2):
            for ksd in range(4):
                kb = 2 * ks + jh
                L.append(f"ds_read_b128 {a(dst + 16*kb + 4*ksd, 4)}, {v(KA + ksd)} offset:{(j & 3)*16384 + ks*8192 + jh*1024}")
    return L

def v_reads(j, dst=AV):
    L = []
    for db in range(8):
        for ks in range(2):
            for jh in range(2):
                L.append(f"ds_read_b64_tr_b16 {a(dst + 32*ks + 4*db + 2*jh, 2)}, {v(VA + db)} offset:{(j & 3)*16384 + ks*8192 + jh*1024}")
    return L

def qk_chain(buf, qb, kb, src=AK, c0=None):
    d = v(sgrp(buf, qb, kb >> 1) + 4 * (kb & 1), 4)
    M = []
    for ksd in range(4):
        c = (c0 if c0 is not None else v(NEGM + 4 * qb, 4)) if ksd == 0 else d
        M.append(f"{MF} {d}, {a(src + 16*kb + 4*ksd, 4)}, {v(QF + 16*qb + 4*ksd, 4)}, {c}")
    return M

def qk_mfmas(j, src=AK):
    buf = S1 if j & 1 else S0
    M = []
    for qb in range(4):
        for kb in range(4): M += qk_chain(buf, qb, kb, src)
    return M

def lacc(qb): return LACC + 4 * OPT['msum'].index(qb)

def pv_mfmas(j, first=False, src=AV):
    buf = S1 if j & 1 else S0
    M = []; st = []
    for qb in range(4):
        st.append(len(M))
        for db in range(8):
            d = a(AO + 4 * (8 * qb + db), 4)
            for ks in range(2):
                c = '0' if (first and ks == 0) else d
                M.append(f"{MF} {d}, {a(src + 32*ks + 4*db, 4)}, {v(sgrp(buf, qb, ks), 4)}, {c}")
        if qb in OPT['msum']:
            d = v(lacc(qb), 4)
            for ks in range(2):
                c = '0' if (first and ks == 0) else d
                M.append(f"{MF} {d}, {v(ONES, 4)}, {v(sgrp(buf, qb, ks), 4)}, {c}")
    return M, st

def sm_stream(j):
    buf = S1 if j & 1 else S0
    E = []; V = []
    for qb in range(4):
        for ks in range(2):
            b = sgrp(buf, qb, ks); e0 = len(E)
            for i in range(8): E.append(f"v_exp_f32 {v(b+i)}, {v(b+i)}")
            for p in range(4):
                if qb not in OPT['msum']:
                    for i in (2 * p, 2 * p + 1):
                        acc = LV + qb
                        V.append((e0 + i, f"v_add_f32 {v(acc)}, {v(acc)}, {v(b+i)}"))
                V.append((e0 + 2 * p + 1, f"v_cvt_pk_bf16_f32 {v(b+p)}, {v(b+2*p)}, {v(b+2*p+1)}"))
    return E, V

class SM:
    def __init__(self, j):
        self.E, self.V = sm_stream(j); self.e = 0; self.v = 0
    def ready(self):
        n = 0
        while self.v + n < len(self.V) and self.V[self.v + n][0] < self.e: n += 1
        return n
    def popE(self): self.e += 1; return self.E[self.e - 1]
    def popV(self): self.v += 1; return self.V[self.v - 1][1]
    def remE(self): return len(self.E) - self.e
    def remV(self): return len(self.V) - self.v

def fill(n, sm, L, lfirst, llast, D=None, dpos=None, scal=None, futureL=0, elimit=None, eearly=None, finish=False):
    gaps = {}
    L = list(L); nL = len(L); D = list(D or []); dpos = list(dpos or []); scal = dict(scal or {})
    elimit = len(sm.E) if elimit is None else elimit
    for p in range(n):
        g = []
        done = nL - len(L)
        lav = bool(L) and p >= lfirst + (llast - lfirst) * done / max(1, nL - 1) - 1e-9
        urgent = bool(L) and (llast - p + 1) * 2 <= len(L) + 1 or (bool(L) and p >= llast)
        vr = sm.ready()
        eok = sm.e < elimit and (eearly is None or p >= eearly(sm.e))
        if p in dpos:
            assert p not in scal
            g = [D.pop(0)]
        elif p in scal and p not in dpos:
            g = [scal.pop(p)]
            if eok: g.append(sm.popE())
            else:
                for _ in range(min(2, vr)): g.append(sm.popV())
        elif lav and vr >= 1:
            g = [L.pop(0), sm.popV()]
        elif urgent or (lav and not eok):
            g = [L.pop(0)]
            if L: g.append(L.pop(0))
        elif vr >= 2 and (sm.remV() - len(L) - futureL >= 2 or not eok):
            g = [sm.popV(), sm.popV()]
        elif eok:
            g = [sm.popE()]
        elif vr >= 1 and finish:
            g = [sm.popV()]
        if g: gaps[p] = g
    assert not L and not D and not scal, (len(L), len(D), scal)
    return gaps

def loop_dma(j, kj, vj):
    D = []; sc = []
    if vj is not None:
        for i in range(4): D.append(dma(DKV + 2 + (i >> 1), SV_, s(OFFV), 1024 * i, f"V{vj}"))
    if kj is not None:
        for i in range(4): D.append(dma(DKV + (i >> 1), SK, s(OFFK), 1024 * i, f"K{kj}"))
    return D

NB = 64 + 2 * len(OPT['msum'])

def phaseA(e, j, sm, last_wait):
    M = qk_mfmas(j + 1)
    g = fill(64, sm, v_reads(j), 0, 54, finish=True)
    assert sm.remE() == 0 and sm.remV() == 0, (sm.remE(), sm.remV())
    g.setdefault(63, [])
    g[63] = g[63] + [last_wait, "s_barrier"]
    e.weave(M, g)
    return g

def phaseB(e, j, first=False, extraK=None, tail=None, target=None):
    M, st = pv_mfmas(j, first)
    sm = SM(j + 1)
    kj = j + 5 if j + 5 < 32 or tail is None else None
    vj = j + 4 if j + 4 < 32 or tail is None else None
    D = []; dpos = []; scal = {}
    p = 2
    if extraK is not None:
        scal[p] = f"s_mov_b32 m0, {s(MK + (extraK & 3))}"; p += 2
        for i in range(4):
            D.append(dma(DKV + (i >> 1), SK, s(OFFK), 1024 * i, f"K{extraK}")); dpos.append(p); p += 3
        scal[p] = f"s_add_u32 {s(OFFK)}, {s(OFFK)}, 16384"; p += 1
    step = 5 if extraK is not None else 7
    if vj is not None:
        scal[p] = f"s_mov_b32 m0, {s(MV + (vj & 3))}"; p += 2
        for i in range(4):
            D.append(dma(DKV + 2 + (i >> 1), SV_, s(OFFV), 1024 * i, f"V{vj}")); dpos.append(p); p += step
        scal[p - step + 1] = f"s_add_u32 {s(OFFV)}, {s(OFFV)}, 16384"
    if kj is not None:
        scal[p - 2] = f"s_mov_b32 m0, {s(MK + (kj & 3))}"
        for i in range(4):
            D.append(dma(DKV + (i >> 1), SK, s(OFFK), 1024 * i, f"K{kj}")); dpos.append(p); p += step
        scal[p - step + 1] = f"s_add_u32 {s(OFFK)}, {s(OFFK)}, 16384"
    L = k_reads(j + 2) if j + 2 < 32 else []
    fut = 32
    if tail == 'v31':
        L = v_reads(31, AK); fut = 0
    scal[NB - 1] = "s_waitcnt lgkmcnt(0)"
    g = fill(NB, sm, L, 3, NB - 12, D, dpos, scal, futureL=fut, elimit=OPT.get('eB', 36))
    if target is not None:
        while sm.e < target[0]: g[NB - 1].append(sm.popE())
        while sm.v < target[1]: g[NB - 1].append(sm.popV())
    e.weave(M, g)
    return sm, g

def show(tag, g, n):
    def ch(x):
        o = x.split()[0]
        return 'E' if 'exp' in o else 'L' if o.startswith('ds_') else 'D' if o.startswith('buffer') else 's' if o.startswith('s_') or o == 'WAITVM' else 'v'
    print(tag, ' '.join(''.join(ch(x) for x in g.get(i, [])) or '-' for i in range(n)), file=sys.stderr)

def k1():
    e = Em()
    e("s_cmp_ge_u32 s2, 256\ns_cbranch_scc1 K1_end")
    e("s_load_dwordx4 s[44:47], s[0:1], 0\ns_load_dwordx4 s[48:51], s[0:1], 16\ns_load_dwordx2 s[52:53], s[0:1], 96")
    e("v_and_b32 v1, 63, v0\nv_lshrrev_b32 v2, 6, v0")
    e("v_and_b32 v3, 15, v1\nv_lshrrev_b32 v4, 4, v1\nv_readfirstlane_b32 s3, v2")
    e(f"s_and_b32 s42, s2, 7\ns_lshl_b32 s42, s42, 2\ns_lshr_b32 s43, s2, 3\ns_and_b32 s43, s43, 3\ns_add_u32 {s(SH)}, s42, s43\ns_lshr_b32 {s(SQB)}, s2, 5")
    e("v_lshlrev_b32 v5, 1, v4\nv_xor_b32 v5, v5, v3\nv_lshlrev_b32 v5, 4, v5")
    e("v_lshlrev_b32 v6, 4, v2\nv_add_u32 v6, v6, v4")
    e(f"v_lshlrev_b32 v7, 13, v6\nv_add_u32 {v(WVO)}, v7, v5")
    e(f"v_add_u32 {v(WVO+1)}, {4*8192-1024}, {v(WVO)}")
    e(f"v_xor_b32 v8, 128, {v(WVO)}\nv_add_u32 {v(WVO+2)}, {8*8192-2048}, v8\nv_add_u32 {v(WVO+3)}, {12*8192-3072}, v8")
    e(f"v_lshlrev_b32 v7, 8, v6\nv_add_u32 {v(DKV+2)}, v7, v5\nv_xor_b32 {v(DKV+3)}, 128, {v(DKV+2)}")
    e("v_and_b32 v8, 1, v2\nv_lshlrev_b32 v8, 3, v8\nv_or_b32 v8, v8, v4\nv_xor_b32 v8, v8, v3\nv_lshlrev_b32 v8, 4, v8")
    e(f"v_add_u32 {v(DKV)}, v7, v8\nv_xor_b32 {v(DKV+1)}, 64, {v(DKV)}")
    e("v_lshrrev_b32 v8, 3, v1\nv_lshlrev_b32 v9, 6, v2\nv_add_u32 v8, v8, v9\nv_lshlrev_b32 v8, 10, v8")
    e("v_and_b32 v9, 7, v1\nv_xor_b32 v9, v9, v4\nv_lshlrev_b32 v9, 4, v9\nv_add_u32 v8, v8, v9\nv_xor_b32 v9, 64, v8")
    for i in range(8):
        src = 9 if i & 1 else 8
        e(f"v_add_u32 {v(XVO+i)}, {8192*i - 1024*(i&3)}, {v(src)}")
    e("s_waitcnt lgkmcnt(0)")
    e(f"s_lshl_b32 s42, {s(SQB)}, 18\ns_add_u32 {s(SX)}, s44, s42\ns_addc_u32 {s(SX+1)}, s45, 0\ns_mov_b32 {s(SX+2)}, 262144\ns_mov_b32 {s(SX+3)}, 0x20000")
    e(f"s_lshl_b32 s42, {s(SH)}, 8\ns_add_u32 {s(SWQ)}, s50, s42\ns_addc_u32 {s(SWQ+1)}, s51, 0\ns_sub_u32 {s(SWQ+2)}, {512*8192}, s42\ns_mov_b32 {s(SWQ+3)}, 0x20000")
    e(f"s_lshl_b32 s42, {s(SH)}, 19\ns_add_u32 {s(SK)}, s46, s42\ns_addc_u32 {s(SK+1)}, s47, 0\ns_mov_b32 {s(SK+2)}, 524288\ns_mov_b32 {s(SK+3)}, 0x20000")
    e(f"s_add_u32 {s(SV_)}, s48, s42\ns_addc_u32 {s(SV_+1)}, s49, 0\ns_mov_b32 {s(SV_+2)}, 524288\ns_mov_b32 {s(SV_+3)}, 0x20000")
    srd(e, SWS, 52, 53, WS_SIZE)
    e("s_lshl_b32 s42, s3, 12\ns_lshl_b32 s43, s3, 13")
    for i in range(4):
        e(f"s_add_u32 {s(MK+i)}, s42, {i*16384}\ns_add_u32 {s(MV+i)}, s42, {65536+i*16384}")
    for i in range(3): e(f"s_add_u32 {s(MX+i)}, s43, {XBASE[i]}")
    for st in range(3):
        for k, t in q_issue(st): e(t)
    e(f"s_lshl_b32 s42, {s(SQB)}, 11\ns_lshl_b32 s43, s3, 9\ns_add_u32 s42, s42, s43\ns_add_u32 s42, s42, {WS_ST}")
    e("v_lshlrev_b32 v8, 3, v3")
    for i in range(4): e(f"buffer_load_dwordx2 {v(STQ+2*i,2)}, v8, {s(SWS,4)}, s42 offen offset:{128*i} @@st")
    e("v_lshrrev_b32 v8, 2, v3\nv_lshlrev_b32 v8, 3, v8\nv_and_b32 v9, 3, v3\nv_add_u32 v8, v8, v9\nv_lshlrev_b32 v8, 8, v8")
    e(f"v_xor_b32 v9, v4, v3\nv_lshlrev_b32 v9, 4, v9\nv_add_u32 {v(KA)}, v8, v9")
    for k in range(1, 4): e(f"v_xor_b32 {v(KA+k)}, {k << 6}, {v(KA)}")
    e("v_lshrrev_b32 v8, 2, v3\nv_lshlrev_b32 v9, 3, v4\nv_add_u32 v9, v9, v8\nv_lshlrev_b32 v9, 8, v9")
    e("v_lshlrev_b32 v8, 1, v8\nv_and_b32 v10, 1, v4\nv_lshlrev_b32 v10, 3, v10\nv_or_b32 v8, v8, v10")
    e("v_bfe_u32 v10, v1, 1, 1\nv_or_b32 v8, v8, v10\nv_lshlrev_b32 v8, 4, v8\nv_add_u32 v9, v9, v8")
    e(f"v_and_b32 v10, 1, v1\nv_lshlrev_b32 v10, 3, v10\nv_add_u32 v9, v9, v10\nv_add_u32 {v(VA)}, 65536, v9")
    for k in range(1, 8): e(f"v_xor_b32 {v(VA+k)}, {k << 5}, {v(VA)}")
    e(f"v_lshlrev_b32 v8, 6, v2\nv_xor_b32 {v(CSA)}, v8, {v(VA)}\nv_xor_b32 {v(CSA+1)}, 32, {v(CSA)}")
    e("v_lshlrev_b32 v8, 13, v2\nv_lshlrev_b32 v9, 7, v3\nv_add_u32 v8, v8, v9\nv_lshrrev_b32 v9, 1, v3\nv_xor_b32 v9, v9, v4\nv_lshlrev_b32 v9, 4, v9")
    e(f"v_add_u32 {v(XRA)}, v8, v9\nv_xor_b32 {v(XRA+1)}, 64, {v(XRA)}\nv_add_u32 {v(XRA+2)}, 131072, {v(XRA)}\nv_add_u32 {v(XRA+3)}, 131072, {v(XRA+1)}")
    e(f"v_lshlrev_b32 v8, 4, v4\nv_add_u32 {v(CSW+1)}, 131072, v8\nv_lshlrev_b32 v9, 7, v2\nv_add_u32 {v(CSW)}, {v(CSW+1)}, v9")
    for i in range(4): e(f"v_mov_b32 {v(ONES+i)}, 0x3f803f80\nv_mov_b32 {v(LV+i)}, 0")
    e("WAITVM q0\ns_barrier")
    for t in q_reads(0): e(t)
    for st in range(8):
        if st < 7: e(f"WAITVM q{st+1} lgkm\ns_barrier")
        else: e("s_waitcnt lgkmcnt(0)\ns_barrier")
        M = q_mfmas(st)
        if st + 3 < 8: dq = q_issue(st + 3)
        elif st == 5: dq = kv_issue('K', 0) + kv_issue('V', 0) + kv_issue('K', 1)
        elif st == 6: dq = kv_issue('K', 2) + kv_issue('V', 1) + kv_issue('K', 3)
        else: dq = kv_issue('V', 2) + kv_issue('V', 3)
        if st < 7:
            g = pack_gaps(len(M) - 8, dq, q_reads(st + 1))
        else:
            fixed = {8: [f"ds_write_b128 {v(CSW)}, {v(CSACC,4)}", f"ds_write_b128 {v(CSW)}, {v(CSACC+4,4)} offset:64"]}
            g = pack_gaps(30, dq, [], fixed=fixed)
            g[30] = ["WAITVM K0,V0,K1 lgkm", "s_barrier"]
            lq = [f"ds_read_b128 {v(CSV(db),4)}, {v(CSW+1)} offset:{64*db}" for db in range(8)] + k_reads(0, AV) + k_reads(1, AK)
            g = pack_gaps(len(M), [], lq, start=31, fixed=g)
        e.weave(M, g)
    e(f"s_mov_b32 {s(OFFK)}, {4*16384}\ns_mov_b32 {s(OFFV)}, {4*16384}")
    e("WAITVM st lgkm")
    for qb in range(4):
        e(f"v_xor_b32 {v(STQ+2*qb)}, 0x80000000, {v(STQ+2*qb)}\nv_mul_f32 {v(STQ+2*qb+1)}, {fh(QSCALE)}, {v(STQ+2*qb+1)}")
    for qb in range(4):
        st_ = v(STQ + 2 * qb, 2)
        for db in range(8):
            b = qacc(db, qb)
            for hh in range(2):
                e(f"v_pk_fma_f32 {v(b+2*hh,2)}, {v(CSV(db)+2*hh,2)}, {st_}, {v(b+2*hh,2)} op_sel_hi:[1,0,1]")
        for db in range(8):
            b = qacc(db, qb)
            for hh in range(2):
                e(f"v_pk_mul_f32 {v(b+2*hh,2)}, {v(b+2*hh,2)}, {st_} op_sel:[0,1] op_sel_hi:[1,1]")
    for qb in range(4):
        for db in range(8):
            b = qacc(db, qb); f = QF + 16 * qb + 4 * (db >> 1) + 2 * (db & 1)
            e(f"v_cvt_pk_bf16_f32 {v(f)}, {v(b)}, {v(b+1)}\nv_cvt_pk_bf16_f32 {v(f+1)}, {v(b+2)}, {v(b+3)}")
        for sw in ('v_permlane32_swap_b32', 'v_permlane16_swap_b32'):
            for ksd in range(4):
                f = QF + 16 * qb + 4 * ksd
                e(f"{sw} {v(f)}, {v(f+2)}\n{sw} {v(f+1)}, {v(f+3)}")
    if OPT['dump'] & 1:
        e(f"v_and_b32 v0, 63, v0" if False else "s_nop 0")
        e(f"v_mbcnt_lo_u32_b32 {v(TMP)}, -1, 0\nv_mbcnt_hi_u32_b32 {v(TMP)}, -1, {v(TMP)}\nv_lshlrev_b32 {v(TMP)}, 4, {v(TMP)}")
        e(f"s_lshl_b32 s42, s2, 2\ns_add_u32 s42, s42, s3\ns_lshl_b32 s42, s42, 14\ns_add_u32 s42, s42, {WS_DBG}")
        for i in range(16):
            e(f"buffer_store_dwordx4 {v(QF+4*i,4)}, {v(TMP)}, {s(SWS,4)}, s42 offen\ns_add_u32 s42, s42, 1024")
        e("s_waitcnt vmcnt(0)")
    for qb in range(4):
        for m in qk_chain(S0, qb, 0, AV, '0'): e(m)
    MXR = [TMP + i for i in range(4)]; TT = [TMP + 4 + i for i in range(4)]
    for qb in range(4):
        b = sgrp(S0, qb, 0)
        e(f"v_max3_f32 {v(MXR[qb])}, {v(b)}, {v(b+1)}, {v(b+2)}\nv_max_f32 {v(MXR[qb])}, {v(MXR[qb])}, {v(b+3)}")
    for sw in ('v_permlane16_swap_b32', 'v_permlane32_swap_b32'):
        for qb in range(4): e(f"v_mov_b32 {v(TT[qb])}, {v(MXR[qb])}")
        for qb in range(4): e(f"{sw} {v(TT[qb])}, {v(MXR[qb])}")
        for qb in range(4): e(f"v_max_f32 {v(MXR[qb])}, {v(MXR[qb])}, {v(TT[qb])}")
    for qb in range(4):
        for i in range(4): e(f"v_xor_b32 {v(NEGM+4*qb+i)}, 0x80000000, {v(MXR[qb])}")
    for qb in range(4):
        b = sgrp(S0, qb, 0)
        for i in range(4): e(f"v_sub_f32 {v(b+i)}, {v(b+i)}, {v(MXR[qb])}")
    M = []
    for qb in range(4):
        for kb in range(1, 4): M += qk_chain(S0, qb, kb, AV)
    dry = Em(); smd, gd = phaseB(dry, 1); nE, nV = smd.e, smd.v
    show('B', gd, NB)
    sm = SM(0)
    def early(ei):
        qb, ks, jh = ei >> 4, (ei >> 3) & 1, (ei >> 2) & 1
        kb = 2 * ks + jh
        return 0 if kb == 0 else 12 * qb + 4 * (kb - 1) + 3 + 3
    g = fill(48, sm, [], 0, 1, elimit=nE, eearly=early, futureL=len(sm.V) - nV)
    show('P', g, 48)
    e.weave(M, g)
    while sm.e < nE: e(sm.popE())
    while sm.v < nV: e(sm.popV())
    assert sm.e == nE and sm.v == nV
    g = phaseA(e, 0, sm, "WAITVM K2,V1 lgkm"); show('A', g, 64)
    sm, g = phaseB(e, 0, first=True, extraK=4, target=(nE, nV)); show('B0', g, NB)
    assert (sm.e, sm.v) == (nE, nV), (sm.e, sm.v, nE, nV)
    e(f"s_mov_b32 {s(CNT)}, 0")
    e(".p2align 6\nK1_loop:")
    lstart = len(e.L)
    for j in range(1, 5):
        phaseA(e, j, sm, "s_waitcnt vmcnt(16) lgkmcnt(0)")
        sm, _ = phaseB(e, j)
    e(f"s_add_u32 {s(CNT)}, {s(CNT)}, 1\ns_cmp_lt_u32 {s(CNT)}, 7\ns_cbranch_scc1 K1_loop")
    loop = e.L[lstart:]
    for p in check(loop + loop, 'loop'): print(p, file=sys.stderr)
    phaseA(e, 29, sm, "s_waitcnt vmcnt(16) lgkmcnt(0)")
    sm, _ = phaseB(e, 29, tail='x')
    phaseA(e, 30, sm, "s_waitcnt vmcnt(0) lgkmcnt(0)")
    sm, g = phaseB(e, 30, tail='v31'); show('B30', g, NB)
    M, st = pv_mfmas(31, src=AK)
    g = fill(NB, sm, [], 0, 1, finish=True); show('B31', g, NB)
    assert sm.remE() == 0 and sm.remV() == 0
    for p, its in g.items():
        for t in its:
            if 'cvt_pk' in t:
                r = int(t.split()[1].strip('v,')) - S1
                assert p < st[r >> 4] - 1, (t, p, st)
    e.weave(M, g)
    LS = [TMP + i for i in range(4)]; TT = [TMP + 4 + i for i in range(4)]
    vq = [q for q in range(4) if q not in OPT['msum']]
    for sw in ('v_permlane16_swap_b32', 'v_permlane32_swap_b32'):
        for q in vq: e(f"v_mov_b32 {v(TT[q])}, {v(LV+q)}")
        for q in vq: e(f"{sw} {v(TT[q])}, {v(LV+q)}")
        for q in vq: e(f"v_add_f32 {v(LV+q)}, {v(LV+q)}, {v(TT[q])}")
    for q in range(4):
        src = LV + q if q in vq else lacc(q)
        e(f"v_rcp_f32 {v(TMP+8+2*q)}, {v(src)}")
    e(f"v_mbcnt_lo_u32_b32 {v(TMP)}, -1, 0\nv_mbcnt_hi_u32_b32 {v(TMP)}, -1, {v(TMP)}\nv_lshlrev_b32 {v(TMP)}, 4, {v(TMP)}")
    e(f"s_lshl_b32 s42, {s(SQB)}, 2\ns_add_u32 s42, s42, s3\ns_lshl_b32 s42, s42, 19\ns_lshl_b32 s43, {s(SH)}, 14\ns_add_u32 s42, s42, s43")
    for t in range(4):
        for q in range(4):
            b = ((t * 4 + q) & 7) * 16
            for k in range(8): e(f"v_accvgpr_read_b32 {v(b+k)}, {a(AO + 4*(8*q + 2*t) + k)}")
            for k in range(4): e(f"v_pk_mul_f32 {v(b+2*k,2)}, {v(b+2*k,2)}, {v(TMP+8+2*q,2)} op_sel_hi:[1,0]")
            for k in range(4): e(f"v_cvt_pk_bf16_f32 {v(b+8+k)}, {v(b+2*k)}, {v(b+2*k+1)}")
            e(f"buffer_store_dwordx4 {v(b+8,4)}, {v(TMP)}, {s(SWS,4)}, s42 offen offset:{q*1024}")
        e(f"s_add_u32 s42, s42, 4096")
    ffn(e)
    e("s_waitcnt vmcnt(0)\nK1_end:\ns_endpgm")
    return e.L

def find_tstar(e, R, sdst, vlane16):
    e(f"s_mov_b32 s42, {WS_KEY}")
    for i in range(8):
        e(f"buffer_load_dwordx4 {v(R+4*i,4)}, {v(vlane16)}, {s(SWS,4)}, s42 offen offset:{(i&3)*1024} @@key")
        if i == 3: e("s_add_u32 s42, s42, 4096")
    e("WAITVM key")
    for i in range(1, 31, 2): e(f"v_max3_u32 {v(R)}, {v(R)}, {v(R+i)}, {v(R+i+1)}")
    e(f"v_max_u32 {v(R)}, {v(R)}, {v(R+31)}")
    allreduce(e, [R], [R + 1], 'v_max_u32')
    e(f"v_readfirstlane_b32 {s(sdst)}, {v(R)}")

def silu(e, r, t):
    e(f"v_mul_f32 {v(t)}, {fh(-LOG2E)}, {v(r)}\nv_exp_f32 {v(t)}, {v(t)}\nv_add_f32 {v(t)}, 1.0, {v(t)}\nv_rcp_f32 {v(t)}, {v(t)}\nv_mul_f32 {v(r)}, {v(r)}, {v(t)}")

def ffn(e):
    L16 = TMP
    e(f"s_cmp_ge_u32 s2, {NFFN}\ns_cbranch_scc1 K1_ffn_done")
    e("s_load_dwordx4 s[56:59], s[0:1], 56\ns_load_dwordx2 s[60:61], s[0:1], 72")
    e("s_barrier")
    find_tstar(e, 0, 54, L16)
    e("s_and_b32 s55, s54, 2047\ns_sub_u32 s55, 2047, s55")
    e("s_waitcnt lgkmcnt(0)")
    srd(e, 64, 56, 57, 512 * 2752); srd(e, 68, 58, 59, 512 * 2752); srd(e, 72, 60, 61, 1376 * 1024); srd(e, 76, 44, 45, 2097152)
    e(f"v_lshrrev_b32 v40, 4, {v(L16)}\ns_movk_i32 s42, 2752\nv_mul_lo_u32 v40, v40, s42")
    e("s_lshl_b32 s43, s2, 4\ns_lshl_b32 s62, s3, 15")
    for part, sr in ((0, 64), (1, 68)):
        for i in range(8):
            e(f"s_add_u32 m0, s62, {part*8192 + i*1024}\ns_add_u32 s63, s43, {i*64*2752}")
            e(f"buffer_load_dwordx4 v40, {s(sr,4)}, s63 offen lds @@fw")
    e("s_lshl_b32 s42, s55, 10")
    e(f"buffer_load_dwordx4 v[44:47], {v(L16)}, s[76:79], s42 offen @@fx")
    e(f"s_lshl_b32 s42, s55, 3\ns_add_u32 s42, s42, {WS_ST}\nv_mov_b32 v41, 0")
    e(f"buffer_load_dwordx2 v[48:49], v41, {s(SWS,4)}, s42 offen @@fx")
    e(f"v_lshrrev_b32 v42, 2, {v(L16)}\ns_lshl_b32 s42, s2, 13\ns_lshl_b32 s43, s3, 8\ns_add_u32 s42, s42, s43")
    for f in range(8):
        e(f"buffer_load_dword {v(52+f)}, v42, s[72:75], s42 offen offset:{(f&3)*1024} @@fd")
        if f == 3: e("s_add_u32 s42, s42, 4096")
    e("WAITVM fx")
    for j in range(4): unpack(e, 60 + 2 * j, 44 + j)
    for j in range(8): e(f"v_sub_f32 {v(60+j)}, {v(60+j)}, v48")
    for j in range(4): bfr2(e, 60 + 2 * j, 61 + 2 * j)
    for j in range(8): e(f"v_mul_f32 {v(60+j)}, {v(60+j)}, v49")
    for j in range(4): e(f"v_cvt_pk_bf16_f32 {v(44+j)}, {v(60+2*j)}, {v(61+2*j)}")
    e(f"v_add_u32 v43, s62, {v(L16)}\nds_write_b128 v43, v[44:47] offset:16384")
    e(f"v_lshrrev_b32 v50, 8, {v(L16)}\nv_lshlrev_b32 v50, 4, v50\nv_add_u32 v50, s62, v50")
    e(f"v_lshrrev_b32 v51, 4, {v(L16)}")
    e("v_lshrrev_b32 v68, 4, v51\nv_lshlrev_b32 v68, 3, v68\nv_bfe_u32 v69, v51, 2, 2\nv_add_u32 v68, v68, v69\nv_lshlrev_b32 v68, 4, v68")
    e("v_and_b32 v69, 1, v51\nv_lshlrev_b32 v69, 3, v69\nv_add_u32 v68, v68, v69\nv_bfe_u32 v69, v51, 1, 1\nv_lshlrev_b32 v69, 13, v69\nv_add_u32 v68, v68, v69\nv_add_u32 v68, s62, v68")
    e("s_waitcnt lgkmcnt(0)\nWAITVM fw")
    for half in range(2):
        for k in range(8):
            kk = half * 8 + k
            e(f"ds_read_b128 {a(4*k,4)}, v50 offset:{16384 + 64*kk}")
        e("s_waitcnt lgkmcnt(0)")
        for k in range(8):
            kk = half * 8 + k
            for jh in range(2): e(f"ds_read_b64_tr_b16 {a(32+4*k+2*jh,2)}, v68 offset:{512*kk + 64*jh}")
            if k == 3 or k == 7: e("s_waitcnt lgkmcnt(0)")
        for k in range(8):
            c = '0' if (half == 0 and k == 0) else 'v[72:75]'
            e(f"{MF} v[72:75], {a(32+4*k,4)}, {a(4*k,4)}, {c}")
    bfr2(e, 72, 73); bfr2(e, 74, 75)
    for r in range(4): e(f"v_mov_b32 {v(76+r)}, {v(72+r)}")
    for r in range(4): e(f"v_permlane32_swap_b32 {v(72+r)}, {v(76+r)}")
    for r in range(4): silu(e, 72 + r, 80 + r)
    bfr2(e, 72, 73); bfr2(e, 74, 75)
    for r in range(4): e(f"v_mul_f32 {v(72+r)}, {v(72+r)}, {v(76+r)}")
    bfr2(e, 72, 73); bfr2(e, 74, 75)
    for f in range(8): e(f"v_readlane_b32 {s(80+f)}, {v(72+(f&3))}, {16*(f>>2)}")
    e("WAITVM fd")
    for f in range(8):
        unpack(e, 60, 52 + f)
        if f == 0: e(f"v_mul_f32 v62, {s(80+f)}, v60\nv_mul_f32 v63, {s(80+f)}, v61")
        else: e(f"v_fmac_f32 v62, {s(80+f)}, v60\nv_fmac_f32 v63, {s(80+f)}, v61")
    e(f"v_lshrrev_b32 v42, 1, {v(L16)}\ns_lshl_b32 s42, s2, 11\ns_lshl_b32 s43, s3, 9\ns_add_u32 s42, s42, s43\ns_add_u32 s42, s42, {WS_Y}")
    e(f"buffer_store_dwordx2 v[62:63], v42, {s(SWS,4)}, s42 offen")
    e("K1_ffn_done:")

def k2():
    e = Em()
    ACC = 0
    WOV = 64
    TRA = 68
    L16 = 72
    XR = 76
    STT = 84
    G = 96
    XF = 112
    T = 128
    SWO, SXF, SOUT = 4, 8, 12
    e("s_cmp_ge_u32 s2, 256\ns_cbranch_scc1 K2_end")
    e("s_load_dwordx2 s[44:45], s[0:1], 0\ns_load_dwordx2 s[46:47], s[0:1], 32\ns_load_dwordx2 s[48:49], s[0:1], 80\ns_load_dwordx2 s[52:53], s[0:1], 96")
    e(f"v_and_b32 v1, 63, v0\nv_lshrrev_b32 v2, 6, v0\nv_lshlrev_b32 {v(L16)}, 4, v1\nv_readfirstlane_b32 s3, v2")
    e("s_and_b32 s30, s2, 7\ns_lshl_b32 s30, s30, 2\ns_lshr_b32 s42, s2, 6\ns_add_u32 s30, s30, s42\ns_lshr_b32 s31, s2, 3\ns_and_b32 s31, s31, 7")
    e("v_lshrrev_b32 v3, 3, v1\nv_lshlrev_b32 v3, 10, v3\nv_lshrrev_b32 v4, 4, v1\nv_lshlrev_b32 v5, 1, v4\nv_and_b32 v6, 7, v1\nv_xor_b32 v5, v5, v6\nv_lshlrev_b32 v5, 4, v5")
    e(f"v_add_u32 {v(WOV)}, v3, v5")
    for i in range(1, 4): e(f"v_add_u32 {v(WOV+i)}, {7168*i}, {v(WOV)}")
    e("v_bfe_u32 v5, v1, 2, 4\nv_lshlrev_b32 v6, 7, v5\nv_bfe_u32 v5, v5, 1, 2\nv_lshlrev_b32 v5, 1, v5\nv_bfe_u32 v7, v1, 1, 1\nv_or_b32 v5, v5, v7\nv_lshlrev_b32 v5, 4, v5")
    e(f"v_add_u32 v6, v6, v5\nv_and_b32 v7, 1, v1\nv_lshlrev_b32 v7, 3, v7\nv_add_u32 v6, v6, v7\nv_lshlrev_b32 v7, 15, v2\nv_add_u32 {v(TRA)}, v6, v7")
    for k in range(1, 4): e(f"v_xor_b32 {v(TRA+k)}, {k << 5}, {v(TRA)}")
    e("s_waitcnt lgkmcnt(0)")
    e(f"s_lshl_b32 s42, s31, 7\ns_add_u32 {s(SWO)}, s46, s42\ns_addc_u32 {s(SWO+1)}, s47, 0\ns_sub_u32 {s(SWO+2)}, {4096*1024}, s42\ns_mov_b32 {s(SWO+3)}, 0x20000")
    srd(e, SXF, 44, 45, 2097152); srd(e, SOUT, 48, 49, 2097152); srd(e, SWS, 52, 53, WS_SIZE)
    e("s_lshl_b32 s32, s3, 20")
    e("s_lshl_b32 s33, s30, 19\ns_lshl_b32 s42, s3, 17\ns_add_u32 s33, s33, s42")
    e("s_lshl_b32 s34, s3, 15")
    NBR = 5
    def issue(p):
        it = []
        for h in range(2):
            kp = 2 * p + h
            it.append(('S', f"s_add_u32 m0, s34, {(kp & 7) * 4096}"))
            for i in range(4): it.append(('D', dma(WOV + i, SWO, 's32', 1024 * i, f"p{p}")))
            it.append(('S', "s_add_u32 s32, s32, 32768"))
            for i in range(4):
                it.append(('D', f"buffer_load_dwordx4 {a(64 + (p % NBR)*32 + 16*h + 4*i, 4)}, {v(L16)}, {s(SWS,4)}, s33 offen offset:{1024*i} @@p{p}"))
            it.append(('S', "s_add_u32 s33, s33, 4096"))
        return it
    def reads(p):
        L = []
        for h in range(2):
            for nb in range(4):
                for jh in range(2):
                    L.append(f"ds_read_b64_tr_b16 {a((p & 1)*32 + 16*h + 4*nb + 2*jh, 2)}, {v(TRA+nb)} offset:{((2*p+h) & 7)*4096 + jh*2048}")
        return L
    def mf(p):
        M = []
        for nb in range(4):
            for i in range(4):
                d = v(ACC + 4 * (4 * nb + i), 4)
                for h in range(2):
                    c = '0' if (p == 0 and h == 0) else d
                    M.append(f"{MF} {d}, {a((p & 1)*32 + 16*h + 4*nb, 4)}, {a(64 + (p % NBR)*32 + 16*h + 4*i, 4)}, {c}")
        return M
    for p in range(3):
        for k, t in issue(p): e(t)
    e("v_lshrrev_b32 v3, 2, v1\nv_lshlrev_b32 v4, 10, v3\nv_and_b32 v5, 3, v1\nv_lshlrev_b32 v5, 5, v5\nv_add_u32 v74, v4, v5\nv_lshlrev_b32 v75, 3, v3")
    e("s_lshl_b32 s35, s30, 2\ns_add_u32 s35, s35, s3\ns_lshl_b32 s35, s35, 4")
    e("s_lshl_b32 s36, s35, 10\ns_lshl_b32 s42, s31, 7\ns_add_u32 s36, s36, s42")
    e(f"s_lshl_b32 s37, s35, 3\ns_add_u32 s37, s37, {WS_ST}")
    e(f"buffer_load_dwordx4 {v(XR,4)}, v74, {s(SXF,4)}, s36 offen @@ex\nbuffer_load_dwordx4 {v(XR+4,4)}, v74, {s(SXF,4)}, s36 offen offset:16 @@ex")
    e(f"buffer_load_dwordx2 {v(STT,2)}, v75, {s(SWS,4)}, s37 offen @@ex")
    find_tstar(e, T, 54, L16)
    e("s_and_b32 s55, s54, 2047\ns_sub_u32 s55, 2047, s55")
    for j in range(8): unpack(e, XF + 2 * j, XR + j)
    for j in range(16): e(f"v_sub_f32 {v(G+j)}, {v(XF+j)}, {v(STT)}")
    for j in range(8): bfr2(e, G + 2 * j, G + 2 * j + 1)
    for j in range(16): e(f"v_mul_f32 {v(G+j)}, {v(G+j)}, {v(STT+1)}")
    for j in range(8): bfr2(e, G + 2 * j, G + 2 * j + 1)
    e("s_sub_u32 s42, s55, s35\ns_cmp_lt_u32 s42, 16\ns_cbranch_scc0 K2_noy")
    e(f"v_lshlrev_b32 v4, 11, v3\nv_lshlrev_b32 v5, 1, v5\nv_add_u32 v4, v4, v5")
    e(f"s_lshl_b32 s43, s31, 8\ns_add_u32 s43, s43, {WS_Y}")
    e(f"s_mov_b32 s58, {WS_Y + NFFN*2048}\ns_mov_b32 s56, s52\ns_mov_b32 s57, s53\ns_mov_b32 s59, 0x20000")
    for j in range(16): e(f"v_mov_b32 {v(T+j)}, 0")
    for i in range(11):
        for k in range(4): e(f"buffer_load_dwordx4 {v(T+16+4*k,4)}, v4, s[56:59], s43 offen offset:{16*k}")
        e("s_add_u32 s43, s43, 32768\ns_waitcnt vmcnt(0)")
        for j in range(16): e(f"v_add_f32 {v(T+j)}, {v(T+j)}, {v(T+16+j)}")
    for sh in (4, 8):
        for j in range(16): e(f"v_add_f32_dpp {v(T+j)}, {v(T+j)}, {v(T+j)} row_ror:{sh} row_mask:0xf bank_mask:0xf")
    for sw in ('v_permlane16_swap_b32', 'v_permlane32_swap_b32'):
        for j in range(16): e(f"v_mov_b32 {v(T+16+j)}, {v(T+j)}")
        for j in range(16): e(f"{sw} {v(T+16+j)}, {v(T+j)}")
        for j in range(16): e(f"v_add_f32 {v(T+j)}, {v(T+j)}, {v(T+16+j)}")
    for j in range(8): bfr2(e, T + 2 * j, T + 2 * j + 1)
    e("s_and_b32 s43, s54, 0xffff0000\ns_xor_b32 s60, s43, 0x80000000\ns_not_b32 s61, s43\ns_and_b32 s61, s61, 0xffff0000\ns_bitcmp1_b32 s43, 31\ns_cselect_b32 s43, s60, s61")
    e(f"v_mov_b32 v6, s43\nv_mul_f32 v6, {fh(-LOG2E)}, v6\nv_exp_f32 v6, v6\nv_add_f32 v6, 1.0, v6\nv_rcp_f32 v6, v6")
    bfr1(e, 6)
    for j in range(16): e(f"v_mul_f32 {v(T+j)}, {v(T+j)}, v6")
    for j in range(8): bfr2(e, T + 2 * j, T + 2 * j + 1)
    for j in range(16): e(f"v_add_f32 {v(T+j)}, {v(T+j)}, {v(G+j)}")
    for j in range(8): bfr2(e, T + 2 * j, T + 2 * j + 1)
    e("v_cmp_eq_u32 vcc, s42, v3")
    for j in range(16): e(f"v_cndmask_b32 {v(G+j)}, {v(G+j)}, {v(T+j)}, vcc")
    e("K2_noy:")
    for j in range(16): silu(e, G + j, T + j)
    for j in range(8): bfr2(e, G + 2 * j, G + 2 * j + 1)
    e("s_waitcnt vmcnt(0)")
    for t in reads(0): e(t)
    for p in range(16):
        if p + 1 < 16: e(f"WAITVM p{p+1} lgkm")
        else: e("s_waitcnt lgkmcnt(0)")
        dq = issue(p + 3) if p + 3 < 16 else []
        g = pack_gaps(32, dq, reads(p + 1) if p + 1 < 16 else [])
        e.weave(mf(p), g)
    e("s_barrier")
    e("v_and_b32 v3, 15, v1\nv_lshrrev_b32 v4, 4, v1\nv_lshlrev_b32 v5, 8, v3\nv_xor_b32 v6, v4, v3\nv_lshlrev_b32 v6, 4, v6\nv_add_u32 v5, v5, v6" if False else "s_nop 0")
    e(f"v_lshrrev_b32 v77, 4, {v(L16)}")
    e("v_and_b32 v78, 15, v77\nv_lshrrev_b32 v79, 4, v77\nv_lshlrev_b32 v80, 8, v78\nv_xor_b32 v81, v79, v78\nv_lshlrev_b32 v81, 4, v81\nv_add_u32 v80, v80, v81")
    e("s_lshl_b32 s42, s3, 14\nv_add_u32 v80, s42, v80")
    for nb in range(4):
        if nb: e(f"v_xor_b32 v81, {nb << 6}, v80")
        for i in range(4):
            e(f"ds_write_b128 {v(81 if nb else 80)}, {v(ACC + 4*(4*nb+i), 4)} offset:{i*4096}")
    e("v_lshrrev_b32 v78, 2, v77\nv_lshlrev_b32 v80, 8, v78\nv_and_b32 v79, 3, v77\nv_lshlrev_b32 v79, 2, v79\nv_xor_b32 v79, v79, v78\nv_lshlrev_b32 v79, 4, v79\nv_add_u32 v80, v80, v79")
    e("s_lshl_b32 s42, s3, 12\nv_add_u32 v80, s42, v80")
    for i in range(1, 4): e(f"v_xor_b32 {v(80+i)}, {i << 4}, v80")
    e("s_waitcnt lgkmcnt(0)\ns_barrier")
    for sw_ in range(4):
        for i in range(4): e(f"ds_read_b128 {v(16*sw_ + 4*i, 4)}, {v(80+i)} offset:{sw_*16384}")
        if sw_ == 2: e("s_waitcnt lgkmcnt(4)")
    for j in range(0, 16, 2): e(f"v_pk_add_f32 {v(j,2)}, {v(j,2)}, {v(16+j,2)}")
    e("s_waitcnt lgkmcnt(0)")
    for j in range(0, 16, 2): e(f"v_pk_add_f32 {v(32+j,2)}, {v(32+j,2)}, {v(48+j,2)}")
    for j in range(0, 16, 2): e(f"v_pk_add_f32 {v(j,2)}, {v(j,2)}, {v(32+j,2)}")
    for j in range(8): bfr2(e, 2 * j, 2 * j + 1)
    for j in range(0, 16, 2): e(f"v_pk_mul_f32 {v(j,2)}, {v(j,2)}, {v(G+j,2)}")
    for j in range(8): bfr2(e, 2 * j, 2 * j + 1)
    for j in range(0, 16, 2): e(f"v_pk_add_f32 {v(j,2)}, {v(j,2)}, {v(XF+j,2)}")
    for j in range(8): e(f"v_cvt_pk_bf16_f32 {v(16+j)}, {v(2*j)}, {v(2*j+1)}")
    e(f"buffer_store_dwordx4 v[16:19], v74, {s(SOUT,4)}, s36 offen\nbuffer_store_dwordx4 v[20:23], v74, {s(SOUT,4)}, s36 offen offset:16")
    e("s_waitcnt vmcnt(0)\nK2_end:\ns_endpgm")
    return e.L

HDR = open('recurrent_scan__mha_block_cached__moe_arch_mod__prompt.s.ref').read().split('; Override launch')[0]

def desc(name, vg, acc):
    return f""".p2align 6
.amdhsa_kernel {name}
  .amdhsa_next_free_vgpr {vg}
  .amdhsa_next_free_sgpr 102
  .amdhsa_accum_offset {acc}
  .amdhsa_group_segment_fixed_size 0
  .amdhsa_kernarg_size 104
  .amdhsa_user_sgpr_count 2
  .amdhsa_user_sgpr_kernarg_segment_ptr 1
  .amdhsa_system_sgpr_workgroup_id_x 1
.end_amdhsa_kernel"""

def main():
    ks = [('stats_kernel', k0(), 64, 64, 0), ('attn_kernel', k1(), 512, 256, 163840), ('oproj_kernel', k2(), 512, 256, 131072)]
    out = [HDR.rstrip()]
    for n, L, vg, acc, lds in ks: out.append(f"; @launch kernel={n} grid=(256,1,1) block=(256,1,1) lds={lds}")
    out.append('.amdgcn_target "amdgcn-amd-amdhsa--gfx950"\n.text')
    for n, L, vg, acc, lds in ks:
        rep = []
        L2 = autonop(L, rep)
        for k, why in rep:
            if OPT.get('shownop'): print('nop', n, k, why, file=sys.stderr)
        for p in check(L2, n): print(p, file=sys.stderr)
        out.append(f".globl {n}\n.p2align 8\n.type {n},@function\n{n}:")
        out += ['    ' + x if not x.endswith(':') else x for x in L2]
    out.append('.section .rodata,"a"')
    for n, L, vg, acc, lds in ks: out.append(desc(n, vg, acc))
    open(sys.argv[1], 'w').write('\n'.join(out) + '\n')

main()
```

```python
import sys, struct, math
sys.path.insert(0, 'dev')
from asmlib import *

OPT = dict(msum=(1, 3), eB=36, lthr=2.0**60, touch=1)
for arg in sys.argv[2:]:
    k, val = arg.split('=')
    OPT[k] = eval(val)

def f2u(x): return struct.unpack('<I', struct.pack('<f', x))[0]
def fh(x): return f"0x{f2u(x):08x}"
MF = 'v_mfma_f32_16x16x32_bf16'
LOG2E = 1.4426950408889634
QSCALE = LOG2E / math.sqrt(128.0)
KNAME = 'recurrent_scan__mha_block_cached__moe_arch_mod__prompt_kernel'

WS_O = 0
WS_ST = 16 << 20
WS_KEY = WS_ST + 16384
WS_FLAG = WS_KEY + 2048
WS_EPOCH = WS_FLAG + 1024
WS_Y = WS_ST + 32768
WS_DBG = 32 << 20
WS_SIZE = 268435456
NFFN = 172
FAR = 0x40000000
SPIN = 20000

S0, S1, QF, NEGM, LACC, ONES, VA, KA, DKV, LV = 0, 64, 128, 192, 208, 216, 220, 228, 232, 236
WOV, OUTV, STV, TRB, KEYR, L16, DUM, TCH, Z0 = 240, 241, 242, 243, 244, 252, 253, 254, 255
AO, AK, AV = 0, 128, 192
XVO, WVO, XRA, CSA, CSW, CSACC, RAW, STT = 128, 136, 140, 144, 146, 148, 156, 168
STQ = 184
def CSV(db): return 192 + 4 * db if db < 6 else 176 + 4 * (db - 6)
SX, SWQ, SK, SV_, SWS = 4, 8, 12, 16, 20
SWO = 8
MK, MV = 24, 28
OFFK, OFFV, CNT, SH, SQB, XSO, WSO = 32, 33, 34, 35, 36, 37, 38
MX = 39
T0, T1 = 42, 43
PX, PK, PV_, PWQ, PWS = 44, 46, 48, 50, 52
SKEY, STS, SFS = 54, 55, 58
PWO, PWR, PG, PU, PD, POUT = 56, 60, 62, 64, 66, 68
TAG, EPO, SRB, SCB, MODE, SU = 70, 71, 72, 73, 74, 75
RA, RB, RC = 76, 80, 84
XBASE = [0, 32768, 131072]
def xslot(st): return {2: 0, 5: 0, 0: 1, 3: 1, 6: 1, 1: 2, 4: 2, 7: 2}[st]
def wslot(st): return 1 + st % 3
L_CS = 131072
L_FAIL = L_CS + 512
L_YW = L_CS + 576
L_F = L_CS + 2048
L_GS = L_F + 28672
L_KEY = 65536

NST = [0]
STREG = list(range(88, 100)) + [59, 0, 1]
def stamp(e, real=False):
    if not OPT.get('stamp'): return
    i = NST[0]; NST[0] += 1
    e(f"{'s_memrealtime' if real else 's_memtime'} s[100:101]\ns_waitcnt lgkmcnt(0)\ns_mov_b32 {s(STREG[i])}, s100")

def stamp_out(e):
    if not OPT.get('stamp'): return
    stamp(e); stamp(e, True)
    e("v_mov_b32 v1, 0")
    for i in range(NST[0]): e(f"v_writelane_b32 v1, {s(STREG[i])}, {i}")
    e("v_mbcnt_lo_u32_b32 v2, -1, 0\nv_lshlrev_b32 v2, 2, v2\ns_mov_b64 exec, 0xffff")
    e(f"s_lshl_b32 s100, s2, 2\ns_add_u32 s100, s100, s3\ns_lshl_b32 s100, s100, 6\ns_add_u32 s100, s100, {WS_DBG + (48 << 20)}")
    e(f"buffer_store_dword v1, v2, {s(SWS,4)}, s100 offen\ns_waitcnt vmcnt(0)")

def srd(e, d, p, size, off=None):
    if off is None: e(f"s_mov_b32 {s(d)}, {s(p)}\ns_mov_b32 {s(d+1)}, {s(p+1)}")
    else: e(f"s_add_u32 {s(d)}, {s(p)}, {off}\ns_addc_u32 {s(d+1)}, {s(p+1)}, 0")
    if size is not None: e(f"s_mov_b32 {s(d+2)}, {size}")
    e(f"s_mov_b32 {s(d+3)}, 0x20000")

def allreduce(e, regs, tmps, op='v_add_f32', dpp=(8, 4, 2, 1)):
    for sh in dpp:
        for r in regs: e(f"{op}_dpp {v(r)}, {v(r)}, {v(r)} row_ror:{sh} row_mask:0xf bank_mask:0xf")
    for sw in ('v_permlane16_swap_b32', 'v_permlane32_swap_b32'):
        for r, t in zip(regs, tmps): e(f"v_mov_b32 {v(t)}, {v(r)}")
        for r, t in zip(regs, tmps): e(f"{sw} {v(t)}, {v(r)}")
        for r, t in zip(regs, tmps): e(f"{op} {v(r)}, {v(r)}, {v(t)}")

def unpack(e, dst, src):
    e(f"v_lshlrev_b32 {v(dst)}, 16, {v(src)}\nv_and_b32 {v(dst+1)}, 0xffff0000, {v(src)}")
def bfr1(e, r):
    e(f"v_cvt_pk_bf16_f32 {v(r)}, {v(r)}, {v(r)}\nv_lshlrev_b32 {v(r)}, 16, {v(r)}")
def bfr2(e, r0, r1):
    e(f"v_cvt_pk_bf16_f32 {v(r0)}, {v(r0)}, {v(r1)}\nv_and_b32 {v(r1)}, 0xffff0000, {v(r0)}\nv_lshlrev_b32 {v(r0)}, 16, {v(r0)}")
def bfrn(e, base, n):
    for j in range(0, n, 2): e(f"v_cvt_pk_bf16_f32 {v(base+j)}, {v(base+j)}, {v(base+j+1)}")
    for j in range(0, n, 2): e(f"v_and_b32 {v(base+j+1)}, 0xffff0000, {v(base+j)}\nv_lshlrev_b32 {v(base+j)}, 16, {v(base+j)}")
def silun(e, base, tmp, n):
    for j in range(n): e(f"v_mul_f32 {v(tmp+j)}, {fh(-LOG2E)}, {v(base+j)}")
    for j in range(n): e(f"v_exp_f32 {v(tmp+j)}, {v(tmp+j)}")
    for j in range(n): e(f"v_add_f32 {v(tmp+j)}, 1.0, {v(tmp+j)}")
    for j in range(n): e(f"v_rcp_f32 {v(tmp+j)}, {v(tmp+j)}")
    for j in range(n): e(f"v_mul_f32 {v(base+j)}, {v(base+j)}, {v(tmp+j)}")

class Rec(list):
    def __call__(self, txt):
        for t in txt.split('\n'):
            if t.strip(): self.append(t.strip())

SX_ = [STT + 8, STT + 16]; SW_ = STT + 24; SD_ = [STT + 32, STT + 36]
SM_ = [STT + 4, STT + 5]; SRS = [STT + 6, STT + 7]; SA_ = [STT + 40, STT + 41]; STM = [STT + 42, STT + 43]
def stats1(e):
    X, D, M, RS, A, TM = SX_, SD_, SM_, SRS, SA_, STM
    for j in range(4):
        for i in range(2): unpack(e, X[i] + 2 * j, RAW + 4 * i + j)
    for j in range(4):
        for i in range(2): e(f"v_add_f32 {v(D[i]+j)}, {v(X[i]+2*j)}, {v(X[i]+2*j+1)}")
    for i in range(2): e(f"v_add_f32 {v(D[i])}, {v(D[i])}, {v(D[i]+1)}\nv_add_f32 {v(D[i]+2)}, {v(D[i]+2)}, {v(D[i]+3)}")
    for i in range(2): e(f"v_add_f32 {v(A[i])}, {v(D[i])}, {v(D[i]+2)}")
    allreduce(e, A, TM)
    for i in range(2): e(f"v_mul_f32 {v(M[i])}, {fh(1/512)}, {v(A[i])}")
    for j in range(8):
        for i in range(2): e(f"v_sub_f32 {v(D[i] + (j & 1))}, {v(X[i]+j)}, {v(M[i])}")
        for i in range(2):
            d = v(D[i] + (j & 1))
            e(f"v_mul_f32 {v(A[i])}, {d}, {d}" if j == 0 else f"v_fmac_f32 {v(A[i])}, {d}, {d}")
    allreduce(e, A, TM)
    for i in range(2): e(f"v_mul_f32 {v(A[i])}, {fh(1/512)}, {v(A[i])}")
    for i in range(2): bfr2(e, A[i], M[i])
    for i in range(2): e(f"v_add_f32 {v(A[i])}, {fh(1e-5)}, {v(A[i])}")
    bfr2(e, A[0], A[1])
    for i in range(2): e(f"v_sqrt_f32 {v(A[i])}, {v(A[i])}")
    e(f"v_mov_b32 {v(STT+1)}, {s(TAG)}\nv_mov_b32 {v(STT+3)}, {s(TAG)}")
    bfr2(e, A[0], A[1])
    for i in range(2): e(f"v_lshrrev_b32 {v(TM[i])}, 16, {v(A[i])}")
    for i in range(2): e(f"v_or_b32 {v(STT+2*i)}, {v(TM[i])}, {v(M[i])}")
    for i in range(2): e(f"v_rcp_f32 {v(RS[i])}, {v(A[i])}")

def stats2(e, srow):
    X, W, M, RS, A, TM = SX_, SW_, SM_, SRS, SA_, STM
    for j in range(4): unpack(e, W + 2 * j, RAW + 8 + j)
    for j in range(8):
        for i in range(2): e(f"v_sub_f32 {v(X[i]+j)}, {v(X[i]+j)}, {v(M[i])}")
    for i in range(2): bfrn(e, X[i], 8)
    for j in range(8):
        for i in range(2): e(f"v_mul_f32 {v(X[i]+j)}, {v(X[i]+j)}, {v(RS[i])}")
    for i in range(2): bfrn(e, X[i], 8)
    for j in range(8):
        for i in range(2):
            e(f"v_mul_f32 {v(A[i])}, {v(X[i]+j)}, {v(W+j)}" if j == 0 else f"v_fmac_f32 {v(A[i])}, {v(X[i]+j)}, {v(W+j)}")
    allreduce(e, A, TM)
    bfr2(e, A[0], A[1])
    for i in range(2): e(f"v_ashrrev_i32 {v(TM[i])}, 31, {v(A[i])}")
    for i in range(2): e(f"v_or_b32 {v(TM[i])}, 0x80000000, {v(TM[i])}")
    for i in range(2): e(f"v_xor_b32 {v(A[i])}, {v(A[i])}, {v(TM[i])}")
    for i in range(2): e(f"v_and_b32 {v(A[i])}, 0xffff0000, {v(A[i])}")
    for i in range(2): e(f"v_mov_b32 {v(TM[i])}, {s(srow)}")
    for i in range(2): e(f"v_sub_u32 {v(TM[i])}, {2047 - i}, {v(TM[i])}")
    for i in range(2): e(f"v_or_b32 {v(A[i])}, {v(A[i])}, {v(TM[i])}")
    e(f"v_max_u32 {v(A[0])}, {v(A[0])}, {v(A[1])}")

def dma(voff, srd_, soff, ioff, tag):
    return f"buffer_load_dwordx4 {v(voff)}, {s(srd_,4)}, {soff} offen offset:{ioff} lds @@{tag}"
def qbuf(st): return (0, 64, 96) if st & 1 else (128, 192, 224)

def q_issue(st):
    it = [('S', f"s_mov_b32 {s(WSO)}, {st*64*8192}"), ('S', f"s_mov_b32 m0, {s(MV + wslot(st))}")]
    for i in range(4): it.append(('D', dma(WVO + i, SWQ, s(WSO), 1024 * i, f"q{st}")))
    it.append(('S', f"s_mov_b32 {s(XSO)}, {st*128}"))
    it.append(('S', f"s_mov_b32 m0, {s(MX + xslot(st))}"))
    for i in range(4): it.append(('D', dma(XVO + i, SX, s(XSO), 1024 * i, f"q{st}")))
    it.append(('S', f"s_add_u32 m0, {s(MX + xslot(st))}, 4096"))
    for i in range(4, 8): it.append(('D', dma(XVO + i, SX, s(XSO), 1024 * (i & 3), f"q{st}")))
    return it

def kv_issue(which, j, running=False):
    isk = which == 'K'; off = OFFK if isk else OFFV
    it = []
    if not running: it.append(('S', f"s_mov_b32 {s(off)}, {j*16384}"))
    it.append(('S', f"s_mov_b32 m0, {s((MK if isk else MV) + (j & 3))}"))
    for i in range(4):
        it.append(('D', dma(DKV + (0 if isk else 2) + (i >> 1), SK if isk else SV_, s(off), 1024 * i, f"{which}{j}")))
    if running: it.append(('S', f"s_add_u32 {s(off)}, {s(off)}, 16384"))
    return it

def wo_m0(n): return (MK + (n & 3)) if (n & 7) < 4 else (MV + (n & 3))
def wo_lds(n): return ((n & 3) * 16384, (n & 7) >= 4)
def wo_issue(n, so):
    it = [('S', f"s_mov_b32 m0, {s(wo_m0(n))}")]
    for i in range(4):
        if n >= 8:
            it.append(('D', dma((WOV, TRB, DUM, TCH)[i], SWO, s(so), 1024 * i, f"w{n}")))
            if i == 3: it.append(('S', f"s_add_u32 {s(so)}, {s(so)}, 32768"))
            continue
        it.append(('D', dma(WOV, SWO, s(so), 1024 * i, f"w{n}")))
        it.append(('S', f"s_add_u32 {s(so)}, {s(so)}, {7168 if i < 3 else 32768 - 3*7168}"))
    return it
TRLO, TRHI = 220, 216
def aloc(n):
    n &= 15
    return AV + 16 * n if n < 4 else AK + 16 * (n - 4) if n < 8 else 16 * (n - 8)
def wo_reads(n):
    off, hi = wo_lds(n)
    return [f"ds_read_b64_tr_b16 {a(aloc(n) + 4*nb + 2*jh, 2)}, {v((TRHI if hi else TRLO) + nb)} offset:{off + jh*2048}" for nb in range(4) for jh in range(2)]

def q_reads(st):
    W, X, C = qbuf(st)
    L = []
    xo = XBASE[xslot(st)]; xr = XRA
    if xo >= 65536: xo -= 131072; xr += 2
    wo = wslot(st) * 16384
    for ks in range(2):
        for d2 in range(2):
            for jh in range(2):
                L.append(f"ds_read_b64_tr_b16 {a(C + 8*ks + 4*d2 + 2*jh, 2)}, {v(CSA + d2)} offset:{wo + ks*8192 + jh*1024}")
    for qb in range(4):
        for ks in range(2):
            L.append(f"ds_read_b128 {a(X + 16*ks + 4*qb, 4)}, {v(xr + ks)} offset:{xo + qb*2048}")
    for db in range(8):
        for ks in range(2):
            for jh in range(2):
                L.append(f"ds_read_b64_tr_b16 {a(W + 32*ks + 4*db + 2*jh, 2)}, {v(VA + db)} offset:{wo + ks*8192 + jh*1024}")
    return L

def qacc(db, qb): return 4 * (8 * qb + db)
def q_mfmas(st):
    W, X, C = qbuf(st)
    M = []
    for d2 in range(2):
        for ks in range(2):
            c = '0' if (st == 0 and ks == 0) else v(CSACC + 4 * d2, 4)
            M.append(f"{MF} {v(CSACC + 4*d2, 4)}, {a(C + 8*ks + 4*d2, 4)}, {v(ONES, 4)}, {c}")
    for db in range(8):
        for qb in range(4):
            for ks in range(2):
                d = v(qacc(db, qb), 4)
                c = '0' if (st == 0 and ks == 0) else d
                M.append(f"{MF} {d}, {a(W + 32*ks + 4*db, 4)}, {a(X + 16*ks + 4*qb, 4)}, {c}")
    return M

def pack_gaps(n, dq, lq, vq=None, start=0, lend=None, fixed=None):
    gaps = dict(fixed or {})
    dq = list(dq); lq = list(lq); vq = vq if vq is not None else []
    lend = n if lend is None else lend
    turn = 0
    for p in range(start, n):
        if p in gaps: continue
        lurg = lq and (lend - p) * 2 <= len(lq) + 1
        if dq and dq[0][0] == 'S' and not (lurg and len(lq) > 1 and False):
            if lq: g = [lq.pop(0), dq.pop(0)[1]]
            else:
                g = [dq.pop(0)[1]]
                if dq and dq[0][0] == 'S': g.append(dq.pop(0)[1])
                elif vq:
                    g.append(vq.pop(0))
                    if vq: g.append(vq.pop(0))
            gaps[p] = g; continue
        order = [(turn + k) % 3 for k in range(3)]
        if lurg: order = [1, 0, 2]
        for o in order:
            if o == 0 and dq:
                gaps[p] = [dq.pop(0)[1]]; break
            if o == 1 and lq:
                gaps[p] = [lq.pop(0)] + ([lq.pop(0)] if lq else []); break
            if o == 2 and vq:
                gaps[p] = [vq.pop(0)] + ([vq.pop(0)] if vq else []); break
        else: continue
        turn = (o + 1) % 3
    assert not dq and not lq, (len(dq), len(lq))
    return gaps

def sgrp(buf, qb, ks): return buf + (2 * qb + ks) * 8
def k_reads(j, dst=AK):
    return [f"ds_read_b128 {a(dst + 16*(2*ks+jh) + 4*ksd, 4)}, {v(KA + ksd)} offset:{(j & 3)*16384 + ks*8192 + jh*1024}"
            for ks in range(2) for jh in range(2) for ksd in range(4)]
def v_reads(j, dst=AV):
    return [f"ds_read_b64_tr_b16 {a(dst + 32*ks + 4*db + 2*jh, 2)}, {v(VA + db)} offset:{(j & 3)*16384 + ks*8192 + jh*1024}"
            for db in range(8) for ks in range(2) for jh in range(2)]
def qk_chain(buf, qb, kb, src=AK, c0=None):
    d = v(sgrp(buf, qb, kb >> 1) + 4 * (kb & 1), 4)
    M = []
    for ksd in range(4):
        c = (c0 if c0 is not None else v(NEGM + 4 * qb, 4)) if ksd == 0 else d
        M.append(f"{MF} {d}, {a(src + 16*kb + 4*ksd, 4)}, {v(QF + 16*qb + 4*ksd, 4)}, {c}")
    return M
def qk_mfmas(j, src=AK):
    buf = S1 if j & 1 else S0
    return [m for qb in range(4) for kb in range(4) for m in qk_chain(buf, qb, kb, src)]
def lacc(qb): return LACC + 4 * OPT['msum'].index(qb)
def pv_mfmas(j, first=False, src=AV, ksmajor=()):
    buf = S1 if j & 1 else S0
    M = []; st = {}
    for qb in range(4):
        order = [(db, ks) for ks in range(2) for db in range(8)] if qb in ksmajor else [(db, ks) for db in range(8) for ks in range(2)]
        for db, ks in order:
            d = a(AO + 4 * (8 * qb + db), 4)
            c = '0' if (first and ks == 0) else d
            st.setdefault((qb, ks), len(M))
            M.append(f"{MF} {d}, {a(src + 32*ks + 4*db, 4)}, {v(sgrp(buf, qb, ks), 4)}, {c}")
        if qb in OPT['msum']:
            d = v(lacc(qb), 4)
            for ks in range(2):
                c = '0' if (first and ks == 0) else d
                M.append(f"{MF} {d}, {v(ONES, 4)}, {v(sgrp(buf, qb, ks), 4)}, {c}")
    return M, st

class SM:
    def __init__(self, j):
        buf = S1 if j & 1 else S0
        E = []; V = []
        for qb in range(4):
            for ks in range(2):
                b = sgrp(buf, qb, ks); e0 = len(E)
                for i in range(8): E.append(f"v_exp_f32 {v(b+i)}, {v(b+i)}")
                for p in range(4):
                    if qb not in OPT['msum']:
                        for i in (2 * p, 2 * p + 1):
                            V.append((e0 + i, f"v_add_f32 {v(LV+qb)}, {v(LV+qb)}, {v(b+i)}"))
                    V.append((e0 + 2 * p + 1, f"v_cvt_pk_bf16_f32 {v(b+p)}, {v(b+2*p)}, {v(b+2*p+1)}"))
        self.E, self.V, self.e, self.v = E, V, 0, 0
    def ready(self):
        n = 0
        while self.v + n < len(self.V) and self.V[self.v + n][0] < self.e: n += 1
        return n
    def popE(self): self.e += 1; return self.E[self.e - 1]
    def popV(self): self.v += 1; return self.V[self.v - 1][1]
    def remE(self): return len(self.E) - self.e
    def remV(self): return len(self.V) - self.v

def fill(n, sm, L, lfirst, llast, dpos=None, scal=None, futureL=0, elimit=None, eearly=None, finish=False):
    gaps = {}
    L = list(L); nL = len(L); dpos = dict(dpos or {}); scal = dict(scal or {})
    elimit = len(sm.E) if elimit is None else elimit
    for p in range(n):
        g = []
        done = nL - len(L)
        lav = bool(L) and p >= lfirst + (llast - lfirst) * done / max(1, nL - 1) - 1e-9
        urgent = bool(L) and ((llast - p + 1) * 2 <= len(L) + 1 or p >= llast)
        vr = sm.ready()
        eok = sm.e < elimit and (eearly is None or p >= eearly(sm.e))
        if p in dpos:
            assert p not in scal
            g = [dpos.pop(p)]
        elif p in scal:
            g = [scal.pop(p)]
            if eok: g.append(sm.popE())
            else:
                for _ in range(min(2, vr)): g.append(sm.popV())
        elif lav and vr >= 1: g = [L.pop(0), sm.popV()]
        elif urgent or (lav and not eok):
            g = [L.pop(0)]
            if L: g.append(L.pop(0))
        elif vr >= 2 and (sm.remV() - len(L) - futureL >= 2 or not eok): g = [sm.popV(), sm.popV()]
        elif eok: g = [sm.popE()]
        elif vr >= 1 and finish: g = [sm.popV()]
        if g: gaps[p] = g
    assert not L and not dpos and not scal, (len(L), dpos, scal)
    return gaps

def spread(items, first, last):
    nD = sum(1 for k, _ in items if k == 'D')
    dpos = {}; scal = {}
    step = (last - first) / max(1, nD - 1) if nD > 1 else 0
    k = 0; p = -1; pend = []
    for kind, t in items:
        if kind == 'S': pend.append(t); continue
        want = max(int(round(first + k * step)), p + 1 + len(pend))
        q = want - len(pend)
        for x in pend: scal[q] = x; q += 1
        pend = []
        dpos[want] = t; p = want; k += 1
    for x in pend: p += 1; scal[p] = x
    return dpos, scal

NB = 64 + 2 * len(OPT['msum'])

def show(tag, g, n):
    def ch(x):
        o = x.split()[0]
        return 'E' if 'exp' in o else 'L' if o.startswith('ds_') else 'D' if o.startswith('buffer') else 's' if o.startswith('s_') or o == 'WAITVM' else 'v'
    if OPT.get('show'): print(tag, ' '.join(''.join(ch(x) for x in g.get(i, [])) or '-' for i in range(n)), file=sys.stderr)

def phaseA(e, j, sm, last_wait):
    M = qk_mfmas(j + 1)
    g = fill(64, sm, v_reads(j), 0, 54, finish=True)
    assert sm.remE() == 0 and sm.remV() == 0, (sm.remE(), sm.remV())
    g[63] = g.get(63, []) + [last_wait, "s_barrier"]
    show(f'A{j}', g, 64)
    e.weave(M, g)

def phaseB(e, j, items, L=None, target=None, extra=None, endbar=False):
    M, st = pv_mfmas(j, j == 0)
    sm = SM(j + 1)
    dpos, scal = spread(items, 4, NB - 8)
    fut = 32
    if L is None: L = k_reads(j + 2)
    else: fut = 0
    scal[NB - 1] = "s_waitcnt lgkmcnt(0)"
    g = fill(NB, sm, L, 3, NB - 12, dpos, scal, futureL=fut, elimit=OPT['eB'])
    if endbar: g[NB - 1].insert(1, "s_barrier")
    if target is not None:
        while sm.e < target[0]: g[NB - 1].append(sm.popE())
        while sm.v < target[1]: g[NB - 1].append(sm.popV())
    for p, xs in (extra or {}).items(): g[p] = g.get(p, []) + xs
    show(f'B{j}', g, NB)
    e.weave(M, g)
    return sm

def spin_check(e, name, reload_, ncmp, cond_sgpr=None):
    def test(x):
        for k, r in enumerate(ncmp):
            x(f"v_cmp_ne_u32 {'vcc' if k == 0 else s(T0,2)}, {s(TAG)}, {v(r)}")
            if k: x(f"s_or_b64 vcc, vcc, {s(T0,2)}")
        if cond_sgpr is not None: x(f"s_and_b64 vcc, vcc, {s(cond_sgpr,2)}")
    test(e)
    e(f"s_cbranch_vccnz {name}_slow\n{name}_ok:")
    o = Rec()
    o(f"{name}_slow:\ns_mov_b32 {s(CNT)}, {SPIN}\n{name}_spin:\ns_sleep 2")
    for t in reload_: o(t.split('@@')[0])
    o("s_waitcnt vmcnt(0)")
    test(o)
    o(f"s_cbranch_vccz {name}_ok\ns_sub_u32 {s(CNT)}, {s(CNT)}, 1\ns_cmp_lg_u32 {s(CNT)}, 0\ns_cbranch_scc1 {name}_spin\ns_branch {name}_ok")
    OOL.extend(o)
OOL = []

def kernel():
    e = Em()
    e("s_cmp_ge_u32 s2, 256\ns_cbranch_scc1 L_end")
    e(f"s_load_dwordx4 s[44:47], s[0:1], 0\ns_load_dwordx4 s[48:51], s[0:1], 16\ns_load_dwordx2 s[52:53], s[0:1], 96")
    e(f"s_load_dwordx4 s[60:63], s[0:1], 48\ns_load_dwordx2 s[56:57], s[0:1], 32\ns_load_dwordx4 s[64:67], s[0:1], 64\ns_load_dwordx2 s[68:69], s[0:1], 80")
    stamp(e, True); stamp(e)
    e(f"v_lshrrev_b32 v2, 6, v0\ns_mov_b32 {s(MODE)}, 0\nv_readfirstlane_b32 s3, v2")
    e(f"s_and_b32 {s(T0)}, s2, 7\ns_lshl_b32 {s(SH)}, {s(T0)}, 2\ns_lshr_b32 {s(T1)}, s2, 3\ns_and_b32 {s(SCB)}, {s(T1)}, 7\ns_mul_i32 {s(SU)}, {s(T0)}, 22\ns_add_u32 {s(SU)}, {s(SU)}, {s(T1)}")
    e(f"s_cmp_lt_u32 {s(T1)}, 22\ns_cselect_b32 {s(SU)}, {s(SU)}, 255")
    e(f"s_lshr_b32 {s(SQB)}, s2, 6\ns_add_u32 {s(SRB)}, {s(SH)}, {s(SQB)}\ns_and_b32 {s(T1)}, {s(T1)}, 3\ns_add_u32 {s(SH)}, {s(SH)}, {s(T1)}\ns_lshr_b32 {s(SQB)}, s2, 5")
    e(f"s_mov_b32 {s(T0)}, {WS_EPOCH}\ns_waitcnt lgkmcnt(0)")
    e(f"s_load_dword {s(EPO)}, s[52:53], {s(T0)}")
    e("s_branch L_start")
    e("L_restart:")
    e("v_mbcnt_lo_u32_b32 v0, -1, 0\nv_mbcnt_hi_u32_b32 v0, -1, v0\nv_mov_b32 v2, s3")
    e("L_start:")
    e("v_and_b32 v1, 63, v0\nv_and_b32 v3, 15, v1\nv_lshrrev_b32 v4, 4, v1")
    e(f"v_lshlrev_b32 {v(L16)}, 4, v1")
    e(f"s_lshl_b32 {s(T0)}, {s(SQB)}, 18"); srd(e, SX, PX, 262144, s(T0))
    e(f"s_lshl_b32 {s(T0)}, {s(SH)}, 8\ns_sub_u32 {s(SWQ+2)}, {512*8192}, {s(T0)}"); srd(e, SWQ, PWQ, None, s(T0))
    srd(e, RA, PWR, 1024)
    e(f"s_lshl_b32 {s(T0)}, {s(SH)}, 3\ns_lshl_b32 {s(T1)}, s3, 1\ns_add_u32 {s(STS)}, {s(T0)}, {s(T1)}\ns_lshl_b32 {s(T0)}, {s(STS)}, 10")
    e(f"buffer_load_dwordx4 {v(RAW,4)}, {v(L16)}, {s(SX,4)}, {s(T0)} offen @@rows\nbuffer_load_dwordx4 {v(RAW+4,4)}, {v(L16)}, {s(SX,4)}, {s(T0)} offen offset:1024 @@rows")
    e("v_lshlrev_b32 v5, 1, v4\nv_xor_b32 v5, v5, v3\nv_lshlrev_b32 v5, 4, v5")
    e("v_lshlrev_b32 v6, 4, v2\nv_add_u32 v6, v6, v4")
    e(f"v_lshlrev_b32 v7, 13, v6\nv_add_u32 {v(WVO)}, v7, v5")
    e(f"v_add_u32 {v(WVO+1)}, {4*8192-1024}, {v(WVO)}")
    e(f"v_xor_b32 v8, 128, {v(WVO)}\nv_add_u32 {v(WVO+2)}, {8*8192-2048}, v8\nv_add_u32 {v(WVO+3)}, {12*8192-3072}, v8")
    e("v_lshrrev_b32 v8, 3, v1\nv_lshlrev_b32 v9, 6, v2\nv_add_u32 v8, v8, v9\nv_lshlrev_b32 v8, 10, v8")
    e("v_and_b32 v9, 7, v1\nv_xor_b32 v9, v9, v4\nv_lshlrev_b32 v9, 4, v9\nv_add_u32 v8, v8, v9\nv_xor_b32 v9, 64, v8")
    for i in range(8): e(f"v_add_u32 {v(XVO+i)}, {8192*i - 1024*(i&3)}, {v(9 if i & 1 else 8)}")
    e(f"s_lshl_b32 {s(T0)}, s3, 12\ns_lshl_b32 {s(T1)}, s3, 13")
    for i in range(4): e(f"s_add_u32 {s(MK+i)}, {s(T0)}, {i*16384}\ns_add_u32 {s(MV+i)}, {s(T0)}, {65536+i*16384}")
    for i in range(3): e(f"s_add_u32 {s(MX+i)}, {s(T1)}, {XBASE[i]}")
    for k, t in q_issue(0): e(t)
    if OPT['touch']:
        e(f"v_lshlrev_b32 v10, 10, v1\ns_lshr_b32 {s(T0)}, s2, 3\ns_and_b32 {s(T0)}, {s(T0)}, 3\ns_lshl_b32 {s(T0)}, {s(T0)}, 16\ns_lshl_b32 {s(T1)}, s3, 8\ns_add_u32 {s(T0)}, {s(T0)}, {s(T1)}")
        e(f"buffer_load_dword {v(DUM)}, v10, {s(SX,4)}, {s(T0)} offen\nbuffer_load_dword {v(DUM)}, v10, {s(SX,4)}, {s(T0)} offen offset:128")
        e(f"v_bfe_u32 v10, v1, 1, 4\nv_lshlrev_b32 v10, 13, v10\nv_and_b32 v11, 1, v1\nv_lshlrev_b32 v11, 7, v11\nv_add_u32 v10, v10, v11")
        e(f"s_lshl_b32 {s(T0)}, {s(SQB)}, 19\ns_lshl_b32 {s(T1)}, s3, 17\ns_add_u32 {s(T0)}, {s(T0)}, {s(T1)}")
        e(f"buffer_load_dword {v(DUM)}, v10, {s(SWQ,4)}, {s(T0)} offen")
    for st in (1, 2):
        for k, t in q_issue(st): e(t)
    e(f"buffer_load_dwordx4 {v(RAW+8,4)}, {v(L16)}, {s(RA,4)}, 0 offen @@wr")
    e(f"s_lshl_b32 {s(T0)}, {s(SH)}, 19"); srd(e, SK, PK, 524288, s(T0)); srd(e, SV_, PV_, 524288, s(T0)); srd(e, SWS, PWS, WS_SIZE)
    e(f"v_lshlrev_b32 v7, 8, v6\nv_add_u32 {v(DKV+2)}, v7, v5\nv_xor_b32 {v(DKV+3)}, 128, {v(DKV+2)}")
    e("v_and_b32 v8, 1, v2\nv_lshlrev_b32 v8, 3, v8\nv_or_b32 v8, v8, v4\nv_xor_b32 v8, v8, v3\nv_lshlrev_b32 v8, 4, v8")
    e(f"v_add_u32 {v(DKV)}, v7, v8\nv_xor_b32 {v(DKV+1)}, 64, {v(DKV)}")
    e("v_lshrrev_b32 v8, 2, v3\nv_lshlrev_b32 v8, 3, v8\nv_and_b32 v9, 3, v3\nv_add_u32 v8, v8, v9\nv_lshlrev_b32 v8, 8, v8")
    e(f"v_xor_b32 v9, v4, v3\nv_lshlrev_b32 v9, 4, v9\nv_add_u32 {v(KA)}, v8, v9")
    for k in range(1, 4): e(f"v_xor_b32 {v(KA+k)}, {k << 6}, {v(KA)}")
    e("v_lshrrev_b32 v8, 2, v3\nv_lshlrev_b32 v9, 3, v4\nv_add_u32 v9, v9, v8\nv_lshlrev_b32 v9, 8, v9")
    e("v_lshlrev_b32 v8, 1, v8\nv_and_b32 v10, 1, v4\nv_lshlrev_b32 v10, 3, v10\nv_or_b32 v8, v8, v10")
    e("v_bfe_u32 v10, v1, 1, 1\nv_or_b32 v8, v8, v10\nv_lshlrev_b32 v8, 4, v8\nv_add_u32 v9, v9, v8")
    e(f"v_and_b32 v10, 1, v1\nv_lshlrev_b32 v10, 3, v10\nv_add_u32 v9, v9, v10\nv_add_u32 {v(VA)}, 65536, v9")
    for k in range(1, 8): e(f"v_xor_b32 {v(VA+k)}, {k << 5}, {v(VA)}")
    e(f"v_lshlrev_b32 v8, 6, v2\nv_xor_b32 {v(CSA)}, v8, {v(VA)}\nv_xor_b32 {v(CSA+1)}, 32, {v(CSA)}")
    e("v_lshlrev_b32 v8, 13, v2\nv_lshlrev_b32 v9, 7, v3\nv_add_u32 v8, v8, v9\nv_lshrrev_b32 v9, 1, v3\nv_xor_b32 v9, v9, v4\nv_lshlrev_b32 v9, 4, v9")
    e(f"v_add_u32 {v(XRA)}, v8, v9\nv_xor_b32 {v(XRA+1)}, 64, {v(XRA)}\nv_add_u32 {v(XRA+2)}, 131072, {v(XRA)}\nv_add_u32 {v(XRA+3)}, 131072, {v(XRA+1)}")
    e(f"v_lshlrev_b32 v8, 4, v4\nv_add_u32 {v(CSW+1)}, {L_CS}, v8\nv_lshlrev_b32 v9, 7, v2\nv_add_u32 {v(CSW)}, {v(CSW+1)}, v9")
    for i in range(4): e(f"v_mov_b32 {v(ONES+i)}, 0x3f803f80\nv_mov_b32 {v(LV+i)}, 0")
    e("v_lshrrev_b32 v8, 3, v1\nv_lshlrev_b32 v8, 10, v8\nv_lshlrev_b32 v9, 1, v4\nv_and_b32 v10, 7, v1\nv_xor_b32 v9, v9, v10\nv_lshlrev_b32 v9, 4, v9")
    e(f"v_add_u32 {v(WOV)}, v8, v9")
    e("v_lshrrev_b32 v8, 2, v1\nv_lshlrev_b32 v9, 7, v8\nv_bfe_u32 v10, v8, 1, 2\nv_lshlrev_b32 v10, 1, v10\nv_bfe_u32 v11, v1, 1, 1\nv_or_b32 v10, v10, v11\nv_lshlrev_b32 v10, 4, v10")
    e(f"v_add_u32 v9, v9, v10\nv_and_b32 v11, 1, v1\nv_lshlrev_b32 v11, 3, v11\nv_add_u32 v9, v9, v11\nv_lshlrev_b32 v11, 12, v2\nv_add_u32 {v(TRB)}, v9, v11")
    e(f"v_lshlrev_b32 v9, 10, v8\nv_and_b32 v10, 3, v1\nv_lshlrev_b32 v10, 5, v10\nv_add_u32 {v(OUTV)}, v9, v10\nv_lshlrev_b32 {v(STV)}, 3, v8")
    e(f"v_lshlrev_b32 {v(TCH)}, 10, v1")
    e(f"v_cmp_eq_u32 vcc, 0, v1\nv_mov_b32 v8, {FAR}\nv_mov_b32 v9, 0\nv_cndmask_b32 {v(Z0)}, v8, v9, vcc")
    e(f"s_waitcnt lgkmcnt(0)\ns_mul_i32 {s(TAG)}, {s(EPO)}, 0x9e3779b1\ns_add_u32 {s(TAG)}, {s(TAG)}, 0x85ebca6b")
    e(f"s_lshl_b32 {s(T0)}, {s(SQB)}, 8\ns_add_u32 {s(STS)}, {s(STS)}, {s(T0)}")
    e("WAITVM rows")
    stats1(e)
    e(f"s_lshl_b32 {s(T0)}, {s(STS)}, 3\ns_add_u32 {s(T0)}, {s(T0)}, {WS_ST}")
    e(f"buffer_store_dwordx4 {v(STT,4)}, {v(Z0)}, {s(SWS,4)}, {s(T0)} offen sc1")
    e("WAITVM q0\ns_barrier")
    stamp(e)
    for t in q_reads(0): e(t)
    vq = Rec(); stats2(vq, STS)
    vq(f"v_mov_b32 {v(STM[0])}, {s(MV)}\nv_lshrrev_b32 {v(STM[0])}, 10, {v(STM[0])}\nv_add_u32 {v(STM[0])}, {L_KEY - 64}, {v(STM[0])}")
    vq(f"ds_write_b32 {v(STM[0])}, {v(SA_[0])}")
    stq_loads = [f"buffer_load_dwordx2 {v(STQ+2*i,2)}, {v(RAW)}, {s(SWS,4)}, {s(SKEY)} offen offset:{128*i} sc1 @@st" for i in range(4)]
    for st in range(8):
        if st == 0: e("WAITVM q1,wr lgkm\ns_barrier")
        elif st < 7: e(f"WAITVM q{st+1} lgkm\ns_barrier")
        else: e("s_waitcnt lgkmcnt(0)\ns_barrier")
        M = q_mfmas(st)
        if st + 3 < 8: dq = q_issue(st + 3)
        elif st == 5: dq = [('D', t) for t in stq_loads] + kv_issue('K', 0) + kv_issue('V', 0) + kv_issue('K', 1)
        elif st == 6: dq = kv_issue('K', 2) + kv_issue('V', 1) + kv_issue('K', 3)
        if st == 3:
            assert not vq, len(vq)
            K = STT + 8
            vq(f"v_mov_b32 {v(K+4)}, {L_KEY}\nv_mov_b32 {v(K+5)}, {s(TAG)}\nds_read_b128 {v(K,4)}, {v(K+4)}")
            vq(f"s_lshl_b32 {s(T0)}, s2, 3\ns_add_u32 {s(T0)}, {s(T0)}, {WS_KEY}")
            vq(f"v_and_b32 {v(RAW)}, 0xf0, {v(L16)}\nv_lshrrev_b32 {v(RAW)}, 1, {v(RAW)}")
            vq(f"s_lshl_b32 {s(SKEY)}, {s(SQB)}, 11\ns_lshl_b32 {s(T1)}, s3, 9\ns_add_u32 {s(SKEY)}, {s(SKEY)}, {s(T1)}\ns_add_u32 {s(SKEY)}, {s(SKEY)}, {WS_ST}")
        if st == 4:
            assert not vq, len(vq)
            K = STT + 8
            vq(f"v_max3_u32 {v(K)}, {v(K)}, {v(K+1)}, {v(K+2)}\nv_max_u32 {v(K+4)}, {v(K)}, {v(K+3)}")
            vq(f"buffer_store_dwordx2 {v(K+4,2)}, {v(Z0)}, {s(SWS,4)}, {s(T0)} offen sc1")
        if st == 6:
            r = Rec()
            r(f"s_cmp_lt_u32 {s(SU)}, {NFFN}\ns_cselect_b32 {s(RA+2)}, {512*2752}, 0\ns_cselect_b32 {s(RB+2)}, {512*2752}, 0\ns_cselect_b32 {s(RC+2)}, {1376*1024}, 0")
            srd(r, RA, PG, None); srd(r, RB, PU, None); srd(r, RC, PD, None)
            r(f"v_lshrrev_b32 {v(RAW+1)}, 4, {v(L16)}\nv_mul_u32_u24 {v(RAW+1)}, 2752, {v(RAW+1)}")
            r(f"s_mul_i32 {s(T0)}, s3, {128*2752}\ns_lshl_b32 {s(T1)}, {s(SU)}, 4\ns_add_u32 {s(XSO)}, {s(T0)}, {s(T1)}")
            r(f"s_lshl_b32 {s(WSO)}, {s(SU)}, 13\ns_lshl_b32 {s(T1)}, s3, 11\ns_add_u32 {s(WSO)}, {s(WSO)}, {s(T1)}\ns_add_u32 {s(T1)}, {s(T1)}, {L_F}")
            vq.extend(r)
        if st < 7:
            g = pack_gaps(len(M), dq, q_reads(st + 1), vq, lend=len(M) - 8)
        else:
            assert not vq
            dq = []
            for part, sr in ((0, RA), (1, RB)):
                dq.append(('S', f"s_add_u32 m0, {s(T1)}, {part*8192}"))
                dq.append(('D', dma(RAW + 1, sr, s(XSO), 0, 'fw')))
                dq.append(('S', f"s_add_u32 {s(T0)}, {s(XSO)}, {64*2752 - 1024}"))
                dq.append(('D', dma(RAW + 1, sr, s(T0), 1024, 'fw')))
            dq.append(('S', f"s_add_u32 m0, {s(T1)}, 16384"))
            dq.append(('D', dma(L16, RC, s(WSO), 0, 'fw'))); dq.append(('D', dma(L16, RC, s(WSO), 1024, 'fw')))
            dq += kv_issue('V', 2) + kv_issue('V', 3)
            fixed = {8: [f"ds_write_b128 {v(CSW)}, {v(CSACC,4)}", f"ds_write_b128 {v(CSW)}, {v(CSACC+4,4)} offset:64"]}
            g = pack_gaps(30, dq, [], fixed=fixed)
            g[30] = ["WAITVM K0,V0,K1 lgkm", "s_barrier"]
            lq = [f"ds_read_b128 {v(CSV(db),4)}, {v(CSW+1)} offset:{64*db}" for db in range(8)] + k_reads(0, AV) + k_reads(1, AK)
            g = pack_gaps(len(M), [], lq, start=31, fixed=g)
        show(f'Q{st}', g, len(M))
        e.weave(M, g)
    stamp(e)
    e(f"s_mov_b32 {s(OFFK)}, {4*16384}\ns_mov_b32 {s(OFFV)}, {4*16384}")
    e(f"s_lshl_b32 {s(T0)}, {s(SCB)}, 7\ns_sub_u32 {s(SWO+2)}, {4096*1024}, {s(T0)}"); srd(e, SWO, PWO, None, s(T0))
    e("s_waitcnt lgkmcnt(0)")
    spin_check(e, 'L_st', stq_loads, [STQ + 1, STQ + 3, STQ + 5, STQ + 7])
    for qb in range(4): e(f"v_lshlrev_b32 {v(STQ+2*qb+1)}, 16, {v(STQ+2*qb)}")
    for qb in range(4): e(f"v_rcp_f32 {v(STQ+2*qb+1)}, {v(STQ+2*qb+1)}\nv_and_b32 {v(STQ+2*qb)}, 0xffff0000, {v(STQ+2*qb)}")
    for qb in range(4): e(f"v_mul_f32 {v(STQ+2*qb+1)}, {fh(QSCALE)}, {v(STQ+2*qb+1)}")
    for qb in range(4):
        for db in range(8):
            b = qacc(db, qb)
            for r in range(4): e(f"v_fma_f32 {v(b+r)}, -{v(STQ+2*qb)}, {v(CSV(db)+r)}, {v(b+r)}")
        for db in range(8):
            b = qacc(db, qb)
            for r in range(4): e(f"v_mul_f32 {v(b+r)}, {v(b+r)}, {v(STQ+2*qb+1)}")
        for db in range(8):
            b = qacc(db, qb); f = QF + 16 * qb + 4 * (db >> 1) + 2 * (db & 1)
            e(f"v_cvt_pk_bf16_f32 {v(f)}, {v(b)}, {v(b+1)}\nv_cvt_pk_bf16_f32 {v(f+1)}, {v(b+2)}, {v(b+3)}")
        for sw in ('v_permlane32_swap_b32', 'v_permlane16_swap_b32'):
            for ksd in range(4):
                f = QF + 16 * qb + 4 * ksd
                e(f"{sw} {v(f)}, {v(f+2)}\n{sw} {v(f+1)}, {v(f+3)}")
    MT = LACC
    for qb in range(4): e(f"v_mov_b32 {v(MT+qb)}, 0xff800000")
    e(f"s_cmp_lg_u32 {s(MODE)}, 0\ns_cbranch_scc1 L_maxpass\nL_maxdone:")
    o = Rec()
    o(f"L_maxpass:\nv_lshrrev_b32 v64, 4, {v(L16)}\nv_and_b32 v65, 15, v64\nv_lshrrev_b32 v64, 4, v64\nv_lshlrev_b32 v65, 8, v65\nv_lshlrev_b32 v64, 4, v64\nv_add_u32 v64, v64, v65")
    o(f"s_mov_b32 {s(T0)}, 0\nL_maxloop:")
    for kb in range(4):
        if kb: o(f"s_add_u32 {s(T0)}, {s(T0)}, 4096")
        for ksd in range(4): o(f"buffer_load_dwordx4 {a(16*kb + 4*ksd, 4)}, v64, {s(SK,4)}, {s(T0)} offen offset:{64*ksd}")
    o(f"s_add_u32 {s(T0)}, {s(T0)}, 4096\ns_waitcnt vmcnt(0)")
    for qb in range(4):
        for kb in range(4):
            for m in qk_chain(S0, qb, kb, 0, '0'): o(m)
    o("s_nop 7\ns_nop 1")
    for qb in range(4):
        for i in range(0, 16, 2): o(f"v_max3_f32 {v(MT+qb)}, {v(MT+qb)}, {v(16*qb+i)}, {v(16*qb+i+1)}")
    o(f"s_cmp_lt_u32 {s(T0)}, 524288\ns_cbranch_scc1 L_maxloop\ns_branch L_maxdone")
    OOL.extend(o)
    stamp(e)
    for qb in range(4):
        for m in qk_chain(S0, qb, 0, AV, '0'): e(m)
    MXR = [S1 + i for i in range(4)]; TT = [S1 + 4 + i for i in range(4)]
    for qb in range(4):
        b = sgrp(S0, qb, 0)
        e(f"v_max3_f32 {v(MXR[qb])}, {v(b)}, {v(b+1)}, {v(b+2)}\nv_max3_f32 {v(MXR[qb])}, {v(MXR[qb])}, {v(b+3)}, {v(MT+qb)}")
    allreduce(e, MXR, TT, 'v_max_f32', dpp=())
    for qb in range(4):
        for i in range(4): e(f"v_xor_b32 {v(NEGM+4*qb+i)}, 0x80000000, {v(MXR[qb])}")
    for qb in range(4):
        b = sgrp(S0, qb, 0)
        for i in range(4): e(f"v_sub_f32 {v(b+i)}, {v(b+i)}, {v(MXR[qb])}")
    M = [m for qb in range(4) for kb in range(1, 4) for m in qk_chain(S0, qb, kb, AV)]
    std = lambda j: kv_issue('V', j + 4, True) + kv_issue('K', j + 5, True)
    smd = phaseB(Em(), 1, std(1)); tgt = (smd.e, smd.v)
    sm = SM(0)
    def early(ei):
        qb, kb = ei >> 4, (ei >> 2) & 3
        return 0 if kb == 0 else 12 * qb + 4 * (kb - 1) + 6
    g = fill(48, sm, [], 0, 1, elimit=tgt[0], eearly=early, futureL=len(sm.V) - tgt[1])
    show('P', g, 48)
    e.weave(M, g)
    while sm.e < tgt[0]: e(sm.popE())
    while sm.v < tgt[1]: e(sm.popV())
    phaseA(e, 0, sm, "WAITVM K2,V1 lgkm")
    sm = phaseB(e, 0, kv_issue('K', 4, True) + std(0), target=tgt)
    stamp(e)
    e(f"s_mov_b32 {s(CNT)}, 0\n.p2align 6\nL_loop:")
    l0 = len(e.L)
    for j in range(1, 5):
        phaseA(e, j, sm, "s_waitcnt vmcnt(16) lgkmcnt(0)")
        sm = phaseB(e, j, std(j))
    e(f"s_add_u32 {s(CNT)}, {s(CNT)}, 1\ns_cmp_lt_u32 {s(CNT)}, 6\ns_cbranch_scc1 L_loop")
    loop = e.L[l0:]
    for p in check(loop + loop, 'loop'): print(p, file=sys.stderr)
    n = len(e.vm)
    for i in range(n - 32, n):
        t = e.vm[i]; e.vm[i] = t[0] + str(int(t[1:]) + 20)
    stamp(e)
    key_loads = [f"buffer_load_dwordx4 {v(KEYR+4*i,4)}, {v(L16)}, {s(SWS,4)}, {s(SKEY)} offen offset:{1024*i} sc1 @@key" for i in range(2)]
    for j in range(25, 31):
        phaseA(e, j, sm, f"WAITVM K{min(j+2,31)},V{j+1}{',key' if j == 27 else ''} lgkm")
        items = []; extra = {}; L = None
        if j == 25:
            items += [('S', f"s_mov_b32 {s(SKEY)}, {WS_KEY}")] + [('D', t) for t in key_loads]
            if OPT['touch']:
                items += [('S', f"s_lshr_b32 {s(T0)}, s2, 6"), ('S', f"s_lshl_b32 {s(T0)}, {s(T0)}, 20"), ('S', f"s_lshl_b32 {s(T1)}, s3, 18"), ('S', f"s_add_u32 {s(T0)}, {s(T0)}, {s(T1)}")]
        if j in (25, 26) and OPT['touch']:
            for i in range(2):
                items += [('D', f"buffer_load_dword {v(DUM)}, {v(TCH)}, {s(SWO,4)}, {s(T0)} offen"), ('S', f"s_add_u32 {s(T0)}, {s(T0)}, 65536")]
        if j + 4 < 32: items += kv_issue('V', j + 4, True)
        if j + 5 < 32: items += kv_issue('K', j + 5, True)
        if j == 27:
            items += [('S', f"s_lshl_b32 {s(OFFK)}, s3, 20")] + wo_issue(0, OFFK)
        if j >= 28:
            if j == 28: items += [('S', f"s_add_u32 {s(OFFV)}, {s(OFFK)}, {3*32768}")]
            items += wo_issue(j - 27, OFFK) + wo_issue(j - 24, OFFV)
        if j == 29:
            items = [('S', f"s_lshl_b32 {s(XSO)}, {s(SRB)}, 2"), ('S', f"s_add_u32 {s(XSO)}, {s(XSO)}, s3"), ('S', f"s_lshl_b32 {s(XSO)}, {s(XSO)}, 4")] + items[:5] + [
              ('S', f"s_lshl_b32 {s(WSO)}, {s(XSO)}, 10"), ('S', f"s_lshl_b32 {s(T0)}, {s(SCB)}, 7"), ('S', f"s_add_u32 {s(WSO)}, {s(WSO)}, {s(T0)}")] + items[5:12] + [
              ('S', f"s_lshl_b32 {s(SFS)}, {s(XSO)}, 3"), ('S', f"s_add_u32 {s(SFS)}, {s(SFS)}, {WS_ST}")] + items[12:]
        if j == 30: L = v_reads(31, AK)
        if j == 27:
            spin_check(e, 'L_key', key_loads, [KEYR + 1, KEYR + 3, KEYR + 5, KEYR + 7])
            r = Rec()
            r(f"v_max3_u32 {v(KEYR)}, {v(KEYR)}, {v(KEYR+2)}, {v(KEYR+4)}\nv_max_u32 {v(KEYR)}, {v(KEYR)}, {v(KEYR+6)}")
            allreduce(r, [KEYR], [KEYR + 1], 'v_max_u32')
            r(f"v_readfirstlane_b32 {s(SKEY)}, {v(KEYR)}")
            r(f"s_andn2_b32 {s(STS)}, 2047, {s(SKEY)}")
            srd(r, RA, PX, 2097152)
            r(f"s_lshl_b32 {s(T0)}, {s(STS)}, 10\ns_lshl_b32 {s(T1)}, {s(STS)}, 3\ns_add_u32 {s(T1)}, {s(T1)}, {WS_ST}")
            r(f"v_mov_b32 {v(KEYR+6)}, 0\nv_lshrrev_b32 {v(KEYR+7)}, 3, {v(L16)}")
            r(f"buffer_load_dwordx4 {v(KEYR,4)}, {v(L16)}, {s(RA,4)}, {s(T0)} offen @@xs")
            r(f"buffer_load_dwordx2 {v(KEYR+4,2)}, {v(KEYR+6)}, {s(SWS,4)}, {s(T1)} offen sc1 @@xs")
            r(f"s_lshl_b32 {s(T1)}, {s(SCB)}, 7\ns_add_u32 {s(T0)}, {s(T0)}, {s(T1)}")
            r(f"buffer_load_ushort {v(KEYR+6)}, {v(KEYR+7)}, {s(RA,4)}, {s(T0)} offen @@xs")
            for k, t in enumerate(r): extra[2 + 2 * k] = [t]
        sm = phaseB(e, j, items, L=L, target=tgt if j < 30 else None, extra=extra, endbar=(j == 30))
    XR, GP, FST = 224, 232, 232
    M, st = pv_mfmas(31, src=AK, ksmajor=(3,))
    items = wo_issue(7, OFFV)
    items += [('D', f"buffer_load_dwordx4 {v(XR,4)}, {v(OUTV)}, {s(RA,4)}, {s(WSO)} offen @@ex"),
              ('D', f"buffer_load_dwordx4 {v(XR+4,4)}, {v(OUTV)}, {s(RA,4)}, {s(WSO)} offen offset:16 @@ex"),
              ('D', f"buffer_load_dwordx2 {v(FST,2)}, {v(STV)}, {s(SWS,4)}, {s(SFS)} offen sc1 @@ex")]
    g = fill(NB, sm, [], 0, 1, finish=True)
    assert sm.remE() == 0 and sm.remV() == 0
    g = pack_gaps(NB - 4, items, [], start=max(g) + 1, fixed=g)
    for p, its in g.items():
        for t in its:
            if 'cvt_pk' in t:
                r = int(t.split()[1].strip('v,')) - S1
                assert p < st[(r >> 4, (r >> 3) & 1)] - 1, (t, p, st)
    g[NB - 4] = g.get(NB - 4, []) + [f"v_mov_b32 {v(TRLO)}, {v(TRB)}", f"v_xor_b32 {v(TRLO+1)}, 32, {v(TRB)}"]
    g[NB - 3] = g.get(NB - 3, []) + [f"v_xor_b32 {v(TRLO+2)}, 64, {v(TRB)}", f"v_xor_b32 {v(TRLO+3)}, 96, {v(TRB)}"]
    g[NB - 2] = g.get(NB - 2, []) + [f"v_add_u32 {v(TRB)}, 7168, {v(WOV)}", f"v_add_u32 {v(DUM)}, {2*7168}, {v(WOV)}"]
    g[NB - 1] = g.get(NB - 1, []) + [f"v_add_u32 {v(TCH)}, {3*7168}, {v(WOV)}"]
    show('B31', g, NB)
    e.weave(M, g)
    stamp(e)
    IL = NEGM; TT = [NEGM + 8 + i for i in range(4)]; CHK = NEGM + 12; ZB = QF
    vq_ = [q for q in range(4) if q not in OPT['msum']]
    e("WAITVM w0,w1,w2")
    for n in range(3):
        for t in wo_reads(n): e(t)
    if vq_: allreduce(e, [LV + q for q in vq_], [TT[q] for q in vq_], dpp=())
    for i in range(4): e(f"v_mov_b32 {v(ZB+i)}, 0")
    e(f"s_mov_b32 {s(T0)}, {fh(OPT['lthr'])}")
    for q in range(4):
        src = LV + q if q in vq_ else lacc(q)
        e(f"v_rcp_f32 {v(IL+2*q)}, {v(src)}\nv_cmp_nlt_f32 {s(RB + 2*(q&1), 2) if q else 'vcc'}, {v(src)}, {s(T0)}")
        if q: e(f"s_or_b64 vcc, vcc, {s(RB + 2*(q&1), 2)}")
    e(f"s_mov_b64 {s(RB,2)}, vcc")
    e(f"s_lshl_b32 {s(T0)}, {s(SQB)}, 2\ns_add_u32 {s(T0)}, {s(T0)}, s3\ns_lshl_b32 {s(T0)}, {s(T0)}, 19\ns_lshl_b32 {s(T1)}, {s(SH)}, 14\ns_add_u32 {s(T0)}, {s(T0)}, {s(T1)}")
    for t in range(4):
        for q in range(4):
            b = ((t * 4 + q) & 7) * 16
            for k in range(8): e(f"v_accvgpr_read_b32 {v(b+k)}, {a(AO + 4*(8*q + 2*t) + k)}")
            for k in range(8): e(f"v_mul_f32 {v(b+k)}, {v(b+k)}, {v(IL+2*q)}")
            for k in range(4): e(f"v_cvt_pk_bf16_f32 {v(b+8+k)}, {v(b+2*k)}, {v(b+2*k+1)}")
            e(f"buffer_store_dwordx4 {v(b+8,4)}, {v(L16)}, {s(SWS,4)}, {s(T0)} offen offset:{q*1024} sc1")
            e(f"{MF} {v(CHK,4)}, {v(ZB,4)}, {v(b+8,4)}, {'0' if t == 0 and q == 0 else v(CHK,4)}")
        e(f"s_add_u32 {s(T0)}, {s(T0)}, 4096")
    stamp(e)
    for i in range(4): e(f"v_add_u32 {v(TRHI+i)}, 65536, {v(TRLO+i)}")
    e("WAITVM w3,w4,w5,w6,w7 lgkm")
    for n in range(3, 8):
        for t in wo_reads(n): e(t)
        if n in (4, 6): e("s_waitcnt lgkmcnt(6)")
    e(f"v_cmp_u_f32 vcc, {v(CHK)}, {v(CHK)}\ns_or_b64 vcc, vcc, {s(RB,2)}\ns_cmp_lg_u64 vcc, 0\ns_cselect_b32 {s(T0)}, 1, 0\ns_andn2_b32 {s(T0)}, {s(T0)}, {s(MODE)}")
    e(f"v_mov_b32 v0, {s(T0)}\ns_lshl_b32 {s(T1)}, s3, 2\ns_add_u32 {s(T1)}, {s(T1)}, {L_FAIL}\nv_mov_b32 v1, {s(T1)}\nds_write_b32 v1, v0")
    e(f"s_add_u32 {s(OFFV)}, {s(OFFV)}, 0\ns_waitcnt lgkmcnt(0)")
    for n in range(8, 16):
        for k, t in wo_issue(n, OFFV): e(t)
    e("WAITVM xs,fw")
    XS, SS, XC = KEYR, KEYR + 4, KEYR + 6
    e(f"v_lshlrev_b32 {v(SS+1)}, 16, {v(SS)}\nv_and_b32 {v(SS)}, 0xffff0000, {v(SS)}\nv_rcp_f32 {v(SS+1)}, {v(SS+1)}\nv_lshlrev_b32 v8, 16, {v(XC)}")
    for j in range(4): unpack(e, 2 * j, XS + j)
    for j in range(9): e(f"v_sub_f32 {v(j)}, {v(j)}, {v(SS)}")
    bfrn(e, 0, 10)
    for j in range(9): e(f"v_mul_f32 {v(j)}, {v(j)}, {v(SS+1)}")
    for j in range(4): e(f"v_cvt_pk_bf16_f32 {v(12+j)}, {v(2*j)}, {v(2*j+1)}")
    e(f"v_cvt_pk_bf16_f32 v8, v8, v8\ns_lshl_b32 {s(T1)}, s3, 10\ns_add_u32 {s(T1)}, {s(T1)}, {L_F + 24576}\nv_add_u32 v16, {s(T1)}, {v(L16)}\nv_lshlrev_b32 {v(STV)}, 16, v8")
    e("ds_write_b128 v16, v[12:15]")
    e(f"v_lshrrev_b32 v17, 8, {v(L16)}\nv_lshlrev_b32 v17, 4, v17\nv_add_u32 v17, {s(T1)}, v17")
    e(f"v_lshrrev_b32 v18, 4, {v(L16)}\nv_lshrrev_b32 v19, 4, v18\nv_lshlrev_b32 v19, 3, v19\nv_bfe_u32 v20, v18, 2, 2\nv_add_u32 v19, v19, v20\nv_lshlrev_b32 v19, 4, v19")
    e(f"v_and_b32 v20, 1, v18\nv_lshlrev_b32 v20, 3, v20\nv_add_u32 v19, v19, v20\nv_bfe_u32 v20, v18, 1, 1\nv_lshlrev_b32 v20, 13, v20\nv_add_u32 v19, v19, v20\nv_add_u32 v19, {L_F}, v19")
    e(f"v_lshlrev_b32 v18, 2, v18\ns_lshl_b32 {s(T1)}, s3, 8\ns_add_u32 {s(T1)}, {s(T1)}, {L_F + 16384}\nv_add_u32 v18, {s(T1)}, v18")
    for kk in range(16):
        for jh in range(2): e(f"ds_read_b64_tr_b16 {a(64+4*kk+2*jh,2)}, v19 offset:{512*kk + 64*jh}")
        if kk in (5, 10): e("s_waitcnt lgkmcnt(4)")
    e("s_waitcnt lgkmcnt(4)")
    for kk in range(16):
        e(f"ds_read_b128 {a(4*kk,4)}, v17 offset:{64*kk}")
        if kk == 9: e("s_waitcnt lgkmcnt(4)")
    for f in range(8): e(f"ds_read_b32 {v(32+f)}, v18 offset:{1024*f}") if f != 2 else e(f"s_waitcnt lgkmcnt(4)\nds_read_b32 {v(32+f)}, v18 offset:{1024*f}")
    e("s_waitcnt lgkmcnt(8)")
    for kk in range(16): e(f"{MF} v[20:23], {a(64+4*kk,4)}, {a(4*kk,4)}, {'0' if kk == 0 else 'v[20:23]'}")
    bfrn(e, 20, 4)
    for r in range(4): e(f"v_mov_b32 {v(24+r)}, {v(20+r)}")
    for r in range(4): e(f"v_permlane32_swap_b32 {v(20+r)}, {v(24+r)}")
    silun(e, 20, 28, 4); bfrn(e, 20, 4)
    for r in range(4): e(f"v_mul_f32 {v(20+r)}, {v(20+r)}, {v(24+r)}")
    bfrn(e, 20, 4)
    for f in range(8): e(f"v_readlane_b32 {s(RB+f)}, {v(20+(f&3))}, {16*(f>>2)}")
    e("s_waitcnt lgkmcnt(0)")
    for f in range(8): unpack(e, 40 + 2 * f, 32 + f)
    for f in range(8):
        for h in range(2): e(f"{'v_mul_f32' if f == 0 else 'v_fmac_f32'} {v(24+h)}, {s(RB+f)}, {v(40+2*f+h)}")
    e(f"v_lshrrev_b32 v26, 1, {v(L16)}\ns_lshl_b32 {s(T0)}, {s(SU)}, 11\ns_lshl_b32 {s(T1)}, s3, 9\ns_add_u32 {s(T0)}, {s(T0)}, {s(T1)}\ns_add_u32 {s(T0)}, {s(T0)}, {WS_Y}")
    srd(e, RC, PWS, WS_Y + NFFN * 2048)
    e(f"buffer_store_dwordx2 v[24:25], v26, {s(RC,4)}, {s(T0)} offen sc1")
    stamp(e)
    e(f"v_mov_b32 v1, {L_FAIL}\ns_waitcnt vmcnt(0) lgkmcnt(0)\ns_barrier\nds_read_b128 v[4:7], v1")
    e(f"s_lshl_b32 {s(T0)}, {s(SQB)}, 5\ns_add_u32 {s(T0)}, {s(T0)}, {s(SH)}\ns_lshl_b32 {s(T0)}, {s(T0)}, 2\ns_add_u32 {s(T0)}, {s(T0)}, {WS_FLAG}")
    e(f"s_cmp_eq_u32 s3, 0\ns_cselect_b32 {s(T0)}, {s(T0)}, {FAR}\nv_mov_b32 v2, {s(TAG)}")
    e(f"s_waitcnt lgkmcnt(0)\nv_or3_b32 v4, v4, v5, v6\nv_or_b32 v4, v4, v7\nv_readfirstlane_b32 {s(T1)}, v4\ns_cmp_lg_u32 {s(T1)}, 0\ns_cbranch_scc1 L_fail")
    OOL.extend(f"L_fail:\ns_mov_b32 {s(MODE)}, 1\ns_barrier\ns_branch L_restart".split('\n'))
    e(f"buffer_store_dword v2, {v(Z0)}, {s(SWS,4)}, {s(T0)} offen sc1")
    stamp(e)
    for n in range(8, 16):
        for t in wo_reads(n): e(t)
        if n & 1: e("s_waitcnt lgkmcnt(6)" if n < 15 else "s_waitcnt lgkmcnt(0)")
    for n in range(16, 24):
        for k, t in wo_issue(n, OFFV): e(t)
    G, TG = 64, 80
    e(f"v_lshlrev_b32 {v(FST+1)}, 16, {v(FST)}\nv_and_b32 {v(FST)}, 0xffff0000, {v(FST)}\nv_rcp_f32 {v(FST+1)}, {v(FST+1)}")
    for j in range(8): unpack(e, G + 2 * j, XR + j)
    for j in range(16): e(f"v_sub_f32 {v(G+j)}, {v(G+j)}, {v(FST)}")
    bfrn(e, G, 16)
    for j in range(16): e(f"v_mul_f32 {v(G+j)}, {v(G+j)}, {v(FST+1)}")
    bfrn(e, G, 16)
    silun(e, G, TG, 16)
    for j in range(8): e(f"v_cvt_pk_bf16_f32 {v(GP+j)}, {v(G+2*j)}, {v(G+2*j+1)}")
    YV, FL, YB = KEYR, 192, 192
    e(f"s_lshr_b32 {s(T0)}, {s(STS)}, 6\ns_cmp_eq_u32 {s(T0)}, {s(SRB)}\ns_cselect_b32 {s(RC+2)}, {WS_Y + NFFN*2048}, 0\ns_cselect_b64 {s(RB,2)}, -1, 0")
    e(f"v_lshrrev_b32 {v(YV)}, 8, {v(L16)}\nv_lshlrev_b32 {v(YV)}, 11, {v(YV)}\nv_and_b32 {v(YV+1)}, 0xf0, {v(L16)}\nv_add_u32 {v(YV)}, {v(YV)}, {v(YV+1)}")
    e(f"s_lshl_b32 {s(OFFK)}, s3, 13\ns_lshl_b32 {s(T0)}, {s(SCB)}, 8\ns_add_u32 {s(OFFK)}, {s(OFFK)}, {s(T0)}\ns_add_u32 {s(OFFK)}, {s(OFFK)}, {WS_Y}")
    BO0, BO1 = MX, MX + 1
    e(f"v_bfe_u32 {v(YV+1)}, {v(L16)}, 4, 3\nv_lshlrev_b32 {v(YV+1)}, 2, {v(YV+1)}")
    e(f"s_and_b32 {s(T0)}, s2, 7\ns_lshl_b32 {s(T0)}, {s(T0)}, 7\ns_lshl_b32 {s(T1)}, s3, 5\ns_add_u32 {s(T0)}, {s(T0)}, {s(T1)}\ns_add_u32 {s(MX+2)}, {s(T0)}, {WS_FLAG}")
    e(f"s_lshl_b32 {s(BO0)}, {s(SRB)}, 19\ns_lshl_b32 {s(T0)}, s3, 17\ns_add_u32 {s(BO0)}, {s(BO0)}, {s(T0)}\ns_add_u32 {s(BO1)}, {s(BO0)}, 4096")
    poll = [f"buffer_load_dword {v(YV+2)}, {v(YV+1)}, {s(SWS,4)}, {s(MX+2)} offen sc1 @@poll"]
    e(poll[0]); e("WAITVM poll")
    spin_check(e, 'L_poll', poll, [YV + 2])
    stamp(e)
    BR = 64
    def bload(n, i): return f"buffer_load_dwordx4 {v(BR + 16*(n & 7) + 4*i, 4)}, {v(L16)}, {s(SWS,4)}, {s(BO1 if n & 1 else BO0)} offen offset:{1024*i} sc1 @@b{n}_{i}"
    badv = [f"s_add_u32 {s(BO0)}, {s(BO0)}, 8192", f"s_add_u32 {s(BO1)}, {s(BO1)}, 8192"]
    for p in range(4):
        for i in range(4): e(bload(2 * p, i)); e(bload(2 * p + 1, i))
        for t in badv: e(t)
    allf = [f"buffer_load_dwordx4 {v(FL,4)}, {v(L16)}, {s(SWS,4)}, {s(T1)} offen sc1 @@allf"]
    e(f"s_mov_b32 {s(T1)}, {WS_FLAG}"); e(allf[0])
    YS = KEYR + 4
    def yload(i, k): return f"buffer_load_dwordx4 {v(YB + 4*k, 4)}, {v(YV)}, {s(RC,4)}, {s(OFFK)} offen sc1 @@y{i}"
    yadv = f"s_add_u32 {s(OFFK)}, {s(OFFK)}, 32768"
    for p in range(16):
        M = []; fixed = {}
        for i in range(4):
            for nb in range(4):
                d = v(4 * (4 * nb + i), 4)
                for h in range(2):
                    n = 2 * p + h
                    M.append(f"{MF} {d}, {a(aloc(n) + 4*nb, 4)}, {v(BR + 16*(n & 7) + 4*i, 4)}, {'0' if n == 0 else d}")
        pre = []
        if p == 0: pre.append("WAITVM b0_0,b1_0")
        nxt = lambda i: (f"b{2*p}_{i},b{2*p+1}_{i}" if i < 4 else f"b{2*p+2}_0,b{2*p+3}_0")
        lq = []; dq = []; vq = Rec()
        lg = False
        if 1 <= p <= 4:
            lq = wo_reads(2 * p + 14) + wo_reads(2 * p + 15); lg = True
            if p == 1: pre.append("WAITVM w16,w17,w18,w19,w20,w21,w22,w23")
        if 2 <= p <= 5: dq = wo_issue(2 * p + 20, OFFV) + wo_issue(2 * p + 21, OFFV)
        if 8 <= p <= 11:
            lq = wo_reads(2 * p + 8) + wo_reads(2 * p + 9); lg = True
            pre.append(f"WAITVM w{2*p+8},w{2*p+9}")
        if p == 2: pre.append("WAITVM allf"); pre.append(('spin', 'L_allf', [f"s_mov_b32 {s(T1)}, {WS_FLAG}"] + allf, [FL, FL + 1, FL + 2, FL + 3], RB))
        if p == 6:
            for k in range(6): dq += [('D', yload(0, k)), ('S', yadv)]
        if p == 9:
            pre.append("WAITVM y0")
            for r in range(4): vq(f"v_add_f32 {v(YS+r)}, {v(YB+r)}, {v(YB+4+r)}")
        if p == 10:
            for k in range(2, 6):
                for r in range(4): vq(f"v_add_f32 {v(YS+r)}, {v(YS+r)}, {v(YB+4*k+r)}")
        if p == 11:
            for k in range(5): dq += [('D', yload(1, k)), ('S', yadv)]
        if p == 13:
            pre.append("WAITVM y1")
            for k in range(5):
                for r in range(4): vq(f"v_add_f32 {v(YS+r)}, {v(YS+r)}, {v(YB+4*k+r)}")
            allreduce(vq, [YS + r for r in range(4)], [YB + r for r in range(4)], dpp=())
            vq(f"v_and_b32 {v(YB)}, 0xf0, {v(L16)}\ns_lshl_b32 {s(T0)}, s3, 8\ns_add_u32 {s(T0)}, {s(T0)}, {L_YW}\nv_add_u32 {v(YB)}, {s(T0)}, {v(YB)}")
            vq(f"ds_write_b128 {v(YB)}, {v(YS,4)}")
            lg = True
        if p == 14:
            pre.append("s_barrier")
            vq(f"v_lshrrev_b32 {v(YB)}, 2, {v(L16)}\nv_add_u32 {v(YB)}, {L_YW}, {v(YB)}")
            for w in range(4): vq(f"ds_read_b32 {v(YB+4+w)}, {v(YB)} offset:{256*w}")
            vq(f"s_and_b32 {s(T0)}, {s(SKEY)}, 0xffff0000\ns_xor_b32 {s(T1)}, {s(T0)}, 0x80000000\ns_xor_b32 {s(CNT)}, {s(T0)}, 0xffff0000\ns_bitcmp1_b32 {s(T0)}, 31\ns_cselect_b32 {s(T0)}, {s(T1)}, {s(CNT)}")
            vq(f"v_mov_b32 {v(YB+8)}, {s(T0)}\nv_mul_f32 {v(YB+8)}, {fh(-LOG2E)}, {v(YB+8)}\nv_exp_f32 {v(YB+8)}, {v(YB+8)}\nv_lshrrev_b32 {v(YB+1)}, 3, {v(L16)}\nv_add_f32 {v(YB+8)}, 1.0, {v(YB+8)}\nv_rcp_f32 {v(YB+8)}, {v(YB+8)}")
            vq(f"s_lshl_b32 {s(T0)}, s3, 7\ns_add_u32 {s(T0)}, {s(T0)}, {L_GS}\nv_add_u32 {v(YB+1)}, {s(T0)}, {v(YB+1)}")
            bfr1(vq, YB + 8)
            vq("s_waitcnt lgkmcnt(0)")
            vq(f"v_add_f32 {v(YB+4)}, {v(YB+4)}, {v(YB+5)}\nv_add_f32 {v(YB+6)}, {v(YB+6)}, {v(YB+7)}\nv_add_f32 {v(YB+4)}, {v(YB+4)}, {v(YB+6)}")
            bfr1(vq, YB + 4)
            vq(f"v_mul_f32 {v(YB+4)}, {v(YB+4)}, {v(YB+8)}"); bfr1(vq, YB + 4)
            vq(f"v_add_f32 {v(YB+4)}, {v(YB+4)}, {v(STV)}"); bfr1(vq, YB + 4)
            silun(vq, YB + 4, YB + 5, 1)
            vq(f"v_cvt_pk_bf16_f32 {v(YB+4)}, {v(YB+4)}, {v(YB+4)}\nds_write_b16 {v(YB+1)}, {v(YB+4)}")
            vq(f"v_bfe_u32 {v(YB+2)}, {v(L16)}, 4, 2\nv_lshlrev_b32 {v(YB+2)}, 5, {v(YB+2)}\nv_add_u32 {v(YB+2)}, {s(T0)}, {v(YB+2)}")
            vq(f"ds_read_b128 {v(YB+8,4)}, {v(YB+2)}\nds_read_b128 {v(YB+12,4)}, {v(YB+2)} offset:16")
            lg = True
        if p == 15:
            vq(f"s_sub_u32 {s(T0)}, {s(STS)}, {s(XSO)}\nv_lshrrev_b32 {v(YB)}, 6, {v(L16)}\nv_cmp_eq_u32 vcc, {s(T0)}, {v(YB)}\ns_nop 0")
            for j in range(8): vq(f"v_cndmask_b32 {v(GP+j)}, {v(GP+j)}, {v(YB+8+j)}, vcc")
            R = YB + 16
            vq(f"v_lshrrev_b32 {v(YB)}, 4, {v(L16)}\nv_and_b32 {v(YB+1)}, 15, {v(YB)}\nv_lshrrev_b32 {v(YB+2)}, 4, {v(YB)}\nv_lshlrev_b32 {v(YB+3)}, 8, {v(YB+1)}\nv_xor_b32 {v(YB+2)}, {v(YB+2)}, {v(YB+1)}\nv_lshlrev_b32 {v(YB+2)}, 4, {v(YB+2)}")
            vq(f"s_lshl_b32 {s(T0)}, s3, 14\nv_add3_u32 {v(R)}, {v(YB+3)}, {v(YB+2)}, {s(T0)}")
            for k in range(1, 4): vq(f"v_xor_b32 {v(R+k)}, {k << 6}, {v(R)}")
            vq(f"v_lshrrev_b32 {v(YB+1)}, 2, {v(YB)}\nv_lshlrev_b32 {v(YB+3)}, 8, {v(YB+1)}\nv_and_b32 {v(YB+2)}, 3, {v(YB)}\nv_lshlrev_b32 {v(YB+2)}, 2, {v(YB+2)}\nv_xor_b32 {v(YB+2)}, {v(YB+2)}, {v(YB+1)}\nv_lshlrev_b32 {v(YB+2)}, 4, {v(YB+2)}")
            vq(f"s_lshl_b32 {s(T0)}, s3, 12\nv_add3_u32 {v(R+4)}, {v(YB+3)}, {v(YB+2)}, {s(T0)}")
            for k in range(1, 4): vq(f"v_xor_b32 {v(R+4+k)}, {k << 4}, {v(R+4)}")
        for i in range(4):
            gp = 8 * i + 7
            w = []
            if not (p == 15 and i == 3): w.append(f"WAITVM {nxt(i+1)}" + (" lgkm" if (i == 3 and lg) else ""))
            fixed[gp] = w
            if p < 12:
                if i < 3: fixed[gp + 1] = [bload(2 * p + 8, i)]; fixed[gp + 2] = [bload(2 * p + 9, i)]
            if p >= 1 and p < 13 and i == 0:
                fixed[0] = [bload(2 * p + 6, 3)]; fixed[1] = [bload(2 * p + 7, 3)]; fixed[2] = list(badv)
        for x in pre:
            if isinstance(x, tuple): spin_check(e, x[1], x[2], x[3], x[4])
            else: e(x)
        g = pack_gaps(32, dq, lq, vq, lend=28, fixed=fixed)
        if vq: g[31] = list(vq) + g.get(31, []); del vq[:]
        show(f'O{p}', g, 32)
        e.weave(M, g)
    stamp(e)
    R = YB + 16
    for nb in range(4):
        for i in range(4): e(f"ds_write_b128 {v(R+nb)}, {v(4*(4*nb+i), 4)} offset:{i*4096}")
    GF, XF = 128, 144
    for j in range(8): unpack(e, GF + 2 * j, GP + j)
    for j in range(8): unpack(e, XF + 2 * j, XR + j)
    srd(e, RA, POUT, 2097152)
    e("s_waitcnt lgkmcnt(0)\ns_barrier")
    for sw_ in range(4):
        for i in range(4): e(f"ds_read_b128 {v(64 + 16*sw_ + 4*i, 4)}, {v(R+4+i)} offset:{sw_*16384}")
        if sw_ == 2: e("s_waitcnt lgkmcnt(4)")
    for j in range(16): e(f"v_add_f32 {v(64+j)}, {v(64+j)}, {v(80+j)}")
    e("s_waitcnt lgkmcnt(4)")
    for j in range(16): e(f"v_add_f32 {v(64+j)}, {v(64+j)}, {v(96+j)}")
    e("s_waitcnt lgkmcnt(0)")
    for j in range(16): e(f"v_add_f32 {v(64+j)}, {v(64+j)}, {v(112+j)}")
    bfrn(e, 64, 16)
    for j in range(16): e(f"v_mul_f32 {v(64+j)}, {v(64+j)}, {v(GF+j)}")
    bfrn(e, 64, 16)
    for j in range(16): e(f"v_add_f32 {v(64+j)}, {v(64+j)}, {v(XF+j)}")
    for j in range(8): e(f"v_cvt_pk_bf16_f32 {v(80+j)}, {v(64+2*j)}, {v(65+2*j)}")
    e(f"buffer_store_dwordx4 v[80:83], {v(OUTV)}, {s(RA,4)}, {s(WSO)} offen\nbuffer_store_dwordx4 v[84:87], {v(OUTV)}, {s(RA,4)}, {s(WSO)} offen offset:16")
    e(f"s_add_u32 {s(T0)}, s2, s3\ns_cmp_eq_u32 {s(T0)}, 0\ns_cselect_b32 {s(T0)}, {WS_EPOCH}, {FAR}\ns_add_u32 {s(T1)}, {s(EPO)}, 1\nv_mov_b32 v0, {s(T1)}")
    e(f"buffer_store_dword v0, {v(Z0)}, {s(SWS,4)}, {s(T0)} offen")
    e("s_waitcnt vmcnt(0)")
    stamp_out(e)
    e("L_end:\ns_endpgm")
    return e.L

HDR = open('recurrent_scan__mha_block_cached__moe_arch_mod__prompt.s.ref').read().split('; Override launch')[0]

def main():
    L = kernel()
    rep = []
    L2 = autonop(L, rep)
    if OPT.get('shownop'):
        for k, why in rep: print('nop', k, why, file=sys.stderr)
    for p in check(L2, 'main'): print(p, file=sys.stderr)
    O2 = autonop(OOL)
    out = [HDR.rstrip(), "; @launch grid=(256,1,1) block=(256,1,1) lds=163840", '.amdgcn_target "amdgcn-amd-amdhsa--gfx950"\n.text']
    out.append(f".globl {KNAME}\n.p2align 8\n.type {KNAME},@function\n{KNAME}:")
    out += ['    ' + x if not x.endswith(':') else x for x in L2 + O2]
    out.append(f""".section .rodata,"a"
.p2align 6
.amdhsa_kernel {KNAME}
  .amdhsa_next_free_vgpr 512
  .amdhsa_next_free_sgpr 102
  .amdhsa_accum_offset 256
  .amdhsa_group_segment_fixed_size 0
  .amdhsa_kernarg_size 104
  .amdhsa_user_sgpr_count 2
  .amdhsa_user_sgpr_kernarg_segment_ptr 1
  .amdhsa_system_sgpr_workgroup_id_x 1
.end_amdhsa_kernel""")
    open(sys.argv[1], 'w').write('\n'.join(out) + '\n')

main()
```

```python
import sys, struct, math
sys.path.insert(0, 'dev')
from asmlib import *

OPT = dict(msum=(1, 3), eB=36, lthr=2.0**60, fq='', fx='', fkv='', fwo='', ff='', rotq=1, roto=0, q0bar=20, npre=3, mixf=10, mixg=5, pollat=5, fo='sc1', warm=1)
for arg in sys.argv[2:]:
    k, val = arg.split('=')
    OPT[k] = eval(val)

def f2u(x): return struct.unpack('<I', struct.pack('<f', x))[0]
def fh(x): return f"0x{f2u(x):08x}"
MF = 'v_mfma_f32_16x16x32_bf16'
LOG2E = 1.4426950408889634
QSCALE = LOG2E / math.sqrt(128.0)
KNAME = 'recurrent_scan__mha_block_cached__moe_arch_mod__prompt_kernel'

WS_O = 0
WS_ST = 16 << 20
WS_KEY = WS_ST + 16384
WS_FLAG = WS_KEY + 2048
WS_FLAG2 = WS_FLAG + 1024
WS_EPOCH = WS_FLAG + 2048
WS_Y = WS_ST + 32768
WS_DBG = 32 << 20
WS_SIZE = 268435456
NFFN = 172
FAR = 0x40000000
SPIN = 20000

S0, S1, QF, NEGM, LACC, ONES, VA, KA, DKV, LV = 0, 64, 128, 192, 208, 216, 220, 228, 232, 236
WOV, OUTV, STV, TRB, KEYR, L16, DUM, TCH, Z0 = 240, 241, 242, 243, 244, 252, 253, 254, 255
AO, AK, AV = 0, 128, 192
XVO, WVO, XRA, CSA, CSW, CSACC, RAW, STT = 128, 136, 140, 144, 146, 148, 156, 168
STQ = 184
def CSV(db): return 192 + 4 * db if db < 6 else 176 + 4 * (db - 6)
SX, SWQ, SK, SV_, SWS = 4, 8, 12, 16, 20
SWO = 8
MK, MV = 24, 28
OFFK, OFFV, CNT, SH, SQB, XSO, WSO = 32, 33, 34, 35, 36, 37, 38
MX = 39
T0, T1 = 42, 43
PX, PK, PV_, PWQ, PWS = 44, 46, 48, 50, 52
SKEY, STS, SFS = 54, 55, 58
PWO, PWR, PG, PU, PD, POUT = 56, 60, 62, 64, 66, 68
TAG, EPO, SRB, SCB, MODE, SU = 70, 71, 72, 73, 74, 75
RA, RB, RC = 76, 80, 84
ROT = 59
FSO, FSUM, FM0, FD, FW, FDO = 80, 81, 82, 83, 39, 40
XBASE = [0, 32768, 131072]
def xslot(st): return {2: 0, 5: 0, 0: 1, 3: 1, 6: 1, 1: 2, 4: 2, 7: 2}[st]
def wslot(st): return 1 + st % 3
L_CS = 131072
L_FAIL = L_CS + 512
L_YW = L_CS + 576
L_F = L_CS + 2048
L_GS = L_F + 28672
L_KEY = L_CS + 528
L_DUM = L_GS + 512
assert L_DUM + 1024 <= 163840

NST = [0]
STREG = list(range(88, 100)) + [0, 1, 60, 61]
def stamp(e, real=False, grp=1):
    if not (OPT.get('stamp', 0) & grp): return
    i = NST[0]; NST[0] += 1
    e(f"{'s_memrealtime' if real else 's_memtime'} s[100:101]\ns_waitcnt lgkmcnt(0)\ns_mov_b32 {s(STREG[i])}, s100")

def stamp_out(e):
    if not OPT.get('stamp'): return
    stamp(e, grp=255); stamp(e, True, grp=255)
    e("v_mov_b32 v1, 0")
    for i in range(NST[0]): e(f"v_writelane_b32 v1, {s(STREG[i])}, {i}")
    e("v_mbcnt_lo_u32_b32 v2, -1, 0\nv_lshlrev_b32 v2, 2, v2\ns_mov_b64 exec, 0xffff")
    e(f"s_lshl_b32 s100, s2, 2\ns_add_u32 s100, s100, s3\ns_lshl_b32 s100, s100, 6\ns_add_u32 s100, s100, {WS_DBG + (48 << 20)}")
    e(f"buffer_store_dword v1, v2, {s(SWS,4)}, s100 offen\ns_waitcnt vmcnt(0)")

def srd(e, d, p, size, off=None):
    if off is None: e(f"s_mov_b32 {s(d)}, {s(p)}\ns_mov_b32 {s(d+1)}, {s(p+1)}")
    else: e(f"s_add_u32 {s(d)}, {s(p)}, {off}\ns_addc_u32 {s(d+1)}, {s(p+1)}, 0")
    if size is not None: e(f"s_mov_b32 {s(d+2)}, {size}")
    e(f"s_mov_b32 {s(d+3)}, 0x20000")

def allreduce(e, regs, tmps, op='v_add_f32', dpp=(8, 4, 2, 1)):
    for sh in dpp:
        for r in regs: e(f"{op}_dpp {v(r)}, {v(r)}, {v(r)} row_ror:{sh} row_mask:0xf bank_mask:0xf")
    for sw in ('v_permlane16_swap_b32', 'v_permlane32_swap_b32'):
        for r, t in zip(regs, tmps): e(f"v_mov_b32 {v(t)}, {v(r)}")
        for r, t in zip(regs, tmps): e(f"{sw} {v(t)}, {v(r)}")
        for r, t in zip(regs, tmps): e(f"{op} {v(r)}, {v(r)}, {v(t)}")

def unpack(e, dst, src):
    e(f"v_lshlrev_b32 {v(dst)}, 16, {v(src)}\nv_and_b32 {v(dst+1)}, 0xffff0000, {v(src)}")
def bfr1(e, r):
    e(f"v_cvt_pk_bf16_f32 {v(r)}, {v(r)}, {v(r)}\nv_lshlrev_b32 {v(r)}, 16, {v(r)}")
def bfr2(e, r0, r1):
    e(f"v_cvt_pk_bf16_f32 {v(r0)}, {v(r0)}, {v(r1)}\nv_and_b32 {v(r1)}, 0xffff0000, {v(r0)}\nv_lshlrev_b32 {v(r0)}, 16, {v(r0)}")
def bfrn(e, base, n):
    for j in range(0, n, 2): e(f"v_cvt_pk_bf16_f32 {v(base+j)}, {v(base+j)}, {v(base+j+1)}")
    for j in range(0, n, 2): e(f"v_and_b32 {v(base+j+1)}, 0xffff0000, {v(base+j)}\nv_lshlrev_b32 {v(base+j)}, 16, {v(base+j)}")
def silun(e, base, tmp, n):
    for j in range(n): e(f"v_mul_f32 {v(tmp+j)}, {fh(-LOG2E)}, {v(base+j)}")
    for j in range(n): e(f"v_exp_f32 {v(tmp+j)}, {v(tmp+j)}")
    for j in range(n): e(f"v_add_f32 {v(tmp+j)}, 1.0, {v(tmp+j)}")
    for j in range(n): e(f"v_rcp_f32 {v(tmp+j)}, {v(tmp+j)}")
    for j in range(n): e(f"v_mul_f32 {v(base+j)}, {v(base+j)}, {v(tmp+j)}")

class Rec(list):
    def __call__(self, txt):
        for t in txt.split('\n'):
            if t.strip(): self.append(t.strip())

SX_ = [STT + 8, STT + 16]; SW_ = STT + 24; SD_ = [STT + 32, STT + 36]
SM_ = [STT + 4, STT + 5]; SRS = [STT + 6, STT + 7]; SA_ = [STT + 40, STT + 41]; STM = [STT + 42, STT + 43]
def stats1(e):
    X, D, M, RS, A, TM = SX_, SD_, SM_, SRS, SA_, STM
    for j in range(4):
        for i in range(2): unpack(e, X[i] + 2 * j, RAW + 4 * i + j)
    for j in range(4):
        for i in range(2): e(f"v_add_f32 {v(D[i]+j)}, {v(X[i]+2*j)}, {v(X[i]+2*j+1)}")
    for i in range(2): e(f"v_add_f32 {v(D[i])}, {v(D[i])}, {v(D[i]+1)}\nv_add_f32 {v(D[i]+2)}, {v(D[i]+2)}, {v(D[i]+3)}")
    for i in range(2): e(f"v_add_f32 {v(A[i])}, {v(D[i])}, {v(D[i]+2)}")
    allreduce(e, A, TM)
    for i in range(2): e(f"v_mul_f32 {v(M[i])}, {fh(1/512)}, {v(A[i])}")
    for j in range(8):
        for i in range(2): e(f"v_sub_f32 {v(D[i] + (j & 1))}, {v(X[i]+j)}, {v(M[i])}")
        for i in range(2):
            d = v(D[i] + (j & 1))
            e(f"v_mul_f32 {v(A[i])}, {d}, {d}" if j == 0 else f"v_fmac_f32 {v(A[i])}, {d}, {d}")
    allreduce(e, A, TM)
    for i in range(2): e(f"v_mul_f32 {v(A[i])}, {fh(1/512)}, {v(A[i])}")
    for i in range(2): bfr2(e, A[i], M[i])
    for i in range(2): e(f"v_add_f32 {v(A[i])}, {fh(1e-5)}, {v(A[i])}")
    bfr2(e, A[0], A[1])
    for i in range(2): e(f"v_sqrt_f32 {v(A[i])}, {v(A[i])}")
    e(f"v_mov_b32 {v(STT+1)}, {s(TAG)}\nv_mov_b32 {v(STT+3)}, {s(TAG)}")
    bfr2(e, A[0], A[1])
    for i in range(2): e(f"v_lshrrev_b32 {v(TM[i])}, 16, {v(A[i])}")
    for i in range(2): e(f"v_or_b32 {v(STT+2*i)}, {v(TM[i])}, {v(M[i])}")
    for i in range(2): e(f"v_rcp_f32 {v(RS[i])}, {v(A[i])}")

def stats2(e, srow):
    X, W, M, RS, A, TM = SX_, SW_, SM_, SRS, SA_, STM
    for j in range(4): unpack(e, W + 2 * j, RAW + 8 + j)
    for j in range(8):
        for i in range(2): e(f"v_sub_f32 {v(X[i]+j)}, {v(X[i]+j)}, {v(M[i])}")
    for i in range(2): bfrn(e, X[i], 8)
    for j in range(8):
        for i in range(2): e(f"v_mul_f32 {v(X[i]+j)}, {v(X[i]+j)}, {v(RS[i])}")
    for i in range(2): bfrn(e, X[i], 8)
    for j in range(8):
        for i in range(2):
            e(f"v_mul_f32 {v(A[i])}, {v(X[i]+j)}, {v(W+j)}" if j == 0 else f"v_fmac_f32 {v(A[i])}, {v(X[i]+j)}, {v(W+j)}")
    allreduce(e, A, TM)
    bfr2(e, A[0], A[1])
    for i in range(2): e(f"v_ashrrev_i32 {v(TM[i])}, 31, {v(A[i])}")
    for i in range(2): e(f"v_or_b32 {v(TM[i])}, 0x80000000, {v(TM[i])}")
    for i in range(2): e(f"v_xor_b32 {v(A[i])}, {v(A[i])}, {v(TM[i])}")
    for i in range(2): e(f"v_and_b32 {v(A[i])}, 0xffff0000, {v(A[i])}")
    for i in range(2): e(f"v_mov_b32 {v(TM[i])}, {s(srow)}")
    for i in range(2): e(f"v_sub_u32 {v(TM[i])}, {2047 - i}, {v(TM[i])}")
    for i in range(2): e(f"v_or_b32 {v(A[i])}, {v(A[i])}, {v(TM[i])}")
    e(f"v_max_u32 {v(A[0])}, {v(A[0])}, {v(A[1])}")

def dma(voff, srd_, soff, ioff, tag, fl=''):
    return f"buffer_load_dwordx4 {v(voff)}, {s(srd_,4)}, {soff} offen offset:{ioff} {fl} lds @@{tag}"
def qbuf(st): return (0, 64, 96) if st & 1 else (128, 192, 224)

def q_issue(st):
    it = [('S', f"s_mov_b32 m0, {s(MV + wslot(st))}")]
    for i in range(4): it.append(('D', dma(WVO + i, SWQ, s(WSO), 1024 * i, f"q{st}", OPT['fq'])))
    it.append(('S', f"s_mov_b32 m0, {s(MX + xslot(st))}"))
    for i in range(4): it.append(('D', dma(XVO + i, SX, s(XSO), 1024 * i, f"q{st}", OPT['fx'])))
    it.append(('S', f"s_add_u32 m0, {s(MX + xslot(st))}, 4096"))
    for i in range(4, 8): it.append(('D', dma(XVO + i, SX, s(XSO), 1024 * (i & 3), f"q{st}", OPT['fx'])))
    if st < 7:
        it += [('S', f"s_add_u32 {s(XSO)}, {s(XSO)}, 128"), ('S', f"s_and_b32 {s(XSO)}, {s(XSO)}, 0x3ff"), ('S', f"s_lshl_b32 {s(WSO)}, {s(XSO)}, 12")]
    return it

def kv_issue(which, j, running=False):
    isk = which == 'K'; off = OFFK if isk else OFFV
    it = []
    if not running: it.append(('S', f"s_mov_b32 {s(off)}, {j*16384}"))
    it.append(('S', f"s_mov_b32 m0, {s((MK if isk else MV) + (j & 3))}"))
    for i in range(4):
        it.append(('D', dma(DKV + (0 if isk else 2) + (i >> 1), SK if isk else SV_, s(off), 1024 * i, f"{which}{j}", OPT['fkv'])))
    if running: it.append(('S', f"s_add_u32 {s(off)}, {s(off)}, 16384"))
    return it

def wo_m0(n): return (MK + (n & 3)) if (n & 7) < 4 else (MV + (n & 3))
def wo_lds(n): return ((n & 3) * 16384, (n & 7) >= 4)
def wo_issue(n, so):
    it = [('S', f"s_mov_b32 m0, {s(wo_m0(n))}")]
    for i in range(4):
        if n >= 8:
            it.append(('D', dma((WOV, TRB, DUM, TCH)[i], SWO, s(so), 1024 * i, f"w{n}", OPT['fwo'])))
            if i == 3: it.append(('S', f"s_add_u32 {s(so)}, {s(so)}, 32768"))
            continue
        it.append(('D', dma(WOV, SWO, s(so), 1024 * i, f"w{n}", OPT['fwo'])))
        it.append(('S', f"s_add_u32 {s(so)}, {s(so)}, {7168 if i < 3 else 32768 - 3*7168}"))
    if n & 3 == 3 and n >= 7: it.append(('S', f"s_and_b32 {s(so)}, {s(so)}, 0xfffff"))
    return it
TRLO, TRHI = 220, 216
def aloc(n):
    n &= 15
    return AV + 16 * n if n < 4 else AK + 16 * (n - 4) if n < 8 else 16 * (n - 8)
def wo_reads(n):
    off, hi = wo_lds(n)
    return [f"ds_read_b64_tr_b16 {a(aloc(n) + 4*nb + 2*jh, 2)}, {v((TRHI if hi else TRLO) + nb)} offset:{off + jh*2048}" for nb in range(4) for jh in range(2)]

def q_reads(st):
    W, X, C = qbuf(st)
    L = []
    xo = XBASE[xslot(st)]; xr = XRA
    if xo >= 65536: xo -= 131072; xr += 2
    wo = wslot(st) * 16384
    for ks in range(2):
        for d2 in range(2):
            for jh in range(2):
                L.append(f"ds_read_b64_tr_b16 {a(C + 8*ks + 4*d2 + 2*jh, 2)}, {v(CSA + d2)} offset:{wo + ks*8192 + jh*1024}")
    for qb in range(4):
        for ks in range(2):
            L.append(f"ds_read_b128 {a(X + 16*ks + 4*qb, 4)}, {v(xr + ks)} offset:{xo + qb*2048}")
    for db in range(8):
        for ks in range(2):
            for jh in range(2):
                L.append(f"ds_read_b64_tr_b16 {a(W + 32*ks + 4*db + 2*jh, 2)}, {v(VA + db)} offset:{wo + ks*8192 + jh*1024}")
    return L

def qacc(db, qb): return 4 * (8 * qb + db)
def q_mfmas(st):
    W, X, C = qbuf(st)
    M = []
    for d2 in range(2):
        for ks in range(2):
            c = '0' if (st == 0 and ks == 0) else v(CSACC + 4 * d2, 4)
            M.append(f"{MF} {v(CSACC + 4*d2, 4)}, {a(C + 8*ks + 4*d2, 4)}, {v(ONES, 4)}, {c}")
    for db in range(8):
        for qb in range(4):
            for ks in range(2):
                d = v(qacc(db, qb), 4)
                c = '0' if (st == 0 and ks == 0) else d
                M.append(f"{MF} {d}, {a(W + 32*ks + 4*db, 4)}, {a(X + 16*ks + 4*qb, 4)}, {c}")
    return M

def pack_gaps(n, dq, lq, vq=None, start=0, lend=None, fixed=None):
    gaps = dict(fixed or {})
    dq = list(dq); lq = list(lq); vq = vq if vq is not None else []
    lend = n if lend is None else lend
    turn = 0
    for p in range(start, n):
        if p in gaps: continue
        lurg = lq and (lend - p) * 2 <= len(lq) + 1
        if dq and dq[0][0] == 'S' and not (lurg and len(lq) > 1 and False):
            if lq: g = [lq.pop(0), dq.pop(0)[1]]
            else:
                g = [dq.pop(0)[1]]
                if dq and dq[0][0] == 'S': g.append(dq.pop(0)[1])
                elif vq:
                    g.append(vq.pop(0))
                    if vq: g.append(vq.pop(0))
            gaps[p] = g; continue
        order = [(turn + k) % 3 for k in range(3)]
        if lurg: order = [1, 0, 2]
        for o in order:
            if o == 0 and dq:
                gaps[p] = [dq.pop(0)[1]]; break
            if o == 1 and lq:
                gaps[p] = [lq.pop(0)] + ([lq.pop(0)] if lq else []); break
            if o == 2 and vq:
                gaps[p] = [vq.pop(0)] + ([vq.pop(0)] if vq else []); break
        else: continue
        turn = (o + 1) % 3
    assert not dq and not lq, (len(dq), len(lq))
    return gaps

def sgrp(buf, qb, ks): return buf + (2 * qb + ks) * 8
def k_reads(j, dst=AK):
    return [f"ds_read_b128 {a(dst + 16*(2*ks+jh) + 4*ksd, 4)}, {v(KA + ksd)} offset:{(j & 3)*16384 + ks*8192 + jh*1024}"
            for ks in range(2) for jh in range(2) for ksd in range(4)]
def v_reads(j, dst=AV):
    return [f"ds_read_b64_tr_b16 {a(dst + 32*ks + 4*db + 2*jh, 2)}, {v(VA + db)} offset:{(j & 3)*16384 + ks*8192 + jh*1024}"
            for db in range(8) for ks in range(2) for jh in range(2)]
def qk_chain(buf, qb, kb, src=AK, c0=None):
    d = v(sgrp(buf, qb, kb >> 1) + 4 * (kb & 1), 4)
    M = []
    for ksd in range(4):
        c = (c0 if c0 is not None else v(NEGM + 4 * qb, 4)) if ksd == 0 else d
        M.append(f"{MF} {d}, {a(src + 16*kb + 4*ksd, 4)}, {v(QF + 16*qb + 4*ksd, 4)}, {c}")
    return M
def qk_mfmas(j, src=AK):
    buf = S1 if j & 1 else S0
    return [m for qb in range(4) for kb in range(4) for m in qk_chain(buf, qb, kb, src)]
def lacc(qb): return LACC + 4 * OPT['msum'].index(qb)
def pv_mfmas(j, first=False, src=AV, ksmajor=()):
    buf = S1 if j & 1 else S0
    M = []; st = {}
    for qb in range(4):
        order = [(db, ks) for ks in range(2) for db in range(8)] if qb in ksmajor else [(db, ks) for db in range(8) for ks in range(2)]
        for db, ks in order:
            d = a(AO + 4 * (8 * qb + db), 4)
            c = '0' if (first and ks == 0) else d
            st.setdefault((qb, ks), len(M))
            M.append(f"{MF} {d}, {a(src + 32*ks + 4*db, 4)}, {v(sgrp(buf, qb, ks), 4)}, {c}")
        if qb in OPT['msum']:
            d = v(lacc(qb), 4)
            for ks in range(2):
                c = '0' if (first and ks == 0) else d
                M.append(f"{MF} {d}, {v(ONES, 4)}, {v(sgrp(buf, qb, ks), 4)}, {c}")
    return M, st

class SM:
    def __init__(self, j):
        buf = S1 if j & 1 else S0
        E = []; V = []
        for qb in range(4):
            for ks in range(2):
                b = sgrp(buf, qb, ks); e0 = len(E)
                for i in range(8): E.append(f"v_exp_f32 {v(b+i)}, {v(b+i)}")
                for p in range(4):
                    if qb not in OPT['msum']:
                        for i in (2 * p, 2 * p + 1):
                            V.append((e0 + i, f"v_add_f32 {v(LV+qb)}, {v(LV+qb)}, {v(b+i)}"))
                    V.append((e0 + 2 * p + 1, f"v_cvt_pk_bf16_f32 {v(b+p)}, {v(b+2*p)}, {v(b+2*p+1)}"))
        self.E, self.V, self.e, self.v = E, V, 0, 0
    def ready(self):
        n = 0
        while self.v + n < len(self.V) and self.V[self.v + n][0] < self.e: n += 1
        return n
    def popE(self): self.e += 1; return self.E[self.e - 1]
    def popV(self): self.v += 1; return self.V[self.v - 1][1]
    def remE(self): return len(self.E) - self.e
    def remV(self): return len(self.V) - self.v

def fill(n, sm, L, lfirst, llast, dpos=None, scal=None, futureL=0, elimit=None, eearly=None, finish=False):
    gaps = {}
    L = list(L); nL = len(L); dpos = dict(dpos or {}); scal = dict(scal or {})
    elimit = len(sm.E) if elimit is None else elimit
    for p in range(n):
        g = []
        done = nL - len(L)
        lav = bool(L) and p >= lfirst + (llast - lfirst) * done / max(1, nL - 1) - 1e-9
        urgent = bool(L) and ((llast - p + 1) * 2 <= len(L) + 1 or p >= llast)
        vr = sm.ready()
        eok = sm.e < elimit and (eearly is None or p >= eearly(sm.e))
        if p in dpos:
            assert p not in scal
            g = [dpos.pop(p)]
        elif p in scal:
            g = [scal.pop(p)]
            if eok: g.append(sm.popE())
            else:
                for _ in range(min(2, vr)): g.append(sm.popV())
        elif lav and vr >= 1: g = [L.pop(0), sm.popV()]
        elif urgent or (lav and not eok):
            g = [L.pop(0)]
            if L: g.append(L.pop(0))
        elif vr >= 2 and (sm.remV() - len(L) - futureL >= 2 or not eok): g = [sm.popV(), sm.popV()]
        elif eok: g = [sm.popE()]
        elif vr >= 1 and finish: g = [sm.popV()]
        if g: gaps[p] = g
    assert not L and not dpos and not scal, (len(L), dpos, scal)
    return gaps

def spread(items, first, last):
    nD = sum(1 for k, _ in items if k == 'D')
    dpos = {}; scal = {}
    step = (last - first) / max(1, nD - 1) if nD > 1 else 0
    k = 0; p = -1; pend = []
    for kind, t in items:
        if kind == 'S': pend.append(t); continue
        want = max(int(round(first + k * step)), p + 1 + len(pend))
        q = want - len(pend)
        for x in pend: scal[q] = x; q += 1
        pend = []
        dpos[want] = t; p = want; k += 1
    for x in pend: p += 1; scal[p] = x
    return dpos, scal

NB = 64 + 2 * len(OPT['msum'])

def show(tag, g, n):
    def ch(x):
        o = x.split()[0]
        return 'E' if 'exp' in o else 'L' if o.startswith('ds_') else 'D' if o.startswith('buffer') else 's' if o.startswith('s_') or o == 'WAITVM' else 'v'
    if OPT.get('show'): print(tag, ' '.join(''.join(ch(x) for x in g.get(i, [])) or '-' for i in range(n)), file=sys.stderr)

def phaseA(e, j, sm, last_wait, ffn=None, tail=None):
    M = qk_mfmas(j + 1)
    g = fill(64, sm, v_reads(j), 0, 54, finish=True)
    assert sm.remE() == 0 and sm.remV() == 0, (sm.remE(), sm.remV())
    if ffn is not None:
        assert 61 not in g and 62 not in g
        g[60] = [f"s_cmp_eq_u32 {s(FW)}, {ffn}"] + g[60]
        g[61] = [f"s_cselect_b32 {s(T0)}, {s(FSO)}, {FAR}", f"s_cselect_b32 m0, {s(FM0)}, {L_DUM}"]
        g[62] = [dma(TCH, RA, s(T0), 0, 'fw', OPT['ff'])]
    if tail:
        assert 61 not in g and 62 not in g
        g[61], g[62] = tail
    g[63] = g.get(63, []) + [last_wait, "s_barrier"]
    show(f'A{j}', g, 64)
    e.weave(M, g)

def phaseB(e, j, items, L=None, target=None, extra=None, endbar=False):
    M, st = pv_mfmas(j, j == 0)
    sm = SM(j + 1)
    dpos, scal = spread(items, 4, NB - 8)
    fut = 32
    if L is None: L = k_reads(j + 2)
    else: fut = 0
    scal[NB - 1] = "s_waitcnt lgkmcnt(0)"
    g = fill(NB, sm, L, 3, NB - 12, dpos, scal, futureL=fut, elimit=OPT['eB'])
    if endbar: g[NB - 1].insert(1, "s_barrier")
    if target is not None:
        while sm.e < target[0]: g[NB - 1].append(sm.popE())
        while sm.v < target[1]: g[NB - 1].append(sm.popV())
    for p, xs in (extra or {}).items(): g[p] = g.get(p, []) + xs
    show(f'B{j}', g, NB)
    e.weave(M, g)
    return sm

def spin_check(e, name, reload_, ncmp, cond_sgpr=None):
    def test(x):
        for k, r in enumerate(ncmp):
            x(f"v_cmp_ne_u32 {'vcc' if k == 0 else s(T0,2)}, {s(TAG)}, {v(r)}")
            if k: x(f"s_or_b64 vcc, vcc, {s(T0,2)}")
        if cond_sgpr is not None: x(f"s_and_b64 vcc, vcc, {s(cond_sgpr,2)}")
    test(e)
    e(f"s_cbranch_vccnz {name}_slow\n{name}_ok:")
    o = Rec()
    o(f"{name}_slow:\ns_mov_b32 {s(CNT)}, {SPIN}\n{name}_spin:\ns_sleep 2")
    for t in reload_: o(t.split('@@')[0])
    o("s_waitcnt vmcnt(0)")
    test(o)
    o(f"s_cbranch_vccz {name}_ok\ns_sub_u32 {s(CNT)}, {s(CNT)}, 1\ns_cmp_lg_u32 {s(CNT)}, 0\ns_cbranch_scc1 {name}_spin\ns_branch {name}_ok")
    OOL.extend(o)
OOL = []

def kernel():
    e = Em()
    e("s_cmp_ge_u32 s2, 256\ns_cbranch_scc1 L_end")
    e(f"s_load_dwordx4 s[44:47], s[0:1], 0\ns_load_dwordx4 s[48:51], s[0:1], 16\ns_load_dwordx2 s[52:53], s[0:1], 96")
    e(f"s_load_dwordx4 s[60:63], s[0:1], 48\ns_load_dwordx2 s[56:57], s[0:1], 32\ns_load_dwordx4 s[64:67], s[0:1], 64\ns_load_dwordx2 s[68:69], s[0:1], 80")
    stamp(e, True, grp=255); stamp(e, grp=255)
    e(f"v_lshrrev_b32 v2, 6, v0\ns_mov_b32 {s(MODE)}, 0\nv_readfirstlane_b32 s3, v2")
    e(f"s_and_b32 {s(T0)}, s2, 7\ns_lshl_b32 {s(SH)}, {s(T0)}, 2\ns_lshr_b32 {s(T1)}, s2, 3\ns_and_b32 {s(T1)}, {s(T1)}, 3\ns_add_u32 {s(SH)}, {s(SH)}, {s(T1)}\ns_lshr_b32 {s(SQB)}, s2, 5")
    e("s_branch L_start")
    e("L_restart:")
    e("v_mbcnt_lo_u32_b32 v0, -1, 0\nv_mbcnt_hi_u32_b32 v0, -1, v0\nv_mov_b32 v2, s3")
    e("L_start:")
    e("v_and_b32 v1, 63, v0\nv_and_b32 v3, 15, v0\nv_bfe_u32 v4, v0, 4, 2")
    e("v_lshlrev_b32 v5, 1, v4\nv_xor_b32 v5, v5, v3\nv_lshlrev_b32 v5, 4, v5")
    e("v_lshlrev_b32 v6, 4, v2\nv_add_u32 v6, v6, v4")
    e(f"v_lshlrev_b32 v7, 13, v6\nv_add_u32 {v(WVO)}, v7, v5")
    e(f"v_add_u32 {v(WVO+1)}, {4*8192-1024}, {v(WVO)}")
    e(f"v_xor_b32 v8, 128, {v(WVO)}\nv_add_u32 {v(WVO+2)}, {8*8192-2048}, v8\nv_add_u32 {v(WVO+3)}, {12*8192-3072}, v8")
    if OPT['rotq']: e(f"s_and_b32 {s(T0)}, {s(SH)}, 3\ns_lshl_b32 {s(T0)}, {s(T0)}, 1\ns_add_u32 {s(T0)}, {s(T0)}, {s(SQB)}\ns_and_b32 {s(T0)}, {s(T0)}, 7\ns_lshl_b32 {s(XSO)}, {s(T0)}, 7\ns_lshl_b32 {s(WSO)}, {s(T0)}, 19")
    else: e(f"s_mov_b32 {s(XSO)}, 0\ns_mov_b32 {s(WSO)}, 0")
    e(f"s_lshl_b32 {s(T0)}, s3, 12\ns_lshl_b32 {s(T1)}, s3, 13")
    for i in range(4): e(f"s_add_u32 {s(MV+i)}, {s(T0)}, {65536+i*16384}")
    for i in range(3): e(f"s_add_u32 {s(MX+i)}, {s(T1)}, {XBASE[i]}")
    e("v_lshrrev_b32 v8, 3, v1\nv_lshlrev_b32 v9, 6, v2\nv_add_u32 v8, v8, v9\nv_lshlrev_b32 v8, 10, v8")
    e("v_and_b32 v9, 7, v1\nv_xor_b32 v9, v9, v4\nv_lshlrev_b32 v9, 4, v9\nv_add_u32 v8, v8, v9\nv_xor_b32 v9, 64, v8")
    for i in range(8): e(f"v_add_u32 {v(XVO+i)}, {8192*i - 1024*(i&3)}, {v(9 if i & 1 else 8)}")
    e(f"s_lshl_b32 {s(T0)}, {s(SH)}, 8\ns_sub_u32 {s(SWQ+2)}, {512*8192}, {s(T0)}\ns_lshl_b32 {s(T1)}, {s(SQB)}, 18\ns_waitcnt lgkmcnt(0)")
    srd(e, SWQ, PWQ, None, s(T0)); srd(e, SX, PX, 262144, s(T1))
    stamp(e, grp=2)
    for k, t in q_issue(0): e(t)
    stamp(e, grp=2)
    e(f"s_cmp_lg_u32 {s(MODE)}, 0\ns_cbranch_scc1 L_noepo\ns_mov_b32 {s(T0)}, {WS_EPOCH}\ns_load_dword {s(EPO)}, s[52:53], {s(T0)}\nL_noepo:")
    e(f"v_lshlrev_b32 {v(L16)}, 4, v1")
    e(f"s_and_b32 {s(T0)}, s2, 7\ns_lshr_b32 {s(T1)}, s2, 3\ns_and_b32 {s(SCB)}, {s(T1)}, 7\ns_mul_i32 {s(SU)}, {s(T0)}, 22\ns_add_u32 {s(SU)}, {s(SU)}, {s(T1)}")
    e(f"s_cmp_lt_u32 {s(T1)}, 22\ns_cselect_b32 {s(SU)}, {s(SU)}, 255")
    e(f"s_lshl_b32 {s(T0)}, {s(T0)}, 2\ns_lshr_b32 {s(SRB)}, s2, 6\ns_add_u32 {s(SRB)}, {s(SRB)}, {s(T0)}")
    e(f"s_lshl_b32 {s(T0)}, s3, 12")
    for i in range(4): e(f"s_add_u32 {s(MK+i)}, {s(T0)}, {i*16384}")
    srd(e, RA, PWR, 1024)
    e(f"s_lshl_b32 {s(T0)}, {s(SH)}, 19"); srd(e, SK, PK, 524288, s(T0)); srd(e, SV_, PV_, 524288, s(T0)); srd(e, SWS, PWS, WS_SIZE)
    e(f"v_lshlrev_b32 v7, 8, v6\nv_add_u32 {v(DKV+2)}, v7, v5\nv_xor_b32 {v(DKV+3)}, 128, {v(DKV+2)}")
    e("v_and_b32 v8, 1, v2\nv_lshlrev_b32 v8, 3, v8\nv_or_b32 v8, v8, v4\nv_xor_b32 v8, v8, v3\nv_lshlrev_b32 v8, 4, v8")
    e(f"v_add_u32 {v(DKV)}, v7, v8\nv_xor_b32 {v(DKV+1)}, 64, {v(DKV)}")
    e("v_lshrrev_b32 v8, 2, v3\nv_lshlrev_b32 v8, 3, v8\nv_and_b32 v9, 3, v3\nv_add_u32 v8, v8, v9\nv_lshlrev_b32 v8, 8, v8")
    e(f"v_xor_b32 v9, v4, v3\nv_lshlrev_b32 v9, 4, v9\nv_add_u32 {v(KA)}, v8, v9")
    for k in range(1, 4): e(f"v_xor_b32 {v(KA+k)}, {k << 6}, {v(KA)}")
    e("v_lshrrev_b32 v8, 2, v3\nv_lshlrev_b32 v9, 3, v4\nv_add_u32 v9, v9, v8\nv_lshlrev_b32 v9, 8, v9")
    e("v_lshlrev_b32 v8, 1, v8\nv_and_b32 v10, 1, v4\nv_lshlrev_b32 v10, 3, v10\nv_or_b32 v8, v8, v10")
    e("v_bfe_u32 v10, v1, 1, 1\nv_or_b32 v8, v8, v10\nv_lshlrev_b32 v8, 4, v8\nv_add_u32 v9, v9, v8")
    e(f"v_and_b32 v10, 1, v1\nv_lshlrev_b32 v10, 3, v10\nv_add_u32 v9, v9, v10\nv_add_u32 {v(VA)}, 65536, v9")
    for k in range(1, 8): e(f"v_xor_b32 {v(VA+k)}, {k << 5}, {v(VA)}")
    e(f"v_lshlrev_b32 v8, 6, v2\nv_xor_b32 {v(CSA)}, v8, {v(VA)}\nv_xor_b32 {v(CSA+1)}, 32, {v(CSA)}")
    e("v_lshlrev_b32 v8, 13, v2\nv_lshlrev_b32 v9, 7, v3\nv_add_u32 v8, v8, v9\nv_lshrrev_b32 v9, 1, v3\nv_xor_b32 v9, v9, v4\nv_lshlrev_b32 v9, 4, v9")
    e(f"v_add_u32 {v(XRA)}, v8, v9\nv_xor_b32 {v(XRA+1)}, 64, {v(XRA)}\nv_add_u32 {v(XRA+2)}, 131072, {v(XRA)}\nv_add_u32 {v(XRA+3)}, 131072, {v(XRA+1)}")
    e(f"v_lshlrev_b32 v8, 4, v4\nv_add_u32 {v(CSW+1)}, {L_CS}, v8\nv_lshlrev_b32 v9, 7, v2\nv_add_u32 {v(CSW)}, {v(CSW+1)}, v9")
    for i in range(4): e(f"v_mov_b32 {v(ONES+i)}, 0x3f803f80\nv_mov_b32 {v(LV+i)}, 0")
    e("v_lshrrev_b32 v8, 3, v1\nv_lshlrev_b32 v8, 10, v8\nv_lshlrev_b32 v9, 1, v4\nv_and_b32 v10, 7, v1\nv_xor_b32 v9, v9, v10\nv_lshlrev_b32 v9, 4, v9")
    e(f"v_add_u32 {v(WOV)}, v8, v9")
    e("v_lshrrev_b32 v8, 2, v1\nv_lshlrev_b32 v9, 7, v8\nv_bfe_u32 v10, v8, 1, 2\nv_lshlrev_b32 v10, 1, v10\nv_bfe_u32 v11, v1, 1, 1\nv_or_b32 v10, v10, v11\nv_lshlrev_b32 v10, 4, v10")
    e(f"v_add_u32 v9, v9, v10\nv_and_b32 v11, 1, v1\nv_lshlrev_b32 v11, 3, v11\nv_add_u32 v9, v9, v11\nv_lshlrev_b32 v11, 12, v2\nv_add_u32 {v(TRB)}, v9, v11")
    e(f"v_lshlrev_b32 v9, 10, v8\nv_and_b32 v10, 3, v1\nv_lshlrev_b32 v10, 5, v10\nv_add_u32 {v(OUTV)}, v9, v10\nv_lshlrev_b32 {v(STV)}, 3, v8")
    e(f"v_mul_u32_u24 {v(TCH)}, 2752, v1")
    e(f"v_cmp_eq_u32 vcc, 0, v1\nv_mov_b32 v8, {FAR}\nv_mov_b32 v9, 0\nv_cndmask_b32 {v(Z0)}, v8, v9, vcc")
    stamp(e, grp=2)
    for k, t in q_issue(1): e(t)
    e(f"s_lshl_b32 {s(T0)}, {s(SH)}, 3\ns_lshl_b32 {s(T1)}, s3, 1\ns_add_u32 {s(STS)}, {s(T0)}, {s(T1)}\ns_lshl_b32 {s(T0)}, {s(STS)}, 10")
    e(f"buffer_load_dwordx4 {v(RAW,4)}, {v(L16)}, {s(SX,4)}, {s(T0)} offen @@rows\nbuffer_load_dwordx4 {v(RAW+4,4)}, {v(L16)}, {s(SX,4)}, {s(T0)} offen offset:1024 @@rows")
    e(f"buffer_load_dwordx4 {v(RAW+8,4)}, {v(L16)}, {s(RA,4)}, 0 offen @@rows")
    e(f"s_waitcnt lgkmcnt(0)\ns_mul_i32 {s(TAG)}, {s(EPO)}, 0x9e3779b1\ns_add_u32 {s(TAG)}, {s(TAG)}, 0x85ebca6b")
    e(f"s_lshl_b32 {s(T0)}, {s(SQB)}, 8\ns_add_u32 {s(STS)}, {s(STS)}, {s(T0)}")
    e(f"s_lshl_b32 {s(SFS)}, {s(STS)}, 3\ns_add_u32 {s(SFS)}, {s(SFS)}, {WS_ST}")
    e(f"s_lshl_b32 {s(SKEY)}, {s(SQB)}, 11\ns_lshl_b32 {s(T1)}, s3, 9\ns_add_u32 {s(SKEY)}, {s(SKEY)}, {s(T1)}\ns_add_u32 {s(SKEY)}, {s(SKEY)}, {WS_ST}")
    stamp(e, grp=2)
    e("WAITVM q0\ns_barrier")
    stamp(e, grp=7)
    for t in q_reads(0): e(t)
    vq = Rec(); stats1(vq)
    vq(f"buffer_store_dwordx4 {v(STT,4)}, {v(Z0)}, {s(SWS,4)}, {s(SFS)} offen sc1")
    vq(f"v_and_b32 {v(RAW)}, 0xf0, {v(L16)}\nv_lshrrev_b32 {v(RAW)}, 1, {v(RAW)}")
    stats2(vq, STS)
    vq(f"v_mov_b32 {v(STM[0])}, s3\nv_lshlrev_b32 {v(STM[0])}, 2, {v(STM[0])}\nv_add_u32 {v(STM[0])}, {L_KEY}, {v(STM[0])}")
    stq_loads = [f"buffer_load_dwordx2 {v(STQ+2*i,2)}, {v(RAW)}, {s(SWS,4)}, {s(SKEY)} offen offset:{128*i} sc1 @@st" for i in range(4)]
    KX = RAW + 4
    for st in range(8):
        if st == 0: e("s_waitcnt lgkmcnt(0)")
        elif st < 7: e(f"WAITVM q{st+1} lgkm\ns_barrier")
        else: e("s_waitcnt lgkmcnt(0)\ns_barrier")
        stamp(e, grp=(6 if st < 4 else 4))
        M = q_mfmas(st)
        if st + 3 < 8: dq = q_issue(st + 3)
        elif st == 5: dq = kv_issue('K', 0) + kv_issue('K', 1)
        elif st == 6:
            assert not vq, len(vq)
            dq = [('D', t) for t in stq_loads] + kv_issue('V', 0) + kv_issue('K', 2)
            vq(f"s_cmp_lt_u32 {s(SU)}, {NFFN}\ns_cselect_b32 {s(RA+2)}, {512*2752}, 0\ns_cselect_b32 {s(RC+2)}, {1376*1024}, 0")
            srd(vq, RA, PG, None); srd(vq, RC, PD, None)
            vq(f"s_mul_i32 {s(T0)}, s3, {128*2752}\ns_lshl_b32 {s(T1)}, {s(SU)}, 4\ns_add_u32 {s(FSO)}, {s(T0)}, {s(T1)}\ns_lshl_b32 {s(FSUM)}, {s(FSO)}, 1\ns_add_u32 {s(FSUM)}, {s(FSUM)}, {64*2752}")
            vq(f"s_lshl_b32 {s(FDO)}, {s(SU)}, 13\ns_lshl_b32 {s(T1)}, s3, 11\ns_add_u32 {s(FDO)}, {s(FDO)}, {s(T1)}\ns_add_u32 {s(FM0)}, {s(T1)}, {L_F}")
            vq(f"s_mov_b32 {s(FD)}, 1024\ns_mov_b32 {s(FW)}, s3")
            vq(f"v_mov_b32 {v(KX+4)}, {L_KEY}\nv_mov_b32 {v(KX+5)}, {s(TAG)}")
            srd(vq, SX, PWO, 4096 * 1024)
            vq(f"s_lshl_b32 {s(XSO)}, s2, 2\ns_add_u32 {s(XSO)}, {s(XSO)}, s3\ns_lshl_b32 {s(XSO)}, {s(XSO)}, 12\nv_lshlrev_b32 {v(DUM)}, 2, {v(L16)}")
        if st == 0:
            g = pack_gaps(OPT['q0bar'], q_issue(2), [])
            g[OPT['q0bar']] = ["WAITVM q1", "s_barrier"]
            g = pack_gaps(len(M), dq, q_reads(1), start=OPT['q0bar'] + 1, lend=len(M) - 6, fixed=g)
        elif st < 7:
            g = pack_gaps(len(M), dq, q_reads(st + 1), vq, lend=len(M) - 8)
        else:
            assert not vq
            dq = kv_issue('V', 1)
            fixed = {8: [f"ds_write_b128 {v(CSW)}, {v(CSACC,4)}", f"ds_write_b128 {v(CSW)}, {v(CSACC+4,4)} offset:64"], 0: [f"ds_write_b32 {v(STM[0])}, {v(SA_[0])}"]}
            g = pack_gaps(22, dq, [], fixed=fixed)
            g[22] = ["WAITVM K0,K1 lgkm", "s_barrier"]
            lq = [f"ds_read_b128 {v(KX,4)}, {v(KX+4)}"] + [f"ds_read_b128 {v(CSV(db),4)}, {v(CSW+1)} offset:{64*db}" for db in range(8)] + k_reads(0, AV) + k_reads(1, AK)
            g = pack_gaps(len(M), [], lq, start=23, fixed=g)
            p = max(g) + 1
            g[p] = [f"s_lshl_b32 {s(T0)}, s2, 3", f"s_add_u32 {s(T0)}, {s(T0)}, {WS_KEY}"]
            g[p + 1] = ["s_waitcnt lgkmcnt(15)", f"v_max3_u32 {v(KX)}, {v(KX)}, {v(KX+1)}, {v(KX+2)}", f"v_max_u32 {v(KX+4)}, {v(KX)}, {v(KX+3)}"]
            g[p + 2] = [f"buffer_store_dwordx2 {v(KX+4,2)}, {v(Z0)}, {s(SWS,4)}, {s(T0)} offen sc1"]
            g = pack_gaps(len(M), kv_issue('K', 3) + kv_issue('V', 2), [], start=p + 3, fixed=g)
        show(f'Q{st}', g, len(M))
        e.weave(M, g)
    stamp(e, grp=5)
    e(f"s_mov_b32 {s(OFFK)}, {4*16384}\ns_mov_b32 {s(OFFV)}, {3*16384}")
    e(f"s_lshl_b32 {s(T0)}, {s(SCB)}, 7\ns_lshl_b32 {s(T1)}, s3, 20\ns_add_u32 {s(T0)}, {s(T0)}, {s(T1)}\ns_sub_u32 {s(SWO+2)}, {4096*1024}, {s(T0)}"); srd(e, SWO, PWO, None, s(T0))
    e("WAITVM st lgkm")
    spin_check(e, 'L_st', stq_loads, [STQ + 1, STQ + 3, STQ + 5, STQ + 7])
    for qb in range(4): e(f"v_lshlrev_b32 {v(STQ+2*qb+1)}, 16, {v(STQ+2*qb)}")
    for qb in range(4): e(f"v_rcp_f32 {v(STQ+2*qb+1)}, {v(STQ+2*qb+1)}\nv_and_b32 {v(STQ+2*qb)}, 0xffff0000, {v(STQ+2*qb)}")
    for qb in range(4): e(f"v_mul_f32 {v(STQ+2*qb+1)}, {fh(QSCALE)}, {v(STQ+2*qb+1)}")
    for qb in range(4):
        for db in range(8):
            b = qacc(db, qb)
            for r in range(4): e(f"v_fma_f32 {v(b+r)}, -{v(STQ+2*qb)}, {v(CSV(db)+r)}, {v(b+r)}")
        for db in range(8):
            b = qacc(db, qb)
            for r in range(4): e(f"v_mul_f32 {v(b+r)}, {v(b+r)}, {v(STQ+2*qb+1)}")
        for db in range(8):
            b = qacc(db, qb); f = QF + 16 * qb + 4 * (db >> 1) + 2 * (db & 1)
            e(f"v_cvt_pk_bf16_f32 {v(f)}, {v(b)}, {v(b+1)}\nv_cvt_pk_bf16_f32 {v(f+1)}, {v(b+2)}, {v(b+3)}")
        for sw in ('v_permlane32_swap_b32', 'v_permlane16_swap_b32'):
            for ksd in range(4):
                f = QF + 16 * qb + 4 * ksd
                e(f"{sw} {v(f)}, {v(f+2)}\n{sw} {v(f+1)}, {v(f+3)}")
    MT = LACC
    for qb in range(4): e(f"v_mov_b32 {v(MT+qb)}, 0xff800000")
    e(f"s_cmp_lg_u32 {s(MODE)}, 0\ns_cbranch_scc1 L_maxpass\nL_maxdone:")
    o = Rec()
    o(f"L_maxpass:\nv_lshrrev_b32 v64, 4, {v(L16)}\nv_and_b32 v65, 15, v64\nv_lshrrev_b32 v64, 4, v64\nv_lshlrev_b32 v65, 8, v65\nv_lshlrev_b32 v64, 4, v64\nv_add_u32 v64, v64, v65")
    o(f"s_mov_b32 {s(T0)}, 0\nL_maxloop:")
    for kb in range(4):
        if kb: o(f"s_add_u32 {s(T0)}, {s(T0)}, 4096")
        for ksd in range(4): o(f"buffer_load_dwordx4 {a(16*kb + 4*ksd, 4)}, v64, {s(SK,4)}, {s(T0)} offen offset:{64*ksd}")
    o(f"s_add_u32 {s(T0)}, {s(T0)}, 4096\ns_waitcnt vmcnt(0)")
    for qb in range(4):
        for kb in range(4):
            for m in qk_chain(S0, qb, kb, 0, '0'): o(m)
    o("s_nop 7\ns_nop 1")
    for qb in range(4):
        for i in range(0, 16, 2): o(f"v_max3_f32 {v(MT+qb)}, {v(MT+qb)}, {v(16*qb+i)}, {v(16*qb+i+1)}")
    o(f"s_cmp_lt_u32 {s(T0)}, 524288\ns_cbranch_scc1 L_maxloop\ns_branch L_maxdone")
    OOL.extend(o)
    stamp(e)
    for qb in range(4):
        for m in qk_chain(S0, qb, 0, AV, '0'): e(m)
    MXR = [S1 + i for i in range(4)]; TT = [S1 + 4 + i for i in range(4)]
    for qb in range(4):
        b = sgrp(S0, qb, 0)
        e(f"v_max3_f32 {v(MXR[qb])}, {v(b)}, {v(b+1)}, {v(b+2)}\nv_max3_f32 {v(MXR[qb])}, {v(MXR[qb])}, {v(b+3)}, {v(MT+qb)}")
    allreduce(e, MXR, TT, 'v_max_f32', dpp=())
    for qb in range(4):
        for i in range(4): e(f"v_xor_b32 {v(NEGM+4*qb+i)}, 0x80000000, {v(MXR[qb])}")
    for qb in range(4):
        b = sgrp(S0, qb, 0)
        for i in range(4): e(f"v_sub_f32 {v(b+i)}, {v(b+i)}, {v(MXR[qb])}")
    M = [m for qb in range(4) for kb in range(1, 4) for m in qk_chain(S0, qb, kb, AV)]
    std = lambda j: kv_issue('V', j + 4, True) + kv_issue('K', j + 5, True)
    smd = phaseB(Em(), 1, std(1)); tgt = (smd.e, smd.v)
    sm = SM(0)
    def early(ei):
        qb, kb = ei >> 4, (ei >> 2) & 3
        return 0 if kb == 0 else 12 * qb + 4 * (kb - 1) + 6
    g = fill(48, sm, [], 0, 1, elimit=tgt[0], eearly=early, futureL=len(sm.V) - tgt[1])
    for k, (kind, t) in enumerate(kv_issue('V', 3, True)): g[4 + 8 * k - (3 if kind == 'S' and k else 0)].insert(0 if kind == 'S' else 9, t)
    g[47] += ["WAITVM V0", "s_barrier"]
    show('P', g, 48)
    e.weave(M, g)
    while sm.e < tgt[0]: e(sm.popE())
    while sm.v < tgt[1]: e(sm.popV())
    warm = [[f"s_mov_b32 m0, {L_DUM}"], [f"buffer_load_dword {v(DUM)}, {s(SX,4)}, {s(XSO)} offen lds @@warm"]] if OPT['warm'] else None
    phaseA(e, 0, sm, "WAITVM K2,V1,K3,V2 lgkm", tail=warm)
    down = [('S', f"s_add_u32 m0, {s(FM0)}, 16384"), ('D', dma(L16, RC, s(FDO), 0, 'fw', OPT['ff'])), ('D', dma(L16, RC, s(FDO), 1024, 'fw', OPT['ff']))]
    sm = phaseB(e, 0, kv_issue('K', 4, True) + down + std(0), target=tgt)
    stamp(e)
    e(f"s_mov_b32 {s(CNT)}, 0\n.p2align 6\nL_loop:")
    l0 = len(e.L)
    for j in range(1, 5):
        phaseA(e, j, sm, "s_waitcnt vmcnt(19) lgkmcnt(0)", ffn=j - 1)
        it = std(j)
        if j == 4:
            it = it[:2] + [('S', f"s_cmp_eq_u32 {s(CNT)}, 1"), ('S', f"s_cselect_b32 {s(RA)}, {s(PU)}, {s(RA)}"), ('S', f"s_cselect_b32 {s(RA+1)}, {s(PU+1)}, {s(RA+1)}")] + it[2:3] + \
                 [('S', f"s_cmp_eq_u32 {s(CNT)}, 3"), ('S', f"s_cselect_b32 {s(FW)}, 99, {s(FW)}")] + it[3:4] + \
                 [('S', f"s_sub_u32 {s(FSO)}, {s(FSUM)}, {s(FSO)}"), ('S', f"s_add_u32 {s(FM0)}, {s(FM0)}, {s(FD)}"), ('S', f"s_sub_u32 {s(FD)}, 8192, {s(FD)}")] + it[4:]
        sm = phaseB(e, j, it, target=tgt)
    e(f"s_add_u32 {s(CNT)}, {s(CNT)}, 1\ns_cmp_lt_u32 {s(CNT)}, 6\ns_cbranch_scc1 L_loop")
    loop = e.L[l0:]
    for p in check(loop + loop, 'loop'): print(p, file=sys.stderr)
    n = len(e.vm)
    for i in range(n - 36, n):
        t = e.vm[i]
        if t != 'fw': e.vm[i] = t[0] + str(int(t[1:]) + 20)
    stamp(e, grp=9)
    key_loads = [f"buffer_load_dwordx4 {v(KEYR+4*i,4)}, {v(L16)}, {s(SWS,4)}, {s(SKEY)} offen offset:{1024*i} sc1 @@key" for i in range(2)]
    for j in range(25, 31):
        phaseA(e, j, sm, f"WAITVM K{min(j+2,31)},V{j+1}{',key' if j == 27 else ''} lgkm")
        items = []; extra = {}; L = None
        if j == 25:
            items += [('S', f"s_mov_b32 {s(SKEY)}, {WS_KEY}")] + [('D', t) for t in key_loads]
        if j + 4 < 32: items += kv_issue('V', j + 4, True)
        if j + 5 < 32: items += kv_issue('K', j + 5, True)
        if j == 26:
            if OPT['roto']: items = items[:3] + [('S', f"s_lshr_b32 {s(T0)}, s2, 6"), ('S', f"s_lshl_b32 {s(T0)}, {s(T0)}, 1"), ('S', f"s_add_u32 {s(ROT)}, {s(T0)}, {s(SCB)}"), ('S', f"s_and_b32 {s(ROT)}, {s(ROT)}, 7")] + items[3:]
            else: items = items[:3] + [('S', f"s_mov_b32 {s(ROT)}, 0")] + items[3:]
        if j == 27:
            items += [('S', f"s_lshl_b32 {s(OFFK)}, {s(ROT)}, 17")] + wo_issue(0, OFFK)
        if j >= 28:
            if j == 28: items += [('S', f"s_add_u32 {s(OFFV)}, {s(OFFK)}, {3*32768}"), ('S', f"s_and_b32 {s(OFFV)}, {s(OFFV)}, 0xfffff")]
            items += wo_issue(j - 27, OFFK) + wo_issue(j - 24, OFFV)
        if j == 29:
            items = [('S', f"s_lshl_b32 {s(XSO)}, {s(SRB)}, 2"), ('S', f"s_add_u32 {s(XSO)}, {s(XSO)}, s3"), ('S', f"s_lshl_b32 {s(XSO)}, {s(XSO)}, 4")] + items[:5] + [
              ('S', f"s_lshl_b32 {s(WSO)}, {s(XSO)}, 10"), ('S', f"s_lshl_b32 {s(T0)}, {s(SCB)}, 7"), ('S', f"s_add_u32 {s(WSO)}, {s(WSO)}, {s(T0)}")] + items[5:12] + [
              ('S', f"s_lshl_b32 {s(SFS)}, {s(XSO)}, 3"), ('S', f"s_add_u32 {s(SFS)}, {s(SFS)}, {WS_ST}")] + items[12:]
        if j == 30: L = v_reads(31, AK)
        if j == 27:
            spin_check(e, 'L_key', key_loads, [KEYR + 1, KEYR + 3, KEYR + 5, KEYR + 7])
            r = Rec()
            r(f"v_max3_u32 {v(KEYR)}, {v(KEYR)}, {v(KEYR+2)}, {v(KEYR+4)}\nv_max_u32 {v(KEYR)}, {v(KEYR)}, {v(KEYR+6)}")
            allreduce(r, [KEYR], [KEYR + 1], 'v_max_u32')
            r(f"v_readfirstlane_b32 {s(SKEY)}, {v(KEYR)}")
            r(f"s_andn2_b32 {s(STS)}, 2047, {s(SKEY)}")
            srd(r, RA, PX, 2097152)
            r(f"s_lshl_b32 {s(T0)}, {s(STS)}, 10\ns_lshl_b32 {s(T1)}, {s(STS)}, 3\ns_add_u32 {s(T1)}, {s(T1)}, {WS_ST}")
            r(f"v_mov_b32 {v(KEYR+6)}, 0\nv_lshrrev_b32 {v(KEYR+7)}, 3, {v(L16)}")
            r(f"buffer_load_dwordx4 {v(KEYR,4)}, {v(L16)}, {s(RA,4)}, {s(T0)} offen @@xs")
            r(f"buffer_load_dwordx2 {v(KEYR+4,2)}, {v(KEYR+6)}, {s(SWS,4)}, {s(T1)} offen sc1 @@xs")
            r(f"s_lshl_b32 {s(T1)}, {s(SCB)}, 7\ns_add_u32 {s(T0)}, {s(T0)}, {s(T1)}")
            r(f"buffer_load_ushort {v(KEYR+6)}, {v(KEYR+7)}, {s(RA,4)}, {s(T0)} offen @@xs")
            for k, t in enumerate(r): extra[2 + 2 * k] = [t]
        sm = phaseB(e, j, items, L=L, target=tgt if j < 30 else None, extra=extra, endbar=(j == 30))
        stamp(e, grp=8)
    XR, GP, FST = 224, 232, 232
    M, st = pv_mfmas(31, src=AK, ksmajor=(3,))
    items = wo_issue(7, OFFV)
    items += [('D', f"buffer_load_dwordx4 {v(XR,4)}, {v(OUTV)}, {s(RA,4)}, {s(WSO)} offen @@ex"),
              ('D', f"buffer_load_dwordx4 {v(XR+4,4)}, {v(OUTV)}, {s(RA,4)}, {s(WSO)} offen offset:16 @@ex"),
              ('D', f"buffer_load_dwordx2 {v(FST,2)}, {v(STV)}, {s(SWS,4)}, {s(SFS)} offen sc1 @@ex")]
    g = fill(NB, sm, [], 0, 1, finish=True)
    assert sm.remE() == 0 and sm.remV() == 0
    g = pack_gaps(NB - 4, items, [], start=max(g) + 1, fixed=g)
    for p, its in g.items():
        for t in its:
            if 'cvt_pk' in t:
                r = int(t.split()[1].strip('v,')) - S1
                assert p < st[(r >> 4, (r >> 3) & 1)] - 1, (t, p, st)
    g[NB - 4] = g.get(NB - 4, []) + [f"v_mov_b32 {v(TRLO)}, {v(TRB)}", f"v_xor_b32 {v(TRLO+1)}, 32, {v(TRB)}"]
    g[NB - 3] = g.get(NB - 3, []) + [f"v_xor_b32 {v(TRLO+2)}, 64, {v(TRB)}", f"v_xor_b32 {v(TRLO+3)}, 96, {v(TRB)}"]
    g[NB - 2] = g.get(NB - 2, []) + [f"v_add_u32 {v(TRB)}, 7168, {v(WOV)}", f"v_add_u32 {v(DUM)}, {2*7168}, {v(WOV)}"]
    g[NB - 1] = g.get(NB - 1, []) + [f"v_add_u32 {v(TCH)}, {3*7168}, {v(WOV)}"]
    show('B31', g, NB)
    e.weave(M, g)
    stamp(e, grp=9)
    IL = NEGM; TT = [NEGM + 8 + i for i in range(4)]; CHK = NEGM + 12; ZB = QF
    vq_ = [q for q in range(4) if q not in OPT['msum']]
    if vq_: allreduce(e, [LV + q for q in vq_], [TT[q] for q in vq_], dpp=())
    e(f"s_lshl_b32 {s(T0)}, {s(SQB)}, 2\ns_add_u32 {s(T0)}, {s(T0)}, s3\ns_lshl_b32 {s(T0)}, {s(T0)}, 19\ns_lshl_b32 {s(T1)}, {s(SH)}, 14\ns_add_u32 {s(T0)}, {s(T0)}, {s(T1)}")
    e(f"s_mov_b32 {s(T1)}, {fh(OPT['lthr'])}")
    for q in range(4): e(f"v_rcp_f32 {v(IL+2*q)}, {v(LV + q if q in vq_ else lacc(q))}")
    e("WAITVM w0,w1,w2")
    side = Rec()
    for i in range(4): side(f"v_mov_b32 {v(ZB+i)}, 0")
    for n in range(3):
        for t in wo_reads(n): side(t)
    for q in range(4):
        src = LV + q if q in vq_ else lacc(q)
        side(f"v_cmp_nlt_f32 {s(RB + 2*q, 2)}, {v(src)}, {s(T1)}")
    for i in range(4): side(f"v_add_u32 {v(TRHI+i)}, 65536, {v(TRLO+i)}")
    side(f"s_or_b64 {s(RB,2)}, {s(RB,2)}, {s(RB+2,2)}\ns_or_b64 {s(RB+4,2)}, {s(RB+4,2)}, {s(RB+6,2)}\ns_or_b64 {s(RB,2)}, {s(RB,2)}, {s(RB+4,2)}")
    side("WAITVM w3,w4,w5,w6,w7")
    for n in range(3, 8):
        for t in wo_reads(n): side(t)
    pend = None
    for t in range(4):
        for q in range(4):
            b = ((t * 4 + q) & 7) * 16
            for k in range(8):
                e(f"v_accvgpr_read_b32 {v(b+k)}, {a(AO + 4*(8*q + 2*t) + k)}")
                if k in (1, 3, 5) and side: e(side.pop(0))
            if pend: e(pend)
            for k in range(8):
                e(f"v_mul_f32 {v(b+k)}, {v(b+k)}, {v(IL+2*q)}")
                if k in (1, 4) and side: e(side.pop(0))
            for k in range(4): e(f"v_cvt_pk_bf16_f32 {v(b+8+k)}, {v(b+2*k)}, {v(b+2*k+1)}")
            e(f"buffer_store_dwordx4 {v(b+8,4)}, {v(L16)}, {s(SWS,4)}, {s(T0)} offen offset:{q*1024} sc1 @@o")
            pend = f"{MF} {v(CHK,4)}, {v(ZB,4)}, {v(b+8,4)}, {'0' if t == 0 and q == 0 else v(CHK,4)}"
        if t < 3: e(f"s_add_u32 {s(T0)}, {s(T0)}, 4096")
    e(pend)
    for x in side: e(x)
    stamp(e)
    e(f"s_lshl_b32 {s(T1)}, s3, 2\ns_add_u32 {s(T1)}, {s(T1)}, {L_FAIL}\nv_mov_b32 v1, {s(T1)}\nv_mov_b32 v2, {s(TAG)}\nv_mov_b32 v3, {L_FAIL}\ns_waitcnt lgkmcnt(0)")
    e(f"v_cmp_u_f32 vcc, {v(CHK)}, {v(CHK)}\ns_or_b64 vcc, vcc, {s(RB,2)}\ns_cmp_lg_u64 vcc, 0\ns_cselect_b32 {s(T0)}, 1, 0\ns_andn2_b32 {s(T0)}, {s(T0)}, {s(MODE)}")
    e(f"v_mov_b32 v0, {s(T0)}\nds_write_b32 v1, v0")
    for n in range(8, 8 + OPT['npre']):
        for k, t in wo_issue(n, OFFV): e(t)
    e(f"s_lshl_b32 {s(T0)}, {s(SQB)}, 5\ns_add_u32 {s(T0)}, {s(T0)}, {s(SH)}\ns_lshl_b32 {s(T0)}, {s(T0)}, 2\ns_add_u32 {s(T0)}, {s(T0)}, {WS_FLAG}")
    e(f"s_cmp_eq_u32 s3, 0\ns_cselect_b32 {s(T0)}, {s(T0)}, {FAR}")
    e("WAITVM o lgkm\ns_barrier\nds_read_b128 v[4:7], v3")
    e(f"s_waitcnt lgkmcnt(0)\nv_or3_b32 v4, v4, v5, v6\nv_or_b32 v4, v4, v7\nv_readfirstlane_b32 {s(T1)}, v4\ns_cmp_lg_u32 {s(T1)}, 0\ns_cbranch_scc1 L_fail")
    OOL.extend(f"L_fail:\ns_mov_b32 {s(MODE)}, 1\ns_waitcnt vmcnt(0)\ns_barrier\ns_branch L_restart".split('\n'))
    e(f"buffer_store_dword v2, {v(Z0)}, {s(SWS,4)}, {s(T0)} offen sc1")
    e(f"s_add_u32 {s(SFS)}, {s(T0)}, {WS_FLAG2 - WS_FLAG}")
    stamp(e)
    def mix(items, stream, per):
        for k, t in items:
            e(t)
            if k == 'D':
                for _ in range(per):
                    if stream: e(stream.pop(0))
    f_ = Rec()
    XS, SS, XC = KEYR, KEYR + 4, KEYR + 6
    FA, FB = 64, 128
    e("WAITVM xs,fw,ex")
    f_(f"v_lshlrev_b32 {v(SS+1)}, 16, {v(SS)}\nv_and_b32 {v(SS)}, 0xffff0000, {v(SS)}\nv_rcp_f32 {v(SS+1)}, {v(SS+1)}\nv_lshlrev_b32 v8, 16, {v(XC)}")
    f_(f"v_lshrrev_b32 v18, 4, {v(L16)}\nv_lshrrev_b32 v19, 4, v18\nv_lshlrev_b32 v19, 3, v19\nv_bfe_u32 v20, v18, 2, 2\nv_add_u32 v19, v19, v20\nv_lshlrev_b32 v19, 4, v19")
    f_(f"v_and_b32 v20, 1, v18\nv_lshlrev_b32 v20, 3, v20\nv_add_u32 v19, v19, v20\nv_bfe_u32 v20, v18, 1, 1\nv_lshlrev_b32 v20, 13, v20\nv_add_u32 v19, v19, v20\nv_add_u32 v19, {L_F}, v19")
    fr = [f"ds_read_b64_tr_b16 {v(FA+4*kk+2*jh,2)}, v19 offset:{512*kk + 64*jh}" for kk in range(16) for jh in range(2)]
    x_ = Rec()
    for j in range(4): unpack(x_, 2 * j, XS + j)
    for j in range(9): x_(f"v_sub_f32 {v(j)}, {v(j)}, {v(SS)}")
    bfrn(x_, 0, 10)
    for j in range(9): x_(f"v_mul_f32 {v(j)}, {v(j)}, {v(SS+1)}")
    for j in range(4): x_(f"v_cvt_pk_bf16_f32 {v(12+j)}, {v(2*j)}, {v(2*j+1)}")
    x_(f"v_cvt_pk_bf16_f32 v8, v8, v8\ns_lshl_b32 {s(T1)}, s3, 10\ns_add_u32 {s(T1)}, {s(T1)}, {L_F + 24576}\nv_add_u32 v16, {s(T1)}, {v(L16)}\nv_lshlrev_b32 {v(STV)}, 16, v8")
    while x_ or fr:
        if x_: f_(x_.pop(0))
        if fr: f_(fr.pop(0))
    f_("ds_write_b128 v16, v[12:15]")
    f_(f"v_lshrrev_b32 v17, 8, {v(L16)}\nv_lshlrev_b32 v17, 4, v17\nv_add_u32 v17, {s(T1)}, v17")
    for kk in range(16): f_(f"ds_read_b128 {v(FB+4*kk,4)}, v17 offset:{64*kk}")
    f_(f"v_lshlrev_b32 v18, 2, v18\ns_lshl_b32 {s(T1)}, s3, 8\ns_add_u32 {s(T1)}, {s(T1)}, {L_F + 16384}\nv_add_u32 v18, {s(T1)}, v18")
    for f in range(8): f_(f"ds_read_b32 {v(32+f)}, v18 offset:{1024*f}")
    f_(f"v_lshrrev_b32 v30, 1, {v(L16)}\ns_lshl_b32 {s(CNT)}, {s(SU)}, 11\ns_lshl_b32 {s(T1)}, s3, 9\ns_add_u32 {s(CNT)}, {s(CNT)}, {s(T1)}\ns_add_u32 {s(CNT)}, {s(CNT)}, {WS_Y}")
    f_("s_waitcnt lgkmcnt(8)")
    for kk in range(16): f_(f"{MF} {v(20 + 4*(kk&1), 4)}, {v(FA+4*kk,4)}, {v(FB+4*kk,4)}, {'0' if kk < 2 else v(20 + 4*(kk&1), 4)}")
    f_("s_waitcnt lgkmcnt(0)")
    for f in range(8): unpack(f_, 40 + 2 * f, 32 + f)
    for r in range(4): f_(f"v_add_f32 {v(20+r)}, {v(20+r)}, {v(24+r)}")
    bfrn(f_, 20, 4)
    for r in range(4): f_(f"v_mov_b32 {v(24+r)}, {v(20+r)}")
    for r in range(4): f_(f"v_permlane32_swap_b32 {v(20+r)}, {v(24+r)}")
    silun(f_, 20, 32, 4); bfrn(f_, 20, 4)
    for r in range(4): f_(f"v_mul_f32 {v(20+r)}, {v(20+r)}, {v(24+r)}")
    bfrn(f_, 20, 4)
    for f in range(8): f_(f"v_readlane_b32 {s(RB+f)}, {v(20+(f&3))}, {16*(f>>2)}")
    for f in range(8):
        for h in range(2): f_(f"{'v_mul_f32' if f == 0 else 'v_fmac_f32'} {v(28+h)}, {s(RB+f)}, {v(40+2*f+h)}")
    srd(f_, RC, PWS, WS_Y + NFFN * 2048)
    f_(f"buffer_store_dwordx2 v[28:29], v30, {s(RC,4)}, {s(CNT)} offen sc1 @@ys")
    mix([x for n in range(8 + OPT['npre'], 16) for x in wo_issue(n, OFFV)], f_, OPT['mixf'])
    for x in f_: e(x)
    stamp(e)
    e("WAITVM w8,w9,w10,w11,w12,w13,w14,w15")
    for n in range(8, 16):
        for t in wo_reads(n): e(t)
    G, TG = 64, 80
    g_ = Rec()
    g_(f"v_lshlrev_b32 {v(FST+1)}, 16, {v(FST)}\nv_and_b32 {v(FST)}, 0xffff0000, {v(FST)}\nv_rcp_f32 {v(FST+1)}, {v(FST+1)}")
    for j in range(8): unpack(g_, G + 2 * j, XR + j)
    for j in range(16): g_(f"v_sub_f32 {v(G+j)}, {v(G+j)}, {v(FST)}")
    bfrn(g_, G, 16)
    for j in range(16): g_(f"v_mul_f32 {v(G+j)}, {v(G+j)}, {v(FST+1)}")
    bfrn(g_, G, 16)
    silun(g_, G, TG, 16)
    for j in range(8): g_(f"v_cvt_pk_bf16_f32 {v(GP+j)}, {v(G+2*j)}, {v(G+2*j+1)}")
    YV, FL, YB = KEYR, 192, 192
    BO0, BO1 = MX, MX + 1
    e(f"s_lshr_b32 {s(T0)}, {s(STS)}, 6\ns_cmp_eq_u32 {s(T0)}, {s(SRB)}\ns_cselect_b32 {s(RC+2)}, {WS_Y + NFFN*2048}, 0\ns_cselect_b64 {s(RB,2)}, -1, 0")
    e(f"v_bfe_u32 {v(YV+1)}, {v(L16)}, 4, 3\nv_lshlrev_b32 {v(YV+1)}, 2, {v(YV+1)}")
    e(f"s_and_b32 {s(T0)}, s2, 7\ns_lshl_b32 {s(T0)}, {s(T0)}, 7\ns_lshl_b32 {s(T1)}, s3, 5\ns_add_u32 {s(T0)}, {s(T0)}, {s(T1)}\ns_add_u32 {s(MX+2)}, {s(T0)}, {WS_FLAG}")
    e(f"s_lshl_b32 {s(T0)}, {s(SRB)}, 19\ns_lshl_b32 {s(T1)}, s3, 17\ns_add_u32 {s(T0)}, {s(T0)}, {s(T1)}"); srd(e, SX, PWS, 0x20000, s(T0))
    e(f"s_lshl_b32 {s(BO0)}, {s(ROT)}, 14\ns_add_u32 {s(BO1)}, {s(BO0)}, 4096")
    e(f"s_lshl_b32 {s(OFFK)}, s3, 13\ns_lshl_b32 {s(T0)}, {s(SCB)}, 8\ns_add_u32 {s(OFFK)}, {s(OFFK)}, {s(T0)}\ns_add_u32 {s(OFFK)}, {s(OFFK)}, {WS_Y}")
    e(f"v_lshrrev_b32 {v(YV)}, 8, {v(L16)}\nv_lshlrev_b32 {v(YV)}, 11, {v(YV)}\nv_and_b32 {v(YV+3)}, 0xf0, {v(L16)}\nv_add_u32 {v(YV)}, {v(YV)}, {v(YV+3)}")
    e(f"v_mov_b32 v31, {s(TAG)}\nWAITVM ys lgkm\ns_barrier")
    e(f"buffer_store_dword v31, {v(Z0)}, {s(SWS,4)}, {s(SFS)} offen sc1")
    poll = [f"buffer_load_dword {v(YV+2)}, {v(YV+1)}, {s(SWS,4)}, {s(MX+2)} offen sc1 @@poll"]
    pp = 16 + OPT['pollat']
    mix([x for n in range(16, pp) for x in wo_issue(n, OFFV)] + [('D', poll[0])] + [x for n in range(pp, 24) for x in wo_issue(n, OFFV)], g_, OPT['mixg'])
    for x in g_: e(x)
    stamp(e)
    e("WAITVM poll")
    spin_check(e, 'L_poll', poll, [YV + 2])
    stamp(e, grp=17)
    BR = 64
    def bload(n, i): return f"buffer_load_dwordx4 {v(BR + 16*(n & 7) + 4*i, 4)}, {v(L16)}, {s(SX,4)}, {s(BO1 if n & 1 else BO0)} offen offset:{1024*i} {OPT['fo']} @@b{n}_{i}"
    def badv(p): return [f"s_add_u32 {s(BO0)}, {s(BO0)}, 8192"] + ([f"s_and_b32 {s(BO0)}, {s(BO0)}, 0x1ffff"] if p & 1 else []) + [f"s_add_u32 {s(BO1)}, {s(BO0)}, 4096"]
    for p in range(4):
        for i in range(4): e(bload(2 * p, i)); e(bload(2 * p + 1, i))
        for t in badv(p): e(t)
    allf = [f"buffer_load_dwordx4 {v(FL,4)}, {v(L16)}, {s(SWS,4)}, {s(T1)} offen sc1 @@allf"]
    e(f"s_mov_b32 {s(T1)}, {WS_FLAG2}"); e(allf[0])
    YS = KEYR + 4
    def yload(i, k): return f"buffer_load_dwordx4 {v(YB + 4*k, 4)}, {v(YV)}, {s(RC,4)}, {s(OFFK)} offen sc1 @@y{i}"
    yadv = f"s_add_u32 {s(OFFK)}, {s(OFFK)}, 32768"
    for p in range(16):
        M = []; fixed = {}
        for i in range(4):
            for nb in range(4):
                d = v(4 * (4 * nb + i), 4)
                for h in range(2):
                    n = 2 * p + h
                    M.append(f"{MF} {d}, {a(aloc(n) + 4*nb, 4)}, {v(BR + 16*(n & 7) + 4*i, 4)}, {'0' if n == 0 else d}")
        pre = []
        if p == 0: pre.append("WAITVM b0_0,b1_0")
        nxt = lambda i: (f"b{2*p}_{i},b{2*p+1}_{i}" if i < 4 else f"b{2*p+2}_0,b{2*p+3}_0")
        lq = []; dq = []; vq = Rec()
        lg = False
        if 1 <= p <= 4:
            lq = wo_reads(2 * p + 14) + wo_reads(2 * p + 15); lg = True
            if p == 1: pre.append("WAITVM w16,w17,w18,w19,w20,w21,w22,w23")
        if 2 <= p <= 5: dq = wo_issue(2 * p + 20, OFFV) + wo_issue(2 * p + 21, OFFV)
        if 8 <= p <= 11:
            lq = wo_reads(2 * p + 8) + wo_reads(2 * p + 9); lg = True
            pre.append(f"WAITVM w{2*p+8},w{2*p+9}")
        if p == 2: pre.append("WAITVM allf"); pre.append(('spin', 'L_allf', [f"s_mov_b32 {s(T1)}, {WS_FLAG2}"] + allf, [FL, FL + 1, FL + 2, FL + 3], RB))
        if p == 6:
            for k in range(6): dq += [('D', yload(0, k)), ('S', yadv)]
        if p == 9:
            pre.append("WAITVM y0")
            for r in range(4): vq(f"v_add_f32 {v(YS+r)}, {v(YB+r)}, {v(YB+4+r)}")
        if p == 10:
            for k in range(2, 6):
                for r in range(4): vq(f"v_add_f32 {v(YS+r)}, {v(YS+r)}, {v(YB+4*k+r)}")
        if p == 11:
            for k in range(5): dq += [('D', yload(1, k)), ('S', yadv)]
        if p == 13:
            pre.append("WAITVM y1")
            for k in range(5):
                for r in range(4): vq(f"v_add_f32 {v(YS+r)}, {v(YS+r)}, {v(YB+4*k+r)}")
            allreduce(vq, [YS + r for r in range(4)], [YB + r for r in range(4)], dpp=())
            vq(f"v_and_b32 {v(YB)}, 0xf0, {v(L16)}\ns_lshl_b32 {s(T0)}, s3, 8\ns_add_u32 {s(T0)}, {s(T0)}, {L_YW}\nv_add_u32 {v(YB)}, {s(T0)}, {v(YB)}")
            vq(f"ds_write_b128 {v(YB)}, {v(YS,4)}")
            lg = True
        if p == 14:
            pre.append("s_barrier")
            vq(f"v_lshrrev_b32 {v(YB)}, 2, {v(L16)}\nv_add_u32 {v(YB)}, {L_YW}, {v(YB)}")
            for w in range(4): vq(f"ds_read_b32 {v(YB+4+w)}, {v(YB)} offset:{256*w}")
            vq(f"s_and_b32 {s(T0)}, {s(SKEY)}, 0xffff0000\ns_xor_b32 {s(T1)}, {s(T0)}, 0x80000000\ns_xor_b32 {s(CNT)}, {s(T0)}, 0xffff0000\ns_bitcmp1_b32 {s(T0)}, 31\ns_cselect_b32 {s(T0)}, {s(T1)}, {s(CNT)}")
            vq(f"v_mov_b32 {v(YB+8)}, {s(T0)}\nv_mul_f32 {v(YB+8)}, {fh(-LOG2E)}, {v(YB+8)}\nv_exp_f32 {v(YB+8)}, {v(YB+8)}\nv_lshrrev_b32 {v(YB+1)}, 3, {v(L16)}\nv_add_f32 {v(YB+8)}, 1.0, {v(YB+8)}\nv_rcp_f32 {v(YB+8)}, {v(YB+8)}")
            vq(f"s_lshl_b32 {s(T0)}, s3, 7\ns_add_u32 {s(T0)}, {s(T0)}, {L_GS}\nv_add_u32 {v(YB+1)}, {s(T0)}, {v(YB+1)}")
            bfr1(vq, YB + 8)
            vq("s_waitcnt lgkmcnt(0)")
            vq(f"v_add_f32 {v(YB+4)}, {v(YB+4)}, {v(YB+5)}\nv_add_f32 {v(YB+6)}, {v(YB+6)}, {v(YB+7)}\nv_add_f32 {v(YB+4)}, {v(YB+4)}, {v(YB+6)}")
            bfr1(vq, YB + 4)
            vq(f"v_mul_f32 {v(YB+4)}, {v(YB+4)}, {v(YB+8)}"); bfr1(vq, YB + 4)
            vq(f"v_add_f32 {v(YB+4)}, {v(YB+4)}, {v(STV)}"); bfr1(vq, YB + 4)
            silun(vq, YB + 4, YB + 5, 1)
            vq(f"v_cvt_pk_bf16_f32 {v(YB+4)}, {v(YB+4)}, {v(YB+4)}\nds_write_b16 {v(YB+1)}, {v(YB+4)}")
            vq(f"v_bfe_u32 {v(YB+2)}, {v(L16)}, 4, 2\nv_lshlrev_b32 {v(YB+2)}, 5, {v(YB+2)}\nv_add_u32 {v(YB+2)}, {s(T0)}, {v(YB+2)}")
            vq(f"ds_read_b128 {v(YB+8,4)}, {v(YB+2)}\nds_read_b128 {v(YB+12,4)}, {v(YB+2)} offset:16")
            lg = True
        if p == 15:
            vq(f"s_sub_u32 {s(T0)}, {s(STS)}, {s(XSO)}\nv_lshrrev_b32 {v(YB)}, 6, {v(L16)}\nv_cmp_eq_u32 vcc, {s(T0)}, {v(YB)}\ns_nop 0")
            for j in range(8): vq(f"v_cndmask_b32 {v(GP+j)}, {v(GP+j)}, {v(YB+8+j)}, vcc")
            R = YB + 16
            vq(f"v_lshrrev_b32 {v(YB)}, 4, {v(L16)}\nv_and_b32 {v(YB+1)}, 15, {v(YB)}\nv_lshrrev_b32 {v(YB+2)}, 4, {v(YB)}\nv_lshlrev_b32 {v(YB+3)}, 8, {v(YB+1)}\nv_xor_b32 {v(YB+2)}, {v(YB+2)}, {v(YB+1)}\nv_lshlrev_b32 {v(YB+2)}, 4, {v(YB+2)}")
            vq(f"s_lshl_b32 {s(T0)}, s3, 14\nv_add3_u32 {v(R)}, {v(YB+3)}, {v(YB+2)}, {s(T0)}")
            for k in range(1, 4): vq(f"v_xor_b32 {v(R+k)}, {k << 6}, {v(R)}")
            vq(f"v_lshrrev_b32 {v(YB+1)}, 2, {v(YB)}\nv_lshlrev_b32 {v(YB+3)}, 8, {v(YB+1)}\nv_and_b32 {v(YB+2)}, 3, {v(YB)}\nv_lshlrev_b32 {v(YB+2)}, 2, {v(YB+2)}\nv_xor_b32 {v(YB+2)}, {v(YB+2)}, {v(YB+1)}\nv_lshlrev_b32 {v(YB+2)}, 4, {v(YB+2)}")
            vq(f"s_lshl_b32 {s(T0)}, s3, 12\nv_add3_u32 {v(R+4)}, {v(YB+3)}, {v(YB+2)}, {s(T0)}")
            for k in range(1, 4): vq(f"v_xor_b32 {v(R+4+k)}, {k << 4}, {v(R+4)}")
        for i in range(4):
            gp = 8 * i + 7
            w = []
            if not (p == 15 and i == 3): w.append(f"WAITVM {nxt(i+1)}" + (" lgkm" if (i == 3 and lg) else ""))
            fixed[gp] = w
            if p < 12:
                if i < 3: fixed[gp + 1] = [bload(2 * p + 8, i)]; fixed[gp + 2] = [bload(2 * p + 9, i)]
            if p >= 1 and p < 13 and i == 0:
                fixed[0] = [bload(2 * p + 6, 3)]; fixed[1] = [bload(2 * p + 7, 3)]; fixed[2] = badv(p + 3)
        for x in pre:
            if isinstance(x, tuple): spin_check(e, x[1], x[2], x[3], x[4])
            else: e(x)
        if p in (0, 1, 2, 4, 6, 8, 10, 12, 14): stamp(e, grp=16)
        g = pack_gaps(32, dq, lq, vq, lend=28, fixed=fixed)
        if vq: g[31] = list(vq) + g.get(31, []); del vq[:]
        show(f'O{p}', g, 32)
        e.weave(M, g)
    stamp(e, grp=17)
    R = YB + 16
    for nb in range(4):
        for i in range(4): e(f"ds_write_b128 {v(R+nb)}, {v(4*(4*nb+i), 4)} offset:{i*4096}")
    GF, XF = 128, 144
    for j in range(8): unpack(e, GF + 2 * j, GP + j)
    for j in range(8): unpack(e, XF + 2 * j, XR + j)
    srd(e, RA, POUT, 2097152)
    e("s_waitcnt lgkmcnt(0)\ns_barrier")
    for sw_ in range(4):
        for i in range(4): e(f"ds_read_b128 {v(64 + 16*sw_ + 4*i, 4)}, {v(R+4+i)} offset:{sw_*16384}")
        if sw_ == 2: e("s_waitcnt lgkmcnt(4)")
    for j in range(16): e(f"v_add_f32 {v(64+j)}, {v(64+j)}, {v(80+j)}")
    e("s_waitcnt lgkmcnt(4)")
    for j in range(16): e(f"v_add_f32 {v(64+j)}, {v(64+j)}, {v(96+j)}")
    e("s_waitcnt lgkmcnt(0)")
    for j in range(16): e(f"v_add_f32 {v(64+j)}, {v(64+j)}, {v(112+j)}")
    bfrn(e, 64, 16)
    for j in range(16): e(f"v_mul_f32 {v(64+j)}, {v(64+j)}, {v(GF+j)}")
    bfrn(e, 64, 16)
    for j in range(16): e(f"v_add_f32 {v(64+j)}, {v(64+j)}, {v(XF+j)}")
    for j in range(8): e(f"v_cvt_pk_bf16_f32 {v(80+j)}, {v(64+2*j)}, {v(65+2*j)}")
    e(f"buffer_store_dwordx4 v[80:83], {v(OUTV)}, {s(RA,4)}, {s(WSO)} offen\nbuffer_store_dwordx4 v[84:87], {v(OUTV)}, {s(RA,4)}, {s(WSO)} offen offset:16")
    e(f"s_add_u32 {s(T0)}, s2, s3\ns_cmp_eq_u32 {s(T0)}, 0\ns_cselect_b32 {s(T0)}, {WS_EPOCH}, {FAR}\ns_add_u32 {s(T1)}, {s(EPO)}, 1\nv_mov_b32 v0, {s(T1)}")
    e(f"buffer_store_dword v0, {v(Z0)}, {s(SWS,4)}, {s(T0)} offen")
    e("s_waitcnt vmcnt(0)")
    stamp_out(e)
    e("L_end:\ns_endpgm")
    return e.L

HDR = open('recurrent_scan__mha_block_cached__moe_arch_mod__prompt.s.ref').read().split('; Override launch')[0]

def main():
    L = kernel()
    rep = []
    L2 = autonop(L, rep)
    if OPT.get('shownop'):
        for k, why in rep: print('nop', k, why, file=sys.stderr)
    for p in check(L2, 'main'): print(p, file=sys.stderr)
    O2 = autonop(OOL)
    out = [HDR.rstrip(), "; @launch grid=(256,1,1) block=(256,1,1) lds=163840", '.amdgcn_target "amdgcn-amd-amdhsa--gfx950"\n.text']
    out.append(f".globl {KNAME}\n.p2align 8\n.type {KNAME},@function\n{KNAME}:")
    out += ['    ' + x if not x.endswith(':') else x for x in L2 + O2]
    out.append(f""".section .rodata,"a"
.p2align 6
.amdhsa_kernel {KNAME}
  .amdhsa_next_free_vgpr 512
  .amdhsa_next_free_sgpr 102
  .amdhsa_accum_offset 256
  .amdhsa_group_segment_fixed_size 0
  .amdhsa_kernarg_size 104
  .amdhsa_user_sgpr_count 2
  .amdhsa_user_sgpr_kernarg_segment_ptr 1
  .amdhsa_system_sgpr_workgroup_id_x 1
.end_amdhsa_kernel""")
    open(sys.argv[1], 'w').write('\n'.join(out) + '\n')

main()
```

```python
import sys, struct, math
sys.path.insert(0, 'dev')
from asmlib import *

OPT = dict(msum=(1, 3), eB=36, lthr=2.0**60, fq='', fx='', fkv='', fwo='', ff='', rotq=1, roto=0, q0bar=20, npre=3, mixf=10, mixg=5, pollat=5, fo='sc1', warm=1)
for arg in sys.argv[2:]:
    k, val = arg.split('=')
    OPT[k] = eval(val)

def f2u(x): return struct.unpack('<I', struct.pack('<f', x))[0]
def fh(x): return f"0x{f2u(x):08x}"
MF = 'v_mfma_f32_16x16x32_bf16'
LOG2E = 1.4426950408889634
QSCALE = LOG2E / math.sqrt(128.0)
KNAME = 'recurrent_scan__mha_block_cached__moe_arch_mod__prompt_kernel'

WS_O = 0
WS_ST = 16 << 20
WS_KEY = WS_ST + 16384
WS_FLAG = WS_KEY + 2048
WS_FLAG2 = WS_FLAG + 1024
WS_EPOCH = WS_FLAG + 2048
WS_Y = WS_ST + 32768
WS_DBG = 32 << 20
WS_SIZE = 268435456
NFFN = 172
FAR = 0x40000000
SPIN = 20000

S0, S1, QF, NEGM, LACC, ONES, VA, KA, DKV, LV = 0, 64, 128, 192, 208, 216, 220, 228, 232, 236
WOV, OUTV, STV, TRB, KEYR, L16, DUM, TCH, Z0 = 240, 241, 242, 243, 244, 252, 253, 254, 255
AO, AK, AV = 0, 128, 192
XVO, WVO, XRA, CSA, CSW, CSACC, RAW, STT = 128, 136, 140, 144, 146, 148, 156, 168
STQ = 184
def CSV(db): return 192 + 4 * db if db < 6 else 176 + 4 * (db - 6)
SX, SWQ, SK, SV_, SWS = 4, 8, 12, 16, 20
SWO = 8
MK, MV = 24, 28
OFFK, OFFV, CNT, SH, SQB, XSO, WSO = 32, 33, 34, 35, 36, 37, 38
MX = 39
T0, T1 = 42, 43
PX, PK, PV_, PWQ, PWS = 44, 46, 48, 50, 52
SKEY, STS, SFS = 54, 55, 58
PWO, PWR, PG, PU, PD, POUT = 56, 60, 62, 64, 66, 68
TAG, EPO, SRB, SCB, MODE, SU = 70, 71, 72, 73, 74, 75
RA, RB, RC = 76, 80, 84
ROT = 59
FSO, FSUM, FM0, FD, FW, FDO = 80, 81, 82, 83, 39, 40
XBASE = [0, 32768, 131072]
def xslot(st): return {2: 0, 5: 0, 0: 1, 3: 1, 6: 1, 1: 2, 4: 2, 7: 2}[st]
def wslot(st): return 1 + st % 3
L_CS = 131072
L_FAIL = L_CS + 512
L_YW = L_CS + 576
L_F = L_CS + 2048
L_GS = L_F + 28672
L_KEY = L_CS + 528
L_DUM = L_GS + 512
assert L_DUM + 1024 <= 163840

NST = [0]
STREG = list(range(88, 100)) + [62, 63, 60, 61]
def stamp(e, real=False, grp=1):
    if not (OPT.get('stamp', 0) & grp): return
    i = NST[0]; NST[0] += 1
    e(f"{'s_memrealtime' if real else 's_memtime'} s[100:101]\ns_waitcnt lgkmcnt(0)\ns_mov_b32 {s(STREG[i])}, s100")

def stamp_out(e):
    if not OPT.get('stamp'): return
    stamp(e, grp=255); stamp(e, True, grp=255)
    e("v_mov_b32 v1, 0")
    for i in range(NST[0]): e(f"v_writelane_b32 v1, {s(STREG[i])}, {i}")
    e("v_mbcnt_lo_u32_b32 v2, -1, 0\nv_lshlrev_b32 v2, 2, v2\ns_mov_b64 exec, 0xffff")
    e(f"s_lshl_b32 s100, s2, 2\ns_add_u32 s100, s100, s3\ns_lshl_b32 s100, s100, 6\ns_add_u32 s100, s100, {WS_DBG + (48 << 20)}")
    e(f"buffer_store_dword v1, v2, {s(SWS,4)}, s100 offen\ns_waitcnt vmcnt(0)")
    if OPT.get('dbg') is not None:
        e(f"v_mov_b32_dpp v3, v1 row_shr:1 row_mask:0xf bank_mask:0xf\ns_nop 1\nv_sub_u32 v3, v1, v3")
        e(f"s_lshl_b32 s100, s2, 2\ns_add_u32 s100, s100, s3\ns_cmp_eq_u32 s100, {OPT['dbg']}\ns_cselect_b32 s6, 64, 0\ns_load_dwordx2 s[4:5], s[0:1], 88\ns_mov_b32 s7, 0x20000\ns_waitcnt lgkmcnt(0)")
        e(f"v_sub_u32 v4, v1, {s(STREG[0])}\nv_cmp_eq_u32 vcc, {4*(NST[0]-1)}, v2\ns_nop 1\nv_cndmask_b32 v3, v3, v4, vcc")
        e(f"buffer_store_dword v3, v2, s[4:7], 0 offen\ns_waitcnt vmcnt(0)")

def srd(e, d, p, size, off=None):
    if off is None: e(f"s_mov_b32 {s(d)}, {s(p)}\ns_mov_b32 {s(d+1)}, {s(p+1)}")
    else: e(f"s_add_u32 {s(d)}, {s(p)}, {off}\ns_addc_u32 {s(d+1)}, {s(p+1)}, 0")
    if size is not None: e(f"s_mov_b32 {s(d+2)}, {size}")
    e(f"s_mov_b32 {s(d+3)}, 0x20000")

def allreduce(e, regs, tmps, op='v_add_f32', dpp=(8, 4, 2, 1)):
    for sh in dpp:
        for r in regs: e(f"{op}_dpp {v(r)}, {v(r)}, {v(r)} row_ror:{sh} row_mask:0xf bank_mask:0xf")
    for sw in ('v_permlane16_swap_b32', 'v_permlane32_swap_b32'):
        for r, t in zip(regs, tmps): e(f"v_mov_b32 {v(t)}, {v(r)}")
        for r, t in zip(regs, tmps): e(f"{sw} {v(t)}, {v(r)}")
        for r, t in zip(regs, tmps): e(f"{op} {v(r)}, {v(r)}, {v(t)}")

def unpack(e, dst, src):
    e(f"v_lshlrev_b32 {v(dst)}, 16, {v(src)}\nv_and_b32 {v(dst+1)}, 0xffff0000, {v(src)}")
def bfr1(e, r):
    e(f"v_cvt_pk_bf16_f32 {v(r)}, {v(r)}, {v(r)}\nv_lshlrev_b32 {v(r)}, 16, {v(r)}")
def bfr2(e, r0, r1):
    e(f"v_cvt_pk_bf16_f32 {v(r0)}, {v(r0)}, {v(r1)}\nv_and_b32 {v(r1)}, 0xffff0000, {v(r0)}\nv_lshlrev_b32 {v(r0)}, 16, {v(r0)}")
def bfrn(e, base, n):
    for j in range(0, n, 2): e(f"v_cvt_pk_bf16_f32 {v(base+j)}, {v(base+j)}, {v(base+j+1)}")
    for j in range(0, n, 2): e(f"v_and_b32 {v(base+j+1)}, 0xffff0000, {v(base+j)}\nv_lshlrev_b32 {v(base+j)}, 16, {v(base+j)}")
def silun(e, base, tmp, n):
    for j in range(n): e(f"v_mul_f32 {v(tmp+j)}, {fh(-LOG2E)}, {v(base+j)}")
    for j in range(n): e(f"v_exp_f32 {v(tmp+j)}, {v(tmp+j)}")
    for j in range(n): e(f"v_add_f32 {v(tmp+j)}, 1.0, {v(tmp+j)}")
    for j in range(n): e(f"v_rcp_f32 {v(tmp+j)}, {v(tmp+j)}")
    for j in range(n): e(f"v_mul_f32 {v(base+j)}, {v(base+j)}, {v(tmp+j)}")

class Rec(list):
    def __call__(self, txt):
        for t in txt.split('\n'):
            if t.strip(): self.append(t.strip())

SX_ = [STT + 8, STT + 16]; SW_ = STT + 24; SD_ = [STT + 32, STT + 36]
SM_ = [STT + 4, STT + 5]; SRS = [STT + 6, STT + 7]; SA_ = [STT + 40, STT + 41]; STM = [STT + 42, STT + 43]
def stats1(e):
    X, D, M, RS, A, TM = SX_, SD_, SM_, SRS, SA_, STM
    for j in range(4):
        for i in range(2): unpack(e, X[i] + 2 * j, RAW + 4 * i + j)
    for j in range(4):
        for i in range(2): e(f"v_add_f32 {v(D[i]+j)}, {v(X[i]+2*j)}, {v(X[i]+2*j+1)}")
    for i in range(2): e(f"v_add_f32 {v(D[i])}, {v(D[i])}, {v(D[i]+1)}\nv_add_f32 {v(D[i]+2)}, {v(D[i]+2)}, {v(D[i]+3)}")
    for i in range(2): e(f"v_add_f32 {v(A[i])}, {v(D[i])}, {v(D[i]+2)}")
    allreduce(e, A, TM)
    for i in range(2): e(f"v_mul_f32 {v(M[i])}, {fh(1/512)}, {v(A[i])}")
    for j in range(8):
        for i in range(2): e(f"v_sub_f32 {v(D[i] + (j & 1))}, {v(X[i]+j)}, {v(M[i])}")
        for i in range(2):
            d = v(D[i] + (j & 1))
            e(f"v_mul_f32 {v(A[i])}, {d}, {d}" if j == 0 else f"v_fmac_f32 {v(A[i])}, {d}, {d}")
    allreduce(e, A, TM)
    for i in range(2): e(f"v_mul_f32 {v(A[i])}, {fh(1/512)}, {v(A[i])}")
    for i in range(2): bfr2(e, A[i], M[i])
    for i in range(2): e(f"v_add_f32 {v(A[i])}, {fh(1e-5)}, {v(A[i])}")
    bfr2(e, A[0], A[1])
    for i in range(2): e(f"v_sqrt_f32 {v(A[i])}, {v(A[i])}")
    e(f"v_mov_b32 {v(STT+1)}, {s(TAG)}\nv_mov_b32 {v(STT+3)}, {s(TAG)}")
    bfr2(e, A[0], A[1])
    for i in range(2): e(f"v_lshrrev_b32 {v(TM[i])}, 16, {v(A[i])}")
    for i in range(2): e(f"v_or_b32 {v(STT+2*i)}, {v(TM[i])}, {v(M[i])}")
    for i in range(2): e(f"v_rcp_f32 {v(RS[i])}, {v(A[i])}")

def stats2(e, srow):
    X, W, M, RS, A, TM = SX_, SW_, SM_, SRS, SA_, STM
    for j in range(4): unpack(e, W + 2 * j, RAW + 8 + j)
    for j in range(8):
        for i in range(2): e(f"v_sub_f32 {v(X[i]+j)}, {v(X[i]+j)}, {v(M[i])}")
    for i in range(2): bfrn(e, X[i], 8)
    for j in range(8):
        for i in range(2): e(f"v_mul_f32 {v(X[i]+j)}, {v(X[i]+j)}, {v(RS[i])}")
    for i in range(2): bfrn(e, X[i], 8)
    for j in range(8):
        for i in range(2):
            e(f"v_mul_f32 {v(A[i])}, {v(X[i]+j)}, {v(W+j)}" if j == 0 else f"v_fmac_f32 {v(A[i])}, {v(X[i]+j)}, {v(W+j)}")
    allreduce(e, A, TM)
    bfr2(e, A[0], A[1])
    for i in range(2): e(f"v_ashrrev_i32 {v(TM[i])}, 31, {v(A[i])}")
    for i in range(2): e(f"v_or_b32 {v(TM[i])}, 0x80000000, {v(TM[i])}")
    for i in range(2): e(f"v_xor_b32 {v(A[i])}, {v(A[i])}, {v(TM[i])}")
    for i in range(2): e(f"v_and_b32 {v(A[i])}, 0xffff0000, {v(A[i])}")
    for i in range(2): e(f"v_mov_b32 {v(TM[i])}, {s(srow)}")
    for i in range(2): e(f"v_sub_u32 {v(TM[i])}, {2047 - i}, {v(TM[i])}")
    for i in range(2): e(f"v_or_b32 {v(A[i])}, {v(A[i])}, {v(TM[i])}")
    e(f"v_max_u32 {v(A[0])}, {v(A[0])}, {v(A[1])}")

def dma(voff, srd_, soff, ioff, tag, fl=''):
    return f"buffer_load_dwordx4 {v(voff)}, {s(srd_,4)}, {soff} offen offset:{ioff} {fl} lds @@{tag}"
def qbuf(st): return (0, 64, 96) if st & 1 else (128, 192, 224)

def q_issue(st):
    it = [('S', f"s_mov_b32 m0, {s(MV + wslot(st))}")]
    for i in range(4): it.append(('D', dma(WVO + i, SWQ, s(WSO), 1024 * i, f"q{st}", OPT['fq'])))
    it.append(('S', f"s_mov_b32 m0, {s(MX + xslot(st))}"))
    for i in range(4): it.append(('D', dma(XVO + i, SX, s(XSO), 1024 * i, f"q{st}", OPT['fx'])))
    it.append(('S', f"s_add_u32 m0, {s(MX + xslot(st))}, 4096"))
    for i in range(4, 8): it.append(('D', dma(XVO + i, SX, s(XSO), 1024 * (i & 3), f"q{st}", OPT['fx'])))
    if st < 7:
        it += [('S', f"s_add_u32 {s(XSO)}, {s(XSO)}, 128"), ('S', f"s_and_b32 {s(XSO)}, {s(XSO)}, 0x3ff"), ('S', f"s_lshl_b32 {s(WSO)}, {s(XSO)}, 12")]
    return it

def kv_issue(which, j, running=False):
    isk = which == 'K'; off = OFFK if isk else OFFV
    it = []
    if not running: it.append(('S', f"s_mov_b32 {s(off)}, {j*16384}"))
    it.append(('S', f"s_mov_b32 m0, {s((MK if isk else MV) + (j & 3))}"))
    for i in range(4):
        it.append(('D', dma(DKV + (0 if isk else 2) + (i >> 1), SK if isk else SV_, s(off), 1024 * i, f"{which}{j}", OPT['fkv'])))
    if running: it.append(('S', f"s_add_u32 {s(off)}, {s(off)}, 16384"))
    return it

def wo_m0(n): return (MK + (n & 3)) if (n & 7) < 4 else (MV + (n & 3))
def wo_lds(n): return ((n & 3) * 16384, (n & 7) >= 4)
def wo_issue(n, so):
    it = [('S', f"s_mov_b32 m0, {s(wo_m0(n))}")]
    for i in range(4):
        if n >= 8:
            it.append(('D', dma((WOV, TRB, DUM, TCH)[i], SWO, s(so), 1024 * i, f"w{n}", OPT['fwo'])))
            if i == 3: it.append(('S', f"s_add_u32 {s(so)}, {s(so)}, 32768"))
            continue
        it.append(('D', dma(WOV, SWO, s(so), 1024 * i, f"w{n}", OPT['fwo'])))
        it.append(('S', f"s_add_u32 {s(so)}, {s(so)}, {7168 if i < 3 else 32768 - 3*7168}"))
    if n & 3 == 3 and n >= 7: it.append(('S', f"s_and_b32 {s(so)}, {s(so)}, 0xfffff"))
    return it
TRLO, TRHI = 220, 216
def aloc(n):
    n &= 15
    return AV + 16 * n if n < 4 else AK + 16 * (n - 4) if n < 8 else 16 * (n - 8)
def wo_reads(n):
    off, hi = wo_lds(n)
    return [f"ds_read_b64_tr_b16 {a(aloc(n) + 4*nb + 2*jh, 2)}, {v((TRHI if hi else TRLO) + nb)} offset:{off + jh*2048}" for nb in range(4) for jh in range(2)]

def q_reads(st):
    W, X, C = qbuf(st)
    L = []
    xo = XBASE[xslot(st)]; xr = XRA
    if xo >= 65536: xo -= 131072; xr += 2
    wo = wslot(st) * 16384
    for ks in range(2):
        for d2 in range(2):
            for jh in range(2):
                L.append(f"ds_read_b64_tr_b16 {a(C + 8*ks + 4*d2 + 2*jh, 2)}, {v(CSA + d2)} offset:{wo + ks*8192 + jh*1024}")
    for qb in range(4):
        for ks in range(2):
            L.append(f"ds_read_b128 {a(X + 16*ks + 4*qb, 4)}, {v(xr + ks)} offset:{xo + qb*2048}")
    for db in range(8):
        for ks in range(2):
            for jh in range(2):
                L.append(f"ds_read_b64_tr_b16 {a(W + 32*ks + 4*db + 2*jh, 2)}, {v(VA + db)} offset:{wo + ks*8192 + jh*1024}")
    return L

def qacc(db, qb): return 4 * (8 * qb + db)
def q_mfmas(st):
    W, X, C = qbuf(st)
    M = []
    for d2 in range(2):
        for ks in range(2):
            c = '0' if (st == 0 and ks == 0) else v(CSACC + 4 * d2, 4)
            M.append(f"{MF} {v(CSACC + 4*d2, 4)}, {a(C + 8*ks + 4*d2, 4)}, {v(ONES, 4)}, {c}")
    for db in range(8):
        for qb in range(4):
            for ks in range(2):
                d = v(qacc(db, qb), 4)
                c = '0' if (st == 0 and ks == 0) else d
                M.append(f"{MF} {d}, {a(W + 32*ks + 4*db, 4)}, {a(X + 16*ks + 4*qb, 4)}, {c}")
    return M

def pack_gaps(n, dq, lq, vq=None, start=0, lend=None, fixed=None):
    gaps = dict(fixed or {})
    dq = list(dq); lq = list(lq); vq = vq if vq is not None else []
    lend = n if lend is None else lend
    turn = 0
    for p in range(start, n):
        if p in gaps: continue
        lurg = lq and (lend - p) * 2 <= len(lq) + 1
        if dq and dq[0][0] == 'S' and not (lurg and len(lq) > 1 and False):
            if lq: g = [lq.pop(0), dq.pop(0)[1]]
            else:
                g = [dq.pop(0)[1]]
                if dq and dq[0][0] == 'S': g.append(dq.pop(0)[1])
                elif vq:
                    g.append(vq.pop(0))
                    if vq: g.append(vq.pop(0))
            gaps[p] = g; continue
        order = [(turn + k) % 3 for k in range(3)]
        if lurg: order = [1, 0, 2]
        for o in order:
            if o == 0 and dq:
                gaps[p] = [dq.pop(0)[1]]; break
            if o == 1 and lq:
                gaps[p] = [lq.pop(0)] + ([lq.pop(0)] if lq else []); break
            if o == 2 and vq:
                gaps[p] = [vq.pop(0)] + ([vq.pop(0)] if vq else []); break
        else: continue
        turn = (o + 1) % 3
    assert not dq and not lq, (len(dq), len(lq))
    return gaps

def sgrp(buf, qb, ks): return buf + (2 * qb + ks) * 8
def k_reads(j, dst=AK):
    return [f"ds_read_b128 {a(dst + 16*(2*ks+jh) + 4*ksd, 4)}, {v(KA + ksd)} offset:{(j & 3)*16384 + ks*8192 + jh*1024}"
            for ks in range(2) for jh in range(2) for ksd in range(4)]
def v_reads(j, dst=AV):
    return [f"ds_read_b64_tr_b16 {a(dst + 32*ks + 4*db + 2*jh, 2)}, {v(VA + db)} offset:{(j & 3)*16384 + ks*8192 + jh*1024}"
            for db in range(8) for ks in range(2) for jh in range(2)]
def qk_chain(buf, qb, kb, src=AK, c0=None):
    d = v(sgrp(buf, qb, kb >> 1) + 4 * (kb & 1), 4)
    M = []
    for ksd in range(4):
        c = (c0 if c0 is not None else v(NEGM + 4 * qb, 4)) if ksd == 0 else d
        M.append(f"{MF} {d}, {a(src + 16*kb + 4*ksd, 4)}, {v(QF + 16*qb + 4*ksd, 4)}, {c}")
    return M
def qk_mfmas(j, src=AK):
    buf = S1 if j & 1 else S0
    return [m for qb in range(4) for kb in range(4) for m in qk_chain(buf, qb, kb, src)]
def lacc(qb): return LACC + 4 * OPT['msum'].index(qb)
def pv_mfmas(j, first=False, src=AV, ksmajor=()):
    buf = S1 if j & 1 else S0
    M = []; st = {}
    for qb in range(4):
        order = [(db, ks) for ks in range(2) for db in range(8)] if qb in ksmajor else [(db, ks) for db in range(8) for ks in range(2)]
        for db, ks in order:
            d = a(AO + 4 * (8 * qb + db), 4)
            c = '0' if (first and ks == 0) else d
            st.setdefault((qb, ks), len(M))
            M.append(f"{MF} {d}, {a(src + 32*ks + 4*db, 4)}, {v(sgrp(buf, qb, ks), 4)}, {c}")
        if qb in OPT['msum']:
            d = v(lacc(qb), 4)
            for ks in range(2):
                c = '0' if (first and ks == 0) else d
                M.append(f"{MF} {d}, {v(ONES, 4)}, {v(sgrp(buf, qb, ks), 4)}, {c}")
    return M, st

class SM:
    def __init__(self, j):
        buf = S1 if j & 1 else S0
        E = []; V = []
        for qb in range(4):
            for ks in range(2):
                b = sgrp(buf, qb, ks); e0 = len(E)
                for i in range(8): E.append(f"v_exp_f32 {v(b+i)}, {v(b+i)}")
                for p in range(4):
                    if qb not in OPT['msum']:
                        for i in (2 * p, 2 * p + 1):
                            V.append((e0 + i, f"v_add_f32 {v(LV+qb)}, {v(LV+qb)}, {v(b+i)}"))
                    V.append((e0 + 2 * p + 1, f"v_cvt_pk_bf16_f32 {v(b+p)}, {v(b+2*p)}, {v(b+2*p+1)}"))
        self.E, self.V, self.e, self.v = E, V, 0, 0
    def ready(self):
        n = 0
        while self.v + n < len(self.V) and self.V[self.v + n][0] < self.e: n += 1
        return n
    def popE(self): self.e += 1; return self.E[self.e - 1]
    def popV(self): self.v += 1; return self.V[self.v - 1][1]
    def remE(self): return len(self.E) - self.e
    def remV(self): return len(self.V) - self.v

def fill(n, sm, L, lfirst, llast, dpos=None, scal=None, futureL=0, elimit=None, eearly=None, finish=False):
    gaps = {}
    L = list(L); nL = len(L); dpos = dict(dpos or {}); scal = dict(scal or {})
    elimit = len(sm.E) if elimit is None else elimit
    for p in range(n):
        g = []
        done = nL - len(L)
        lav = bool(L) and p >= lfirst + (llast - lfirst) * done / max(1, nL - 1) - 1e-9
        urgent = bool(L) and ((llast - p + 1) * 2 <= len(L) + 1 or p >= llast)
        vr = sm.ready()
        eok = sm.e < elimit and (eearly is None or p >= eearly(sm.e))
        if p in dpos:
            assert p not in scal
            g = [dpos.pop(p)]
        elif p in scal:
            g = [scal.pop(p)]
            if eok: g.append(sm.popE())
            else:
                for _ in range(min(2, vr)): g.append(sm.popV())
        elif lav and vr >= 1: g = [L.pop(0), sm.popV()]
        elif urgent or (lav and not eok):
            g = [L.pop(0)]
            if L: g.append(L.pop(0))
        elif vr >= 2 and (sm.remV() - len(L) - futureL >= 2 or not eok): g = [sm.popV(), sm.popV()]
        elif eok: g = [sm.popE()]
        elif vr >= 1 and finish: g = [sm.popV()]
        if g: gaps[p] = g
    assert not L and not dpos and not scal, (len(L), dpos, scal)
    return gaps

def spread(items, first, last):
    nD = sum(1 for k, _ in items if k == 'D')
    dpos = {}; scal = {}
    step = (last - first) / max(1, nD - 1) if nD > 1 else 0
    k = 0; p = -1; pend = []
    for kind, t in items:
        if kind == 'S': pend.append(t); continue
        want = max(int(round(first + k * step)), p + 1 + len(pend))
        q = want - len(pend)
        for x in pend: scal[q] = x; q += 1
        pend = []
        dpos[want] = t; p = want; k += 1
    for x in pend: p += 1; scal[p] = x
    return dpos, scal

NB = 64 + 2 * len(OPT['msum'])

def show(tag, g, n):
    def ch(x):
        o = x.split()[0]
        return 'E' if 'exp' in o else 'L' if o.startswith('ds_') else 'D' if o.startswith('buffer') else 's' if o.startswith('s_') or o == 'WAITVM' else 'v'
    if OPT.get('show'): print(tag, ' '.join(''.join(ch(x) for x in g.get(i, [])) or '-' for i in range(n)), file=sys.stderr)

def phaseA(e, j, sm, last_wait, ffn=None, tail=None):
    M = qk_mfmas(j + 1)
    g = fill(64, sm, v_reads(j), 0, 54, finish=True)
    assert sm.remE() == 0 and sm.remV() == 0, (sm.remE(), sm.remV())
    if ffn is not None:
        assert 61 not in g and 62 not in g
        g[60] = [f"s_cmp_eq_u32 {s(FW)}, {ffn}"] + g[60]
        g[61] = [f"s_cselect_b32 {s(T0)}, {s(FSO)}, {FAR}", f"s_cselect_b32 m0, {s(FM0)}, {L_DUM}"]
        g[62] = [dma(TCH, RA, s(T0), 0, 'fw', OPT['ff'])]
    if tail:
        assert 61 not in g and 62 not in g
        g[61], g[62] = tail
    g[63] = g.get(63, []) + [last_wait, "s_barrier"]
    show(f'A{j}', g, 64)
    e.weave(M, g)

def phaseB(e, j, items, L=None, target=None, extra=None, endbar=False):
    M, st = pv_mfmas(j, j == 0)
    sm = SM(j + 1)
    dpos, scal = spread(items, 4, NB - 8)
    fut = 32
    if L is None: L = k_reads(j + 2)
    else: fut = 0
    scal[NB - 1] = "s_waitcnt lgkmcnt(0)"
    g = fill(NB, sm, L, 3, NB - 12, dpos, scal, futureL=fut, elimit=OPT['eB'])
    if endbar: g[NB - 1].insert(1, "s_barrier")
    if target is not None:
        while sm.e < target[0]: g[NB - 1].append(sm.popE())
        while sm.v < target[1]: g[NB - 1].append(sm.popV())
    for p, xs in (extra or {}).items(): g[p] = g.get(p, []) + xs
    show(f'B{j}', g, NB)
    e.weave(M, g)
    return sm

def spin_check(e, name, reload_, ncmp, cond_sgpr=None):
    def test(x):
        for k, r in enumerate(ncmp):
            x(f"v_cmp_ne_u32 {'vcc' if k == 0 else s(T0,2)}, {s(TAG)}, {v(r)}")
            if k: x(f"s_or_b64 vcc, vcc, {s(T0,2)}")
        if cond_sgpr is not None: x(f"s_and_b64 vcc, vcc, {s(cond_sgpr,2)}")
    test(e)
    e(f"s_cbranch_vccnz {name}_slow\n{name}_ok:")
    o = Rec()
    o(f"{name}_slow:\ns_mov_b32 {s(CNT)}, {SPIN}\n{name}_spin:\ns_sleep 2")
    for t in reload_: o(t.split('@@')[0])
    o("s_waitcnt vmcnt(0)")
    test(o)
    o(f"s_cbranch_vccz {name}_ok\ns_sub_u32 {s(CNT)}, {s(CNT)}, 1\ns_cmp_lg_u32 {s(CNT)}, 0\ns_cbranch_scc1 {name}_spin\ns_branch {name}_ok")
    OOL.extend(o)
OOL = []

def kernel():
    e = Em()
    e("s_cmp_ge_u32 s2, 256\ns_cbranch_scc1 L_end")
    e(f"s_load_dwordx4 s[44:47], s[0:1], 0\ns_load_dwordx4 s[48:51], s[0:1], 16\ns_load_dwordx2 s[52:53], s[0:1], 96")
    e(f"s_load_dwordx4 s[60:63], s[0:1], 48\ns_load_dwordx2 s[56:57], s[0:1], 32\ns_load_dwordx4 s[64:67], s[0:1], 64\ns_load_dwordx2 s[68:69], s[0:1], 80")
    stamp(e, True, grp=255); stamp(e, grp=255)
    e(f"v_lshrrev_b32 v2, 6, v0\ns_mov_b32 {s(MODE)}, 0\nv_readfirstlane_b32 s3, v2")
    e(f"s_and_b32 {s(T0)}, s2, 7\ns_lshl_b32 {s(SH)}, {s(T0)}, 2\ns_lshr_b32 {s(T1)}, s2, 3\ns_and_b32 {s(T1)}, {s(T1)}, 3\ns_add_u32 {s(SH)}, {s(SH)}, {s(T1)}\ns_lshr_b32 {s(SQB)}, s2, 5")
    e("s_branch L_start")
    e("L_restart:")
    e("v_mbcnt_lo_u32_b32 v0, -1, 0\nv_mbcnt_hi_u32_b32 v0, -1, v0\nv_mov_b32 v2, s3")
    e("L_start:")
    e("v_and_b32 v1, 63, v0\nv_and_b32 v3, 15, v0\nv_bfe_u32 v4, v0, 4, 2")
    e("v_lshlrev_b32 v5, 1, v4\nv_xor_b32 v5, v5, v3\nv_lshlrev_b32 v5, 4, v5")
    e("v_lshlrev_b32 v6, 4, v2\nv_add_u32 v6, v6, v4")
    e(f"v_lshlrev_b32 v7, 13, v6\nv_add_u32 {v(WVO)}, v7, v5")
    e(f"v_add_u32 {v(WVO+1)}, {4*8192-1024}, {v(WVO)}")
    e(f"v_xor_b32 v8, 128, {v(WVO)}\nv_add_u32 {v(WVO+2)}, {8*8192-2048}, v8\nv_add_u32 {v(WVO+3)}, {12*8192-3072}, v8")
    if OPT['rotq']: e(f"s_and_b32 {s(T0)}, {s(SH)}, 3\ns_lshl_b32 {s(T0)}, {s(T0)}, 1\ns_add_u32 {s(T0)}, {s(T0)}, {s(SQB)}\ns_and_b32 {s(T0)}, {s(T0)}, 7\ns_lshl_b32 {s(XSO)}, {s(T0)}, 7\ns_lshl_b32 {s(WSO)}, {s(T0)}, 19")
    else: e(f"s_mov_b32 {s(XSO)}, 0\ns_mov_b32 {s(WSO)}, 0")
    e(f"s_lshl_b32 {s(T0)}, s3, 12\ns_lshl_b32 {s(T1)}, s3, 13")
    for i in range(4): e(f"s_add_u32 {s(MV+i)}, {s(T0)}, {65536+i*16384}")
    for i in range(3): e(f"s_add_u32 {s(MX+i)}, {s(T1)}, {XBASE[i]}")
    e("v_lshrrev_b32 v8, 3, v1\nv_lshlrev_b32 v9, 6, v2\nv_add_u32 v8, v8, v9\nv_lshlrev_b32 v8, 10, v8")
    e("v_and_b32 v9, 7, v1\nv_xor_b32 v9, v9, v4\nv_lshlrev_b32 v9, 4, v9\nv_add_u32 v8, v8, v9\nv_xor_b32 v9, 64, v8")
    for i in range(8): e(f"v_add_u32 {v(XVO+i)}, {8192*i - 1024*(i&3)}, {v(9 if i & 1 else 8)}")
    e(f"s_lshl_b32 {s(T0)}, {s(SH)}, 8\ns_sub_u32 {s(SWQ+2)}, {512*8192}, {s(T0)}\ns_lshl_b32 {s(T1)}, {s(SQB)}, 18\ns_waitcnt lgkmcnt(0)")
    srd(e, SWQ, PWQ, None, s(T0)); srd(e, SX, PX, 262144, s(T1))
    stamp(e, grp=2)
    for k, t in q_issue(0): e(t)
    stamp(e, grp=2)
    e(f"s_cmp_lg_u32 {s(MODE)}, 0\ns_cbranch_scc1 L_noepo\ns_mov_b32 {s(T0)}, {WS_EPOCH}\ns_load_dword {s(EPO)}, s[52:53], {s(T0)}\nL_noepo:")
    e(f"v_lshlrev_b32 {v(L16)}, 4, v1")
    e(f"s_and_b32 {s(T0)}, s2, 7\ns_lshr_b32 {s(T1)}, s2, 3\ns_and_b32 {s(SCB)}, {s(T1)}, 7\ns_mul_i32 {s(SU)}, {s(T0)}, 22\ns_add_u32 {s(SU)}, {s(SU)}, {s(T1)}")
    e(f"s_cmp_lt_u32 {s(T1)}, 22\ns_cselect_b32 {s(SU)}, {s(SU)}, 255")
    e(f"s_lshl_b32 {s(T0)}, {s(T0)}, 2\ns_lshr_b32 {s(SRB)}, s2, 6\ns_add_u32 {s(SRB)}, {s(SRB)}, {s(T0)}")
    e(f"s_lshl_b32 {s(T0)}, s3, 12")
    for i in range(4): e(f"s_add_u32 {s(MK+i)}, {s(T0)}, {i*16384}")
    srd(e, RA, PWR, 1024)
    e(f"s_lshl_b32 {s(T0)}, {s(SH)}, 19"); srd(e, SK, PK, 524288, s(T0)); srd(e, SV_, PV_, 524288, s(T0)); srd(e, SWS, PWS, WS_SIZE)
    e(f"v_lshlrev_b32 v7, 8, v6\nv_add_u32 {v(DKV+2)}, v7, v5\nv_xor_b32 {v(DKV+3)}, 128, {v(DKV+2)}")
    e("v_and_b32 v8, 1, v2\nv_lshlrev_b32 v8, 3, v8\nv_or_b32 v8, v8, v4\nv_xor_b32 v8, v8, v3\nv_lshlrev_b32 v8, 4, v8")
    e(f"v_add_u32 {v(DKV)}, v7, v8\nv_xor_b32 {v(DKV+1)}, 64, {v(DKV)}")
    e("v_lshrrev_b32 v8, 2, v3\nv_lshlrev_b32 v8, 3, v8\nv_and_b32 v9, 3, v3\nv_add_u32 v8, v8, v9\nv_lshlrev_b32 v8, 8, v8")
    e(f"v_xor_b32 v9, v4, v3\nv_lshlrev_b32 v9, 4, v9\nv_add_u32 {v(KA)}, v8, v9")
    for k in range(1, 4): e(f"v_xor_b32 {v(KA+k)}, {k << 6}, {v(KA)}")
    e("v_lshrrev_b32 v8, 2, v3\nv_lshlrev_b32 v9, 3, v4\nv_add_u32 v9, v9, v8\nv_lshlrev_b32 v9, 8, v9")
    e("v_lshlrev_b32 v8, 1, v8\nv_and_b32 v10, 1, v4\nv_lshlrev_b32 v10, 3, v10\nv_or_b32 v8, v8, v10")
    e("v_bfe_u32 v10, v1, 1, 1\nv_or_b32 v8, v8, v10\nv_lshlrev_b32 v8, 4, v8\nv_add_u32 v9, v9, v8")
    e(f"v_and_b32 v10, 1, v1\nv_lshlrev_b32 v10, 3, v10\nv_add_u32 v9, v9, v10\nv_add_u32 {v(VA)}, 65536, v9")
    for k in range(1, 8): e(f"v_xor_b32 {v(VA+k)}, {k << 5}, {v(VA)}")
    e(f"v_lshlrev_b32 v8, 6, v2\nv_xor_b32 {v(CSA)}, v8, {v(VA)}\nv_xor_b32 {v(CSA+1)}, 32, {v(CSA)}")
    e("v_lshlrev_b32 v8, 13, v2\nv_lshlrev_b32 v9, 7, v3\nv_add_u32 v8, v8, v9\nv_lshrrev_b32 v9, 1, v3\nv_xor_b32 v9, v9, v4\nv_lshlrev_b32 v9, 4, v9")
    e(f"v_add_u32 {v(XRA)}, v8, v9\nv_xor_b32 {v(XRA+1)}, 64, {v(XRA)}\nv_add_u32 {v(XRA+2)}, 131072, {v(XRA)}\nv_add_u32 {v(XRA+3)}, 131072, {v(XRA+1)}")
    e(f"v_lshlrev_b32 v8, 4, v4\nv_add_u32 {v(CSW+1)}, {L_CS}, v8\nv_lshlrev_b32 v9, 7, v2\nv_add_u32 {v(CSW)}, {v(CSW+1)}, v9")
    for i in range(4): e(f"v_mov_b32 {v(ONES+i)}, 0x3f803f80\nv_mov_b32 {v(LV+i)}, 0")
    e("v_lshrrev_b32 v8, 3, v1\nv_lshlrev_b32 v8, 10, v8\nv_lshlrev_b32 v9, 1, v4\nv_and_b32 v10, 7, v1\nv_xor_b32 v9, v9, v10\nv_lshlrev_b32 v9, 4, v9")
    e(f"v_add_u32 {v(WOV)}, v8, v9")
    e("v_lshrrev_b32 v8, 2, v1\nv_lshlrev_b32 v9, 7, v8\nv_bfe_u32 v10, v8, 1, 2\nv_lshlrev_b32 v10, 1, v10\nv_bfe_u32 v11, v1, 1, 1\nv_or_b32 v10, v10, v11\nv_lshlrev_b32 v10, 4, v10")
    e(f"v_add_u32 v9, v9, v10\nv_and_b32 v11, 1, v1\nv_lshlrev_b32 v11, 3, v11\nv_add_u32 v9, v9, v11\nv_lshlrev_b32 v11, 12, v2\nv_add_u32 {v(TRB)}, v9, v11")
    e(f"v_lshlrev_b32 v9, 10, v8\nv_and_b32 v10, 3, v1\nv_lshlrev_b32 v10, 5, v10\nv_add_u32 {v(OUTV)}, v9, v10\nv_lshlrev_b32 {v(STV)}, 3, v8")
    e(f"v_mul_u32_u24 {v(TCH)}, 2752, v1")
    e(f"v_cmp_eq_u32 vcc, 0, v1\nv_mov_b32 v8, {FAR}\nv_mov_b32 v9, 0\nv_cndmask_b32 {v(Z0)}, v8, v9, vcc")
    stamp(e, grp=2)
    for k, t in q_issue(1): e(t)
    e(f"s_lshl_b32 {s(T0)}, {s(SH)}, 3\ns_lshl_b32 {s(T1)}, s3, 1\ns_add_u32 {s(STS)}, {s(T0)}, {s(T1)}\ns_lshl_b32 {s(T0)}, {s(STS)}, 10")
    e(f"buffer_load_dwordx4 {v(RAW,4)}, {v(L16)}, {s(SX,4)}, {s(T0)} offen @@rows\nbuffer_load_dwordx4 {v(RAW+4,4)}, {v(L16)}, {s(SX,4)}, {s(T0)} offen offset:1024 @@rows")
    e(f"buffer_load_dwordx4 {v(RAW+8,4)}, {v(L16)}, {s(RA,4)}, 0 offen @@rows")
    e(f"s_waitcnt lgkmcnt(0)\ns_mul_i32 {s(TAG)}, {s(EPO)}, 0x9e3779b1\ns_add_u32 {s(TAG)}, {s(TAG)}, 0x85ebca6b")
    e(f"s_lshl_b32 {s(T0)}, {s(SQB)}, 8\ns_add_u32 {s(STS)}, {s(STS)}, {s(T0)}")
    e(f"s_lshl_b32 {s(SFS)}, {s(STS)}, 3\ns_add_u32 {s(SFS)}, {s(SFS)}, {WS_ST}")
    e(f"s_lshl_b32 {s(SKEY)}, {s(SQB)}, 11\ns_lshl_b32 {s(T1)}, s3, 9\ns_add_u32 {s(SKEY)}, {s(SKEY)}, {s(T1)}\ns_add_u32 {s(SKEY)}, {s(SKEY)}, {WS_ST}")
    stamp(e, grp=2)
    e("WAITVM q0\ns_barrier")
    stamp(e, grp=7)
    for t in q_reads(0): e(t)
    vq = Rec(); stats1(vq)
    vq(f"buffer_store_dwordx4 {v(STT,4)}, {v(Z0)}, {s(SWS,4)}, {s(SFS)} offen sc1")
    vq(f"v_and_b32 {v(RAW)}, 0xf0, {v(L16)}\nv_lshrrev_b32 {v(RAW)}, 1, {v(RAW)}")
    stats2(vq, STS)
    vq(f"v_mov_b32 {v(STM[0])}, s3\nv_lshlrev_b32 {v(STM[0])}, 2, {v(STM[0])}\nv_add_u32 {v(STM[0])}, {L_KEY}, {v(STM[0])}")
    stq_loads = [f"buffer_load_dwordx2 {v(STQ+2*i,2)}, {v(RAW)}, {s(SWS,4)}, {s(SKEY)} offen offset:{128*i} sc1 @@st" for i in range(4)]
    KX = RAW + 4
    for st in range(8):
        if st == 0: e("s_waitcnt lgkmcnt(0)")
        elif st < 7: e(f"WAITVM q{st+1} lgkm\ns_barrier")
        else: e("s_waitcnt lgkmcnt(0)\ns_barrier")
        stamp(e, grp=(6 if st < 4 else 4))
        M = q_mfmas(st)
        if st + 3 < 8: dq = q_issue(st + 3)
        elif st == 5: dq = kv_issue('K', 0) + kv_issue('K', 1)
        elif st == 6:
            assert not vq, len(vq)
            dq = [('D', t) for t in stq_loads] + kv_issue('V', 0) + kv_issue('K', 2)
            vq(f"s_cmp_lt_u32 {s(SU)}, {NFFN}\ns_cselect_b32 {s(RA+2)}, {512*2752}, 0\ns_cselect_b32 {s(RC+2)}, {1376*1024}, 0")
            srd(vq, RA, PG, None); srd(vq, RC, PD, None)
            vq(f"s_mul_i32 {s(T0)}, s3, {128*2752}\ns_lshl_b32 {s(T1)}, {s(SU)}, 4\ns_add_u32 {s(FSO)}, {s(T0)}, {s(T1)}\ns_lshl_b32 {s(FSUM)}, {s(FSO)}, 1\ns_add_u32 {s(FSUM)}, {s(FSUM)}, {64*2752}")
            vq(f"s_lshl_b32 {s(FDO)}, {s(SU)}, 13\ns_lshl_b32 {s(T1)}, s3, 11\ns_add_u32 {s(FDO)}, {s(FDO)}, {s(T1)}\ns_add_u32 {s(FM0)}, {s(T1)}, {L_F}")
            vq(f"s_mov_b32 {s(FD)}, 1024\ns_mov_b32 {s(FW)}, s3")
            vq(f"v_mov_b32 {v(KX+4)}, {L_KEY}\nv_mov_b32 {v(KX+5)}, {s(TAG)}")
            srd(vq, SX, PWO, 4096 * 1024)
            vq(f"s_lshl_b32 {s(XSO)}, s2, 2\ns_add_u32 {s(XSO)}, {s(XSO)}, s3\ns_lshl_b32 {s(XSO)}, {s(XSO)}, 12\nv_lshlrev_b32 {v(DUM)}, 2, {v(L16)}")
        if st == 0:
            g = pack_gaps(OPT['q0bar'], q_issue(2), [])
            g[OPT['q0bar']] = ["WAITVM q1", "s_barrier"]
            g = pack_gaps(len(M), dq, q_reads(1), start=OPT['q0bar'] + 1, lend=len(M) - 6, fixed=g)
        elif st < 7:
            g = pack_gaps(len(M), dq, q_reads(st + 1), vq, lend=len(M) - 8)
        else:
            assert not vq
            dq = kv_issue('V', 1)
            fixed = {8: [f"ds_write_b128 {v(CSW)}, {v(CSACC,4)}", f"ds_write_b128 {v(CSW)}, {v(CSACC+4,4)} offset:64"], 0: [f"ds_write_b32 {v(STM[0])}, {v(SA_[0])}"]}
            g = pack_gaps(22, dq, [], fixed=fixed)
            g[22] = ["WAITVM K0,K1 lgkm", "s_barrier"]
            lq = [f"ds_read_b128 {v(KX,4)}, {v(KX+4)}"] + [f"ds_read_b128 {v(CSV(db),4)}, {v(CSW+1)} offset:{64*db}" for db in range(8)] + k_reads(0, AV) + k_reads(1, AK)
            g = pack_gaps(len(M), [], lq, start=23, fixed=g)
            p = max(g) + 1
            g[p] = [f"s_lshl_b32 {s(T0)}, s2, 3", f"s_add_u32 {s(T0)}, {s(T0)}, {WS_KEY}"]
            g[p + 1] = ["s_waitcnt lgkmcnt(15)", f"v_max3_u32 {v(KX)}, {v(KX)}, {v(KX+1)}, {v(KX+2)}", f"v_max_u32 {v(KX+4)}, {v(KX)}, {v(KX+3)}"]
            g[p + 2] = [f"buffer_store_dwordx2 {v(KX+4,2)}, {v(Z0)}, {s(SWS,4)}, {s(T0)} offen sc1"]
            g = pack_gaps(len(M), kv_issue('K', 3) + kv_issue('V', 2), [], start=p + 3, fixed=g)
        show(f'Q{st}', g, len(M))
        e.weave(M, g)
    stamp(e, grp=5)
    e(f"s_mov_b32 {s(OFFK)}, {4*16384}\ns_mov_b32 {s(OFFV)}, {3*16384}")
    e(f"s_lshl_b32 {s(T0)}, {s(SCB)}, 7\ns_lshl_b32 {s(T1)}, s3, 20\ns_add_u32 {s(T0)}, {s(T0)}, {s(T1)}\ns_sub_u32 {s(SWO+2)}, {4096*1024}, {s(T0)}"); srd(e, SWO, PWO, None, s(T0))
    e("WAITVM st lgkm")
    spin_check(e, 'L_st', stq_loads, [STQ + 1, STQ + 3, STQ + 5, STQ + 7])
    for qb in range(4): e(f"v_lshlrev_b32 {v(STQ+2*qb+1)}, 16, {v(STQ+2*qb)}")
    for qb in range(4): e(f"v_rcp_f32 {v(STQ+2*qb+1)}, {v(STQ+2*qb+1)}\nv_and_b32 {v(STQ+2*qb)}, 0xffff0000, {v(STQ+2*qb)}")
    for qb in range(4): e(f"v_mul_f32 {v(STQ+2*qb+1)}, {fh(QSCALE)}, {v(STQ+2*qb+1)}")
    for qb in range(4):
        for db in range(8):
            b = qacc(db, qb)
            for r in range(4): e(f"v_fma_f32 {v(b+r)}, -{v(STQ+2*qb)}, {v(CSV(db)+r)}, {v(b+r)}")
        for db in range(8):
            b = qacc(db, qb)
            for r in range(4): e(f"v_mul_f32 {v(b+r)}, {v(b+r)}, {v(STQ+2*qb+1)}")
        for db in range(8):
            b = qacc(db, qb); f = QF + 16 * qb + 4 * (db >> 1) + 2 * (db & 1)
            e(f"v_cvt_pk_bf16_f32 {v(f)}, {v(b)}, {v(b+1)}\nv_cvt_pk_bf16_f32 {v(f+1)}, {v(b+2)}, {v(b+3)}")
        for sw in ('v_permlane32_swap_b32', 'v_permlane16_swap_b32'):
            for ksd in range(4):
                f = QF + 16 * qb + 4 * ksd
                e(f"{sw} {v(f)}, {v(f+2)}\n{sw} {v(f+1)}, {v(f+3)}")
    MT = LACC
    for qb in range(4): e(f"v_mov_b32 {v(MT+qb)}, 0xff800000")
    e(f"s_cmp_lg_u32 {s(MODE)}, 0\ns_cbranch_scc1 L_maxpass\nL_maxdone:")
    o = Rec()
    o(f"L_maxpass:\nv_lshrrev_b32 v64, 4, {v(L16)}\nv_and_b32 v65, 15, v64\nv_lshrrev_b32 v64, 4, v64\nv_lshlrev_b32 v65, 8, v65\nv_lshlrev_b32 v64, 4, v64\nv_add_u32 v64, v64, v65")
    o(f"s_mov_b32 {s(T0)}, 0\nL_maxloop:")
    for kb in range(4):
        if kb: o(f"s_add_u32 {s(T0)}, {s(T0)}, 4096")
        for ksd in range(4): o(f"buffer_load_dwordx4 {a(16*kb + 4*ksd, 4)}, v64, {s(SK,4)}, {s(T0)} offen offset:{64*ksd}")
    o(f"s_add_u32 {s(T0)}, {s(T0)}, 4096\ns_waitcnt vmcnt(0)")
    for qb in range(4):
        for kb in range(4):
            for m in qk_chain(S0, qb, kb, 0, '0'): o(m)
    o("s_nop 7\ns_nop 1")
    for qb in range(4):
        for i in range(0, 16, 2): o(f"v_max3_f32 {v(MT+qb)}, {v(MT+qb)}, {v(16*qb+i)}, {v(16*qb+i+1)}")
    o(f"s_cmp_lt_u32 {s(T0)}, 524288\ns_cbranch_scc1 L_maxloop\ns_branch L_maxdone")
    OOL.extend(o)
    stamp(e)
    for qb in range(4):
        for m in qk_chain(S0, qb, 0, AV, '0'): e(m)
    MXR = [S1 + i for i in range(4)]; TT = [S1 + 4 + i for i in range(4)]
    for qb in range(4):
        b = sgrp(S0, qb, 0)
        e(f"v_max3_f32 {v(MXR[qb])}, {v(b)}, {v(b+1)}, {v(b+2)}\nv_max3_f32 {v(MXR[qb])}, {v(MXR[qb])}, {v(b+3)}, {v(MT+qb)}")
    allreduce(e, MXR, TT, 'v_max_f32', dpp=())
    for qb in range(4):
        for i in range(4): e(f"v_xor_b32 {v(NEGM+4*qb+i)}, 0x80000000, {v(MXR[qb])}")
    for qb in range(4):
        b = sgrp(S0, qb, 0)
        for i in range(4): e(f"v_sub_f32 {v(b+i)}, {v(b+i)}, {v(MXR[qb])}")
    M = [m for qb in range(4) for kb in range(1, 4) for m in qk_chain(S0, qb, kb, AV)]
    std = lambda j: kv_issue('V', j + 4, True) + kv_issue('K', j + 5, True)
    smd = phaseB(Em(), 1, std(1)); tgt = (smd.e, smd.v)
    sm = SM(0)
    def early(ei):
        qb, kb = ei >> 4, (ei >> 2) & 3
        return 0 if kb == 0 else 12 * qb + 4 * (kb - 1) + 6
    g = fill(48, sm, [], 0, 1, elimit=tgt[0], eearly=early, futureL=len(sm.V) - tgt[1])
    for k, (kind, t) in enumerate(kv_issue('V', 3, True)): g[4 + 8 * k - (3 if kind == 'S' and k else 0)].insert(0 if kind == 'S' else 9, t)
    g[47] += ["WAITVM V0", "s_barrier"]
    show('P', g, 48)
    e.weave(M, g)
    while sm.e < tgt[0]: e(sm.popE())
    while sm.v < tgt[1]: e(sm.popV())
    warm = [[f"s_mov_b32 m0, {L_DUM}"], [f"buffer_load_dword {v(DUM)}, {s(SX,4)}, {s(XSO)} offen lds @@warm"]] if OPT['warm'] else None
    phaseA(e, 0, sm, "WAITVM K2,V1,K3,V2 lgkm", tail=warm)
    down = [('S', f"s_add_u32 m0, {s(FM0)}, 16384"), ('D', dma(L16, RC, s(FDO), 0, 'fw', OPT['ff'])), ('D', dma(L16, RC, s(FDO), 1024, 'fw', OPT['ff']))]
    sm = phaseB(e, 0, kv_issue('K', 4, True) + down + std(0), target=tgt)
    stamp(e)
    e(f"s_mov_b32 {s(CNT)}, 0\n.p2align 6\nL_loop:")
    l0 = len(e.L)
    for j in range(1, 5):
        phaseA(e, j, sm, "s_waitcnt vmcnt(19) lgkmcnt(0)", ffn=j - 1)
        it = std(j)
        if j == 4:
            it = it[:2] + [('S', f"s_cmp_eq_u32 {s(CNT)}, 1"), ('S', f"s_cselect_b32 {s(RA)}, {s(PU)}, {s(RA)}"), ('S', f"s_cselect_b32 {s(RA+1)}, {s(PU+1)}, {s(RA+1)}")] + it[2:3] + \
                 [('S', f"s_cmp_eq_u32 {s(CNT)}, 3"), ('S', f"s_cselect_b32 {s(FW)}, 99, {s(FW)}")] + it[3:4] + \
                 [('S', f"s_sub_u32 {s(FSO)}, {s(FSUM)}, {s(FSO)}"), ('S', f"s_add_u32 {s(FM0)}, {s(FM0)}, {s(FD)}"), ('S', f"s_sub_u32 {s(FD)}, 8192, {s(FD)}")] + it[4:]
        sm = phaseB(e, j, it, target=tgt)
    e(f"s_add_u32 {s(CNT)}, {s(CNT)}, 1\ns_cmp_lt_u32 {s(CNT)}, 6\ns_cbranch_scc1 L_loop")
    loop = e.L[l0:]
    for p in check(loop + loop, 'loop'): print(p, file=sys.stderr)
    n = len(e.vm)
    for i in range(n - 36, n):
        t = e.vm[i]
        if t != 'fw': e.vm[i] = t[0] + str(int(t[1:]) + 20)
    stamp(e, grp=9)
    key_loads = [f"buffer_load_dwordx4 {v(KEYR+4*i,4)}, {v(L16)}, {s(SWS,4)}, {s(SKEY)} offen offset:{1024*i} sc1 @@key" for i in range(2)]
    for j in range(25, 31):
        phaseA(e, j, sm, f"WAITVM K{min(j+2,31)},V{j+1}{',key' if j == 27 else ''} lgkm")
        items = []; extra = {}; L = None
        if j == 25:
            items += [('S', f"s_mov_b32 {s(SKEY)}, {WS_KEY}")] + [('D', t) for t in key_loads]
        if j + 4 < 32: items += kv_issue('V', j + 4, True)
        if j + 5 < 32: items += kv_issue('K', j + 5, True)
        if j == 26:
            if OPT['roto']: items = items[:3] + [('S', f"s_lshr_b32 {s(T0)}, s2, 6"), ('S', f"s_lshl_b32 {s(T0)}, {s(T0)}, 1"), ('S', f"s_add_u32 {s(ROT)}, {s(T0)}, {s(SCB)}"), ('S', f"s_and_b32 {s(ROT)}, {s(ROT)}, 7")] + items[3:]
            else: items = items[:3] + [('S', f"s_mov_b32 {s(ROT)}, 0")] + items[3:]
        if j == 27:
            items += [('S', f"s_lshl_b32 {s(OFFK)}, {s(ROT)}, 17")] + wo_issue(0, OFFK)
        if j >= 28:
            if j == 28: items += [('S', f"s_add_u32 {s(OFFV)}, {s(OFFK)}, {3*32768}"), ('S', f"s_and_b32 {s(OFFV)}, {s(OFFV)}, 0xfffff")]
            items += wo_issue(j - 27, OFFK) + wo_issue(j - 24, OFFV)
        if j == 29:
            items = [('S', f"s_lshl_b32 {s(XSO)}, {s(SRB)}, 2"), ('S', f"s_add_u32 {s(XSO)}, {s(XSO)}, s3"), ('S', f"s_lshl_b32 {s(XSO)}, {s(XSO)}, 4")] + items[:5] + [
              ('S', f"s_lshl_b32 {s(WSO)}, {s(XSO)}, 10"), ('S', f"s_lshl_b32 {s(T0)}, {s(SCB)}, 7"), ('S', f"s_add_u32 {s(WSO)}, {s(WSO)}, {s(T0)}")] + items[5:12] + [
              ('S', f"s_lshl_b32 {s(SFS)}, {s(XSO)}, 3"), ('S', f"s_add_u32 {s(SFS)}, {s(SFS)}, {WS_ST}")] + items[12:]
        if j == 30: L = v_reads(31, AK)
        if j == 27:
            spin_check(e, 'L_key', key_loads, [KEYR + 1, KEYR + 3, KEYR + 5, KEYR + 7])
            r = Rec()
            r(f"v_max3_u32 {v(KEYR)}, {v(KEYR)}, {v(KEYR+2)}, {v(KEYR+4)}\nv_max_u32 {v(KEYR)}, {v(KEYR)}, {v(KEYR+6)}")
            allreduce(r, [KEYR], [KEYR + 1], 'v_max_u32')
            r(f"v_readfirstlane_b32 {s(SKEY)}, {v(KEYR)}")
            r(f"s_andn2_b32 {s(STS)}, 2047, {s(SKEY)}")
            srd(r, RA, PX, 2097152)
            r(f"s_lshl_b32 {s(T0)}, {s(STS)}, 10\ns_lshl_b32 {s(T1)}, {s(STS)}, 3\ns_add_u32 {s(T1)}, {s(T1)}, {WS_ST}")
            r(f"v_mov_b32 {v(KEYR+6)}, 0\nv_lshrrev_b32 {v(KEYR+7)}, 3, {v(L16)}")
            r(f"buffer_load_dwordx4 {v(KEYR,4)}, {v(L16)}, {s(RA,4)}, {s(T0)} offen @@xs")
            r(f"buffer_load_dwordx2 {v(KEYR+4,2)}, {v(KEYR+6)}, {s(SWS,4)}, {s(T1)} offen sc1 @@xs")
            r(f"s_lshl_b32 {s(T1)}, {s(SCB)}, 7\ns_add_u32 {s(T0)}, {s(T0)}, {s(T1)}")
            r(f"buffer_load_ushort {v(KEYR+6)}, {v(KEYR+7)}, {s(RA,4)}, {s(T0)} offen @@xs")
            for k, t in enumerate(r): extra[2 + 2 * k] = [t]
        sm = phaseB(e, j, items, L=L, target=tgt if j < 30 else None, extra=extra, endbar=(j == 30))
        stamp(e, grp=8)
    XR, GP, FST = 224, 232, 232
    M, st = pv_mfmas(31, src=AK, ksmajor=(3,))
    items = wo_issue(7, OFFV)
    items += [('D', f"buffer_load_dwordx4 {v(XR,4)}, {v(OUTV)}, {s(RA,4)}, {s(WSO)} offen @@ex"),
              ('D', f"buffer_load_dwordx4 {v(XR+4,4)}, {v(OUTV)}, {s(RA,4)}, {s(WSO)} offen offset:16 @@ex"),
              ('D', f"buffer_load_dwordx2 {v(FST,2)}, {v(STV)}, {s(SWS,4)}, {s(SFS)} offen sc1 @@ex")]
    g = fill(NB, sm, [], 0, 1, finish=True)
    assert sm.remE() == 0 and sm.remV() == 0
    g = pack_gaps(NB - 4, items, [], start=max(g) + 1, fixed=g)
    for p, its in g.items():
        for t in its:
            if 'cvt_pk' in t:
                r = int(t.split()[1].strip('v,')) - S1
                assert p < st[(r >> 4, (r >> 3) & 1)] - 1, (t, p, st)
    g[NB - 4] = g.get(NB - 4, []) + [f"v_mov_b32 {v(TRLO)}, {v(TRB)}", f"v_xor_b32 {v(TRLO+1)}, 32, {v(TRB)}"]
    g[NB - 3] = g.get(NB - 3, []) + [f"v_xor_b32 {v(TRLO+2)}, 64, {v(TRB)}", f"v_xor_b32 {v(TRLO+3)}, 96, {v(TRB)}"]
    g[NB - 2] = g.get(NB - 2, []) + [f"v_add_u32 {v(TRB)}, 7168, {v(WOV)}", f"v_add_u32 {v(DUM)}, {2*7168}, {v(WOV)}"]
    g[NB - 1] = g.get(NB - 1, []) + [f"v_add_u32 {v(TCH)}, {3*7168}, {v(WOV)}"]
    show('B31', g, NB)
    e.weave(M, g)
    stamp(e, grp=9)
    IL = NEGM; TT = [NEGM + 8 + i for i in range(4)]; CHK = NEGM + 12; ZB = QF
    vq_ = [q for q in range(4) if q not in OPT['msum']]
    if vq_: allreduce(e, [LV + q for q in vq_], [TT[q] for q in vq_], dpp=())
    e(f"s_lshl_b32 {s(T0)}, {s(SQB)}, 2\ns_add_u32 {s(T0)}, {s(T0)}, s3\ns_lshl_b32 {s(T0)}, {s(T0)}, 19\ns_lshl_b32 {s(T1)}, {s(SH)}, 14\ns_add_u32 {s(T0)}, {s(T0)}, {s(T1)}")
    e(f"s_mov_b32 {s(T1)}, {fh(OPT['lthr'])}")
    for q in range(4): e(f"v_rcp_f32 {v(IL+2*q)}, {v(LV + q if q in vq_ else lacc(q))}")
    e("WAITVM w0,w1,w2")
    side = Rec()
    for i in range(4): side(f"v_mov_b32 {v(ZB+i)}, 0")
    for n in range(3):
        for t in wo_reads(n): side(t)
    for q in range(4):
        src = LV + q if q in vq_ else lacc(q)
        side(f"v_cmp_nlt_f32 {s(RB + 2*q, 2)}, {v(src)}, {s(T1)}")
    for i in range(4): side(f"v_add_u32 {v(TRHI+i)}, 65536, {v(TRLO+i)}")
    side(f"s_or_b64 {s(RB,2)}, {s(RB,2)}, {s(RB+2,2)}\ns_or_b64 {s(RB+4,2)}, {s(RB+4,2)}, {s(RB+6,2)}\ns_or_b64 {s(RB,2)}, {s(RB,2)}, {s(RB+4,2)}")
    side("WAITVM w3,w4,w5,w6,w7")
    for n in range(3, 8):
        for t in wo_reads(n): side(t)
    pend = None
    for t in range(4):
        for q in range(4):
            b = ((t * 4 + q) & 7) * 16
            for k in range(8):
                e(f"v_accvgpr_read_b32 {v(b+k)}, {a(AO + 4*(8*q + 2*t) + k)}")
                if k in (1, 3, 5) and side: e(side.pop(0))
            if pend: e(pend)
            for k in range(8):
                e(f"v_mul_f32 {v(b+k)}, {v(b+k)}, {v(IL+2*q)}")
                if k in (1, 4) and side: e(side.pop(0))
            for k in range(4): e(f"v_cvt_pk_bf16_f32 {v(b+8+k)}, {v(b+2*k)}, {v(b+2*k+1)}")
            e(f"buffer_store_dwordx4 {v(b+8,4)}, {v(L16)}, {s(SWS,4)}, {s(T0)} offen offset:{q*1024} sc1 @@o")
            pend = f"{MF} {v(CHK,4)}, {v(ZB,4)}, {v(b+8,4)}, {'0' if t == 0 and q == 0 else v(CHK,4)}"
        if t < 3: e(f"s_add_u32 {s(T0)}, {s(T0)}, 4096")
    e(pend)
    for x in side: e(x)
    stamp(e)
    e(f"s_lshl_b32 {s(T1)}, s3, 2\ns_add_u32 {s(T1)}, {s(T1)}, {L_FAIL}\nv_mov_b32 v1, {s(T1)}\nv_mov_b32 v2, {s(TAG)}\nv_mov_b32 v3, {L_FAIL}\ns_waitcnt lgkmcnt(0)")
    e(f"v_cmp_u_f32 vcc, {v(CHK)}, {v(CHK)}\ns_or_b64 vcc, vcc, {s(RB,2)}\ns_cmp_lg_u64 vcc, 0\ns_cselect_b32 {s(T0)}, 1, 0\ns_andn2_b32 {s(T0)}, {s(T0)}, {s(MODE)}")
    e(f"v_mov_b32 v0, {s(T0)}\nds_write_b32 v1, v0")
    for n in range(8, 8 + OPT['npre']):
        for k, t in wo_issue(n, OFFV): e(t)
    e(f"s_lshl_b32 {s(T0)}, {s(SQB)}, 5\ns_add_u32 {s(T0)}, {s(T0)}, {s(SH)}\ns_lshl_b32 {s(T0)}, {s(T0)}, 2\ns_add_u32 {s(T0)}, {s(T0)}, {WS_FLAG}")
    e(f"s_cmp_eq_u32 s3, 0\ns_cselect_b32 {s(T0)}, {s(T0)}, {FAR}")
    e("WAITVM o lgkm\ns_barrier\nds_read_b128 v[4:7], v3")
    e(f"s_waitcnt lgkmcnt(0)\nv_or3_b32 v4, v4, v5, v6\nv_or_b32 v4, v4, v7\nv_readfirstlane_b32 {s(T1)}, v4\ns_cmp_lg_u32 {s(T1)}, 0\ns_cbranch_scc1 L_fail")
    OOL.extend(f"L_fail:\ns_mov_b32 {s(MODE)}, 1\ns_waitcnt vmcnt(0)\ns_barrier\ns_branch L_restart".split('\n'))
    e(f"buffer_store_dword v2, {v(Z0)}, {s(SWS,4)}, {s(T0)} offen sc1")
    e(f"s_add_u32 {s(SFS)}, {s(T0)}, {WS_FLAG2 - WS_FLAG}")
    stamp(e)
    def mix(items, stream, per):
        for k, t in items:
            e(t)
            if k == 'D':
                for _ in range(per):
                    if stream: e(stream.pop(0))
    f_ = Rec()
    XS, SS, XC = KEYR, KEYR + 4, KEYR + 6
    FA, FB = 64, 128
    e("WAITVM xs,fw,ex")
    f_(f"v_lshlrev_b32 {v(SS+1)}, 16, {v(SS)}\nv_and_b32 {v(SS)}, 0xffff0000, {v(SS)}\nv_rcp_f32 {v(SS+1)}, {v(SS+1)}\nv_lshlrev_b32 v8, 16, {v(XC)}")
    f_(f"v_lshrrev_b32 v18, 4, {v(L16)}\nv_lshrrev_b32 v19, 4, v18\nv_lshlrev_b32 v19, 3, v19\nv_bfe_u32 v20, v18, 2, 2\nv_add_u32 v19, v19, v20\nv_lshlrev_b32 v19, 4, v19")
    f_(f"v_and_b32 v20, 1, v18\nv_lshlrev_b32 v20, 3, v20\nv_add_u32 v19, v19, v20\nv_bfe_u32 v20, v18, 1, 1\nv_lshlrev_b32 v20, 13, v20\nv_add_u32 v19, v19, v20\nv_add_u32 v19, {L_F}, v19")
    fr = [f"ds_read_b64_tr_b16 {v(FA+4*kk+2*jh,2)}, v19 offset:{512*kk + 64*jh}" for kk in range(16) for jh in range(2)]
    x_ = Rec()
    for j in range(4): unpack(x_, 2 * j, XS + j)
    for j in range(9): x_(f"v_sub_f32 {v(j)}, {v(j)}, {v(SS)}")
    bfrn(x_, 0, 10)
    for j in range(9): x_(f"v_mul_f32 {v(j)}, {v(j)}, {v(SS+1)}")
    for j in range(4): x_(f"v_cvt_pk_bf16_f32 {v(12+j)}, {v(2*j)}, {v(2*j+1)}")
    x_(f"v_cvt_pk_bf16_f32 v8, v8, v8\ns_lshl_b32 {s(T1)}, s3, 10\ns_add_u32 {s(T1)}, {s(T1)}, {L_F + 24576}\nv_add_u32 v16, {s(T1)}, {v(L16)}\nv_lshlrev_b32 {v(STV)}, 16, v8")
    while x_ or fr:
        if x_: f_(x_.pop(0))
        if fr: f_(fr.pop(0))
    f_("ds_write_b128 v16, v[12:15]")
    f_(f"v_lshrrev_b32 v17, 8, {v(L16)}\nv_lshlrev_b32 v17, 4, v17\nv_add_u32 v17, {s(T1)}, v17")
    for kk in range(16): f_(f"ds_read_b128 {v(FB+4*kk,4)}, v17 offset:{64*kk}")
    f_(f"v_lshlrev_b32 v18, 2, v18\ns_lshl_b32 {s(T1)}, s3, 8\ns_add_u32 {s(T1)}, {s(T1)}, {L_F + 16384}\nv_add_u32 v18, {s(T1)}, v18")
    for f in range(8): f_(f"ds_read_b32 {v(32+f)}, v18 offset:{1024*f}")
    f_(f"v_lshrrev_b32 v30, 1, {v(L16)}\ns_lshl_b32 {s(CNT)}, {s(SU)}, 11\ns_lshl_b32 {s(T1)}, s3, 9\ns_add_u32 {s(CNT)}, {s(CNT)}, {s(T1)}\ns_add_u32 {s(CNT)}, {s(CNT)}, {WS_Y}")
    f_("s_waitcnt lgkmcnt(8)")
    for kk in range(16): f_(f"{MF} {v(20 + 4*(kk&1), 4)}, {v(FA+4*kk,4)}, {v(FB+4*kk,4)}, {'0' if kk < 2 else v(20 + 4*(kk&1), 4)}")
    f_("s_waitcnt lgkmcnt(0)")
    for f in range(8): unpack(f_, 40 + 2 * f, 32 + f)
    for r in range(4): f_(f"v_add_f32 {v(20+r)}, {v(20+r)}, {v(24+r)}")
    bfrn(f_, 20, 4)
    for r in range(4): f_(f"v_mov_b32 {v(24+r)}, {v(20+r)}")
    for r in range(4): f_(f"v_permlane32_swap_b32 {v(20+r)}, {v(24+r)}")
    silun(f_, 20, 32, 4); bfrn(f_, 20, 4)
    for r in range(4): f_(f"v_mul_f32 {v(20+r)}, {v(20+r)}, {v(24+r)}")
    bfrn(f_, 20, 4)
    for f in range(8): f_(f"v_readlane_b32 {s(RB+f)}, {v(20+(f&3))}, {16*(f>>2)}")
    for f in range(8):
        for h in range(2): f_(f"{'v_mul_f32' if f == 0 else 'v_fmac_f32'} {v(28+h)}, {s(RB+f)}, {v(40+2*f+h)}")
    srd(f_, RC, PWS, WS_Y + NFFN * 2048)
    f_(f"buffer_store_dwordx2 v[28:29], v30, {s(RC,4)}, {s(CNT)} offen sc1 @@ys")
    mix([x for n in range(8 + OPT['npre'], 16) for x in wo_issue(n, OFFV)], f_, OPT['mixf'])
    for x in f_: e(x)
    stamp(e)
    e("WAITVM w8,w9,w10,w11,w12,w13,w14,w15")
    for n in range(8, 16):
        for t in wo_reads(n): e(t)
    G, TG = 64, 80
    g_ = Rec()
    g_(f"v_lshlrev_b32 {v(FST+1)}, 16, {v(FST)}\nv_and_b32 {v(FST)}, 0xffff0000, {v(FST)}\nv_rcp_f32 {v(FST+1)}, {v(FST+1)}")
    for j in range(8): unpack(g_, G + 2 * j, XR + j)
    for j in range(16): g_(f"v_sub_f32 {v(G+j)}, {v(G+j)}, {v(FST)}")
    bfrn(g_, G, 16)
    for j in range(16): g_(f"v_mul_f32 {v(G+j)}, {v(G+j)}, {v(FST+1)}")
    bfrn(g_, G, 16)
    silun(g_, G, TG, 16)
    for j in range(8): g_(f"v_cvt_pk_bf16_f32 {v(GP+j)}, {v(G+2*j)}, {v(G+2*j+1)}")
    YV, FL, YB = KEYR, 192, 192
    BO0, BO1 = MX, MX + 1
    e(f"s_lshr_b32 {s(T0)}, {s(STS)}, 6\ns_cmp_eq_u32 {s(T0)}, {s(SRB)}\ns_cselect_b32 {s(RC+2)}, {WS_Y + NFFN*2048}, 0\ns_cselect_b64 {s(RB,2)}, -1, 0")
    e(f"v_bfe_u32 {v(YV+1)}, {v(L16)}, 4, 3\nv_lshlrev_b32 {v(YV+1)}, 2, {v(YV+1)}")
    e(f"s_and_b32 {s(T0)}, s2, 7\ns_lshl_b32 {s(T0)}, {s(T0)}, 7\ns_lshl_b32 {s(T1)}, s3, 5\ns_add_u32 {s(T0)}, {s(T0)}, {s(T1)}\ns_add_u32 {s(MX+2)}, {s(T0)}, {WS_FLAG}")
    e(f"s_lshl_b32 {s(T0)}, {s(SRB)}, 19\ns_lshl_b32 {s(T1)}, s3, 17\ns_add_u32 {s(T0)}, {s(T0)}, {s(T1)}"); srd(e, SX, PWS, 0x20000, s(T0))
    e(f"s_lshl_b32 {s(BO0)}, {s(ROT)}, 14\ns_add_u32 {s(BO1)}, {s(BO0)}, 4096")
    e(f"s_lshl_b32 {s(OFFK)}, s3, 13\ns_lshl_b32 {s(T0)}, {s(SCB)}, 8\ns_add_u32 {s(OFFK)}, {s(OFFK)}, {s(T0)}\ns_add_u32 {s(OFFK)}, {s(OFFK)}, {WS_Y}")
    e(f"v_lshrrev_b32 {v(YV)}, 8, {v(L16)}\nv_lshlrev_b32 {v(YV)}, 11, {v(YV)}\nv_and_b32 {v(YV+3)}, 0xf0, {v(L16)}\nv_add_u32 {v(YV)}, {v(YV)}, {v(YV+3)}")
    e(f"v_mov_b32 v31, {s(TAG)}\nWAITVM ys lgkm\ns_barrier")
    e(f"buffer_store_dword v31, {v(Z0)}, {s(SWS,4)}, {s(SFS)} offen sc1")
    poll = [f"buffer_load_dword {v(YV+2)}, {v(YV+1)}, {s(SWS,4)}, {s(MX+2)} offen sc1 @@poll"]
    pp = 16 + OPT['pollat']
    mix([x for n in range(16, pp) for x in wo_issue(n, OFFV)] + [('D', poll[0])] + [x for n in range(pp, 24) for x in wo_issue(n, OFFV)], g_, OPT['mixg'])
    for x in g_: e(x)
    stamp(e)
    e("WAITVM poll")
    spin_check(e, 'L_poll', poll, [YV + 2])
    stamp(e, grp=17)
    BR = 64
    def bload(n, i): return f"buffer_load_dwordx4 {v(BR + 16*(n & 7) + 4*i, 4)}, {v(L16)}, {s(SX,4)}, {s(BO1 if n & 1 else BO0)} offen offset:{1024*i} {OPT['fo']} @@b{n}_{i}"
    def badv(p): return [f"s_add_u32 {s(BO0)}, {s(BO0)}, 8192"] + ([f"s_and_b32 {s(BO0)}, {s(BO0)}, 0x1ffff"] if p & 1 else []) + [f"s_add_u32 {s(BO1)}, {s(BO0)}, 4096"]
    for p in range(4):
        for i in range(4): e(bload(2 * p, i)); e(bload(2 * p + 1, i))
        for t in badv(p): e(t)
    allf = [f"buffer_load_dwordx4 {v(FL,4)}, {v(L16)}, {s(SWS,4)}, {s(T1)} offen sc1 @@allf"]
    e(f"s_mov_b32 {s(T1)}, {WS_FLAG2}"); e(allf[0])
    YS = KEYR + 4
    def yload(i, k): return f"buffer_load_dwordx4 {v(YB + 4*k, 4)}, {v(YV)}, {s(RC,4)}, {s(OFFK)} offen sc1 @@y{i}"
    yadv = f"s_add_u32 {s(OFFK)}, {s(OFFK)}, 32768"
    for p in range(16):
        M = []; fixed = {}
        for i in range(4):
            for nb in range(4):
                d = v(4 * (4 * nb + i), 4)
                for h in range(2):
                    n = 2 * p + h
                    M.append(f"{MF} {d}, {a(aloc(n) + 4*nb, 4)}, {v(BR + 16*(n & 7) + 4*i, 4)}, {'0' if n == 0 else d}")
        pre = []
        if p == 0: pre.append("WAITVM b0_0,b1_0")
        nxt = lambda i: (f"b{2*p}_{i},b{2*p+1}_{i}" if i < 4 else f"b{2*p+2}_0,b{2*p+3}_0")
        lq = []; dq = []; vq = Rec()
        lg = False
        if 1 <= p <= 4:
            lq = wo_reads(2 * p + 14) + wo_reads(2 * p + 15); lg = True
            if p == 1: pre.append("WAITVM w16,w17,w18,w19,w20,w21,w22,w23")
        if 2 <= p <= 5: dq = wo_issue(2 * p + 20, OFFV) + wo_issue(2 * p + 21, OFFV)
        if 8 <= p <= 11:
            lq = wo_reads(2 * p + 8) + wo_reads(2 * p + 9); lg = True
            pre.append(f"WAITVM w{2*p+8},w{2*p+9}")
        if p == 2: pre.append("WAITVM allf"); pre.append(('spin', 'L_allf', [f"s_mov_b32 {s(T1)}, {WS_FLAG2}"] + allf, [FL, FL + 1, FL + 2, FL + 3], RB))
        if p == 6:
            for k in range(6): dq += [('D', yload(0, k)), ('S', yadv)]
        if p == 9:
            pre.append("WAITVM y0")
            for r in range(4): vq(f"v_add_f32 {v(YS+r)}, {v(YB+r)}, {v(YB+4+r)}")
        if p == 10:
            for k in range(2, 6):
                for r in range(4): vq(f"v_add_f32 {v(YS+r)}, {v(YS+r)}, {v(YB+4*k+r)}")
        if p == 11:
            for k in range(5): dq += [('D', yload(1, k)), ('S', yadv)]
        if p == 13:
            pre.append("WAITVM y1")
            for k in range(5):
                for r in range(4): vq(f"v_add_f32 {v(YS+r)}, {v(YS+r)}, {v(YB+4*k+r)}")
            allreduce(vq, [YS + r for r in range(4)], [YB + r for r in range(4)], dpp=())
            vq(f"v_and_b32 {v(YB)}, 0xf0, {v(L16)}\ns_lshl_b32 {s(T0)}, s3, 8\ns_add_u32 {s(T0)}, {s(T0)}, {L_YW}\nv_add_u32 {v(YB)}, {s(T0)}, {v(YB)}")
            vq(f"ds_write_b128 {v(YB)}, {v(YS,4)}")
            lg = True
        if p == 14:
            pre.append("s_barrier")
            vq(f"v_lshrrev_b32 {v(YB)}, 2, {v(L16)}\nv_add_u32 {v(YB)}, {L_YW}, {v(YB)}")
            for w in range(4): vq(f"ds_read_b32 {v(YB+4+w)}, {v(YB)} offset:{256*w}")
            vq(f"s_and_b32 {s(T0)}, {s(SKEY)}, 0xffff0000\ns_xor_b32 {s(T1)}, {s(T0)}, 0x80000000\ns_xor_b32 {s(CNT)}, {s(T0)}, 0xffff0000\ns_bitcmp1_b32 {s(T0)}, 31\ns_cselect_b32 {s(T0)}, {s(T1)}, {s(CNT)}")
            vq(f"v_mov_b32 {v(YB+8)}, {s(T0)}\nv_mul_f32 {v(YB+8)}, {fh(-LOG2E)}, {v(YB+8)}\nv_exp_f32 {v(YB+8)}, {v(YB+8)}\nv_lshrrev_b32 {v(YB+1)}, 3, {v(L16)}\nv_add_f32 {v(YB+8)}, 1.0, {v(YB+8)}\nv_rcp_f32 {v(YB+8)}, {v(YB+8)}")
            vq(f"s_lshl_b32 {s(T0)}, s3, 7\ns_add_u32 {s(T0)}, {s(T0)}, {L_GS}\nv_add_u32 {v(YB+1)}, {s(T0)}, {v(YB+1)}")
            bfr1(vq, YB + 8)
            vq("s_waitcnt lgkmcnt(0)")
            vq(f"v_add_f32 {v(YB+4)}, {v(YB+4)}, {v(YB+5)}\nv_add_f32 {v(YB+6)}, {v(YB+6)}, {v(YB+7)}\nv_add_f32 {v(YB+4)}, {v(YB+4)}, {v(YB+6)}")
            bfr1(vq, YB + 4)
            vq(f"v_mul_f32 {v(YB+4)}, {v(YB+4)}, {v(YB+8)}"); bfr1(vq, YB + 4)
            vq(f"v_add_f32 {v(YB+4)}, {v(YB+4)}, {v(STV)}"); bfr1(vq, YB + 4)
            silun(vq, YB + 4, YB + 5, 1)
            vq(f"v_cvt_pk_bf16_f32 {v(YB+4)}, {v(YB+4)}, {v(YB+4)}\nds_write_b16 {v(YB+1)}, {v(YB+4)}")
            vq(f"v_bfe_u32 {v(YB+2)}, {v(L16)}, 4, 2\nv_lshlrev_b32 {v(YB+2)}, 5, {v(YB+2)}\nv_add_u32 {v(YB+2)}, {s(T0)}, {v(YB+2)}")
            vq(f"ds_read_b128 {v(YB+8,4)}, {v(YB+2)}\nds_read_b128 {v(YB+12,4)}, {v(YB+2)} offset:16")
            lg = True
        if p == 15:
            vq(f"s_sub_u32 {s(T0)}, {s(STS)}, {s(XSO)}\nv_lshrrev_b32 {v(YB)}, 6, {v(L16)}\nv_cmp_eq_u32 vcc, {s(T0)}, {v(YB)}\ns_nop 0")
            for j in range(8): vq(f"v_cndmask_b32 {v(GP+j)}, {v(GP+j)}, {v(YB+8+j)}, vcc")
            R = YB + 16
            vq(f"v_lshrrev_b32 {v(YB)}, 4, {v(L16)}\nv_and_b32 {v(YB+1)}, 15, {v(YB)}\nv_lshrrev_b32 {v(YB+2)}, 4, {v(YB)}\nv_lshlrev_b32 {v(YB+3)}, 8, {v(YB+1)}\nv_xor_b32 {v(YB+2)}, {v(YB+2)}, {v(YB+1)}\nv_lshlrev_b32 {v(YB+2)}, 4, {v(YB+2)}")
            vq(f"s_lshl_b32 {s(T0)}, s3, 14\nv_add3_u32 {v(R)}, {v(YB+3)}, {v(YB+2)}, {s(T0)}")
            for k in range(1, 4): vq(f"v_xor_b32 {v(R+k)}, {k << 6}, {v(R)}")
            vq(f"v_lshrrev_b32 {v(YB+1)}, 2, {v(YB)}\nv_lshlrev_b32 {v(YB+3)}, 8, {v(YB+1)}\nv_and_b32 {v(YB+2)}, 3, {v(YB)}\nv_lshlrev_b32 {v(YB+2)}, 2, {v(YB+2)}\nv_xor_b32 {v(YB+2)}, {v(YB+2)}, {v(YB+1)}\nv_lshlrev_b32 {v(YB+2)}, 4, {v(YB+2)}")
            vq(f"s_lshl_b32 {s(T0)}, s3, 12\nv_add3_u32 {v(R+4)}, {v(YB+3)}, {v(YB+2)}, {s(T0)}")
            for k in range(1, 4): vq(f"v_xor_b32 {v(R+4+k)}, {k << 4}, {v(R+4)}")
        for i in range(4):
            gp = 8 * i + 7
            w = []
            if not (p == 15 and i == 3): w.append(f"WAITVM {nxt(i+1)}" + (" lgkm" if (i == 3 and lg) else ""))
            fixed[gp] = w
            if p < 12:
                if i < 3: fixed[gp + 1] = [bload(2 * p + 8, i)]; fixed[gp + 2] = [bload(2 * p + 9, i)]
            if p >= 1 and p < 13 and i == 0:
                fixed[0] = [bload(2 * p + 6, 3)]; fixed[1] = [bload(2 * p + 7, 3)]; fixed[2] = badv(p + 3)
        for x in pre:
            if isinstance(x, tuple): spin_check(e, x[1], x[2], x[3], x[4])
            else: e(x)
        if p in (0, 1, 2, 4, 6, 8, 10, 12, 14): stamp(e, grp=16)
        g = pack_gaps(32, dq, lq, vq, lend=28, fixed=fixed)
        if vq: g[31] = list(vq) + g.get(31, []); del vq[:]
        show(f'O{p}', g, 32)
        e.weave(M, g)
    stamp(e, grp=17)
    R = YB + 16
    for nb in range(4):
        for i in range(4): e(f"ds_write_b128 {v(R+nb)}, {v(4*(4*nb+i), 4)} offset:{i*4096}")
    GF, XF = 128, 144
    for j in range(8): unpack(e, GF + 2 * j, GP + j)
    for j in range(8): unpack(e, XF + 2 * j, XR + j)
    srd(e, RA, POUT, 2097152)
    e("s_waitcnt lgkmcnt(0)\ns_barrier")
    for sw_ in range(4):
        for i in range(4): e(f"ds_read_b128 {v(64 + 16*sw_ + 4*i, 4)}, {v(R+4+i)} offset:{sw_*16384}")
        if sw_ == 2: e("s_waitcnt lgkmcnt(4)")
    for j in range(16): e(f"v_add_f32 {v(64+j)}, {v(64+j)}, {v(80+j)}")
    e("s_waitcnt lgkmcnt(4)")
    for j in range(16): e(f"v_add_f32 {v(64+j)}, {v(64+j)}, {v(96+j)}")
    e("s_waitcnt lgkmcnt(0)")
    for j in range(16): e(f"v_add_f32 {v(64+j)}, {v(64+j)}, {v(112+j)}")
    bfrn(e, 64, 16)
    for j in range(16): e(f"v_mul_f32 {v(64+j)}, {v(64+j)}, {v(GF+j)}")
    bfrn(e, 64, 16)
    for j in range(16): e(f"v_add_f32 {v(64+j)}, {v(64+j)}, {v(XF+j)}")
    for j in range(8): e(f"v_cvt_pk_bf16_f32 {v(80+j)}, {v(64+2*j)}, {v(65+2*j)}")
    e(f"buffer_store_dwordx4 v[80:83], {v(OUTV)}, {s(RA,4)}, {s(WSO)} offen\nbuffer_store_dwordx4 v[84:87], {v(OUTV)}, {s(RA,4)}, {s(WSO)} offen offset:16")
    e(f"s_add_u32 {s(T0)}, s2, s3\ns_cmp_eq_u32 {s(T0)}, 0\ns_cselect_b32 {s(T0)}, {WS_EPOCH}, {FAR}\ns_add_u32 {s(T1)}, {s(EPO)}, 1\nv_mov_b32 v0, {s(T1)}")
    e(f"buffer_store_dword v0, {v(Z0)}, {s(SWS,4)}, {s(T0)} offen")
    e("s_waitcnt vmcnt(0)")
    stamp_out(e)
    e("L_end:\ns_endpgm")
    return e.L

HDR = open('recurrent_scan__mha_block_cached__moe_arch_mod__prompt.s.ref').read().split('; Override launch')[0]

def main():
    L = kernel()
    rep = []
    L2 = autonop(L, rep)
    if OPT.get('shownop'):
        for k, why in rep: print('nop', k, why, file=sys.stderr)
    for p in check(L2, 'main'): print(p, file=sys.stderr)
    O2 = autonop(OOL)
    out = [HDR.rstrip(), "; @launch grid=(256,1,1) block=(256,1,1) lds=163840", '.amdgcn_target "amdgcn-amd-amdhsa--gfx950"\n.text']
    out.append(f".globl {KNAME}\n.p2align 8\n.type {KNAME},@function\n{KNAME}:")
    out += ['    ' + x if not x.endswith(':') else x for x in L2 + O2]
    out.append(f""".section .rodata,"a"
.p2align 6
.amdhsa_kernel {KNAME}
  .amdhsa_next_free_vgpr 512
  .amdhsa_next_free_sgpr 102
  .amdhsa_accum_offset 256
  .amdhsa_group_segment_fixed_size 0
  .amdhsa_kernarg_size 104
  .amdhsa_user_sgpr_count 2
  .amdhsa_user_sgpr_kernarg_segment_ptr 1
  .amdhsa_system_sgpr_workgroup_id_x 1
.end_amdhsa_kernel""")
    open(sys.argv[1], 'w').write('\n'.join(out) + '\n')

main()
```

```python
import re

TRANS = ('v_exp_f32', 'v_log_f32', 'v_rcp_f32', 'v_rsq_f32', 'v_sqrt_f32', 'v_sin_f32', 'v_cos_f32')
REG_RE = re.compile(r'\b([vas])(\d+)\b|\b([vas])\[(\d+):(\d+)\]|\b(vcc|exec|m0|scc)\b')


def v(i, n=1): return f"v{i}" if n == 1 else f"v[{i}:{i+n-1}]"
def a(i, n=1): return f"a{i}" if n == 1 else f"a[{i}:{i+n-1}]"
def s(i, n=1): return f"s{i}" if n == 1 else f"s[{i}:{i+n-1}]"


def regs_of(tok):
    out = set()
    for m in REG_RE.finditer(tok):
        if m.group(1): out.add((m.group(1), int(m.group(2))))
        elif m.group(3):
            for i in range(int(m.group(4)), int(m.group(5)) + 1): out.add((m.group(3), i))
        else: out.add((m.group(6), 0))
    return out


class I:
    __slots__ = ('txt', 'op', 'kind', 'defs', 'uses', 'cuse', 'abuse', 'dpp', 'states', 'wide', 'data')

    def __init__(self, txt):
        self.txt = txt
        t = txt.split(';')[0].strip()
        self.defs = set(); self.uses = set(); self.cuse = set(); self.abuse = set(); self.dpp = False
        self.states = 1; self.wide = False; self.data = set()
        if not t or t.endswith(':') or t.startswith('.'):
            self.op = ''; self.kind = 'meta'; self.states = 0
            if t.endswith(':'): self.kind = 'label'
            return
        sp = t.split(None, 1)
        op = sp[0]; rest = sp[1] if len(sp) > 1 else ''
        self.op = op
        ops = [x.strip() for x in rest.split(',')]
        R = [regs_of(x) for x in ops]
        allr = set().union(*R) if R else set()
        if op.startswith('v_mfma'):
            self.kind = 'mfma'; self.defs = R[0]; self.abuse = R[1] | R[2]; self.cuse = R[3]; self.uses = self.abuse | self.cuse
        elif op.startswith('v_'):
            base = op.replace('_e32', '').replace('_e64', '').replace('_dpp', '')
            self.kind = 'trans' if base in TRANS else 'valu'
            self.dpp = ('row_' in rest) or ('quad_perm' in rest) or op.endswith('_dpp')
            if 'permlane' in op and 'swap' in op:
                self.defs = R[0] | R[1]; self.uses = R[0] | R[1]
            elif op.startswith('v_add_co') or op.startswith('v_addc_co') or op.startswith('v_sub_co'):
                self.defs = R[0] | R[1]; self.uses = set().union(*R[2:])
            elif op == 'v_nop':
                pass
            else:
                self.defs = R[0]; self.uses = set().union(*R[1:]) if len(R) > 1 else set()
                if 'fmac' in op or 'dot2c' in op or op.startswith('v_mac') or self.dpp or op.startswith('v_writelane'):
                    self.uses |= R[0]
        elif op.startswith('ds_'):
            self.kind = 'lds'
            if op.startswith('ds_read') or 'permute' in op or 'swizzle' in op or '_rtn' in op:
                self.defs = R[0]; self.uses = set().union(*R[1:])
            else:
                self.uses = allr; self.data = set().union(*R[1:]) if len(R) > 1 else set()
        elif op.startswith('buffer_') or op.startswith('global_'):
            self.kind = 'vmem'
            if op in ('buffer_wbl2', 'buffer_inv'):
                pass
            elif re.search(r'\blds\b', rest):
                self.kind = 'dma'; self.uses = allr | {('m0', 0)}
            elif 'load' in op:
                self.defs = R[0]; self.uses = set().union(*R[1:])
            elif 'atomic' in op:
                self.uses = allr
                if 'sc0' in rest: self.defs = R[0]
            else:
                self.uses = allr
                self.data = R[0] if op.startswith('buffer_') else R[1]
                self.wide = op.endswith('x4') or op.endswith('x3')
        elif op.startswith('s_'):
            if op == 's_waitcnt': self.kind = 'wait'
            elif op == 's_nop': self.kind = 'nop'; self.states = int(rest, 0) + 1
            elif op == 's_barrier': self.kind = 'barrier'
            elif op.startswith('s_cbranch') or op in ('s_branch', 's_endpgm'): self.kind = 'branch'
            elif op.startswith('s_load') or op.startswith('s_buffer_load') or op in ('s_memtime', 's_memrealtime') or op.startswith('s_atomic'):
                self.kind = 'smem'; self.defs = R[0]; self.uses = set().union(*R[1:]) if len(R) > 1 else set()
            elif op.startswith('s_cmp') or op.startswith('s_bitcmp') or op in ('s_setprio', 's_sleep'):
                self.kind = 'salu'; self.uses = allr
            else:
                self.kind = 'salu'; self.defs = R[0]; self.uses = set().union(*R[1:]) if len(R) > 1 else set()
                if 'saveexec' in op: self.defs |= {('exec', 0)}
        else:
            raise ValueError('unknown op ' + txt)


def isv(r): return r[0] in ('v', 'a')


VAL = ('valu', 'trans')


def need_states(ins, c):
    if c.kind in ('label', 'nop', 'wait', 'barrier', 'branch', 'meta'): return 0, ''
    st = 0; nm = 0; after = 0
    best = 0; bwhy = ''
    k = len(ins) - 1
    while k >= 0 and st < 12:
        p = ins[k]
        need = 0; why = ''
        if p.kind in VAL:
            pv = {r for r in p.defs if isv(r)}
            ps = {r for r in p.defs if not isv(r)}
            if c.kind == 'mfma' and pv & c.uses: need = 2; why = 'valu->mfma'
            if c.kind in VAL and c.dpp and pv & c.uses: need = max(need, 2); why = 'valu->dpp'
            if 'permlane' in c.op and pv & c.uses: need = max(need, 2); why = 'valu->permlane'
            if (c.op.startswith('v_readlane') or c.op.startswith('v_readfirstlane')) and pv & c.uses: need = max(need, 1); why = 'valu->readlane'
            if p.kind == 'trans' and c.kind in ('valu', 'lds', 'vmem') and pv & c.uses: need = max(need, 1); why = why or 'trans->use'
            if ps and c.kind in ('vmem', 'dma') and ps & c.uses: need = max(need, 5); why = 'valu sgpr->vmem'
            if ps and c.kind in VAL and ps & c.uses:
                need = max(need, 4 if ('readlane' in c.op or 'writelane' in c.op) else 2); why = 'valu sgpr->valu'
            if ps and c.kind in ('salu', 'smem') and ps & c.uses: need = max(need, 1); why = 'valu sgpr->salu'
            need -= st
        elif p.kind == 'mfma':
            tmin = max(4 * (st + 1), 16 * nm + 4 * (after + 1))
            d = p.defs
            tn = 0
            if c.kind == 'mfma':
                if d & c.abuse: tn = 40; why = 'mfma D->AB'
                elif d & c.cuse and d != c.cuse: tn = 32; why = 'mfma D->C partial'
                elif d & c.defs and d != c.cuse: tn = 40; why = 'mfma WAW'
            elif c.kind in VAL + ('lds', 'vmem', 'dma'):
                if d & (c.uses | c.defs): tn = 40; why = 'mfma D->' + c.kind
            need = max(0, (tn - tmin + 3) // 4)
            if c.kind in VAL and p.cuse & c.defs and 3 - st > need: need = 3 - st; why = 'mfma C WAR'
        elif p.kind == 'salu':
            if ('m0', 0) in p.defs and c.kind == 'dma': need = 1 - st; why = 'm0->dma'
        elif p.kind == 'vmem' and p.wide:
            if p.data & c.defs: need = 2 - st; why = 'widestore WAR'
        if need > best: best = need; bwhy = f"{why}: [{p.txt}] -> [{c.txt}]"
        st += p.states
        if p.kind == 'mfma': nm += 1
        elif nm == 0: after += p.states
        k -= 1
    return best, bwhy


def autonop(lines, report=None):
    out = []; objs = []
    for x in lines:
        c = I(x)
        n, why = need_states(objs, c)
        if n > 0:
            if report is not None: report.append((n, why))
            t = f"s_nop {n-1}"
            out.append(t); objs.append(I(t))
        out.append(x)
        if c.kind != 'meta': objs.append(c)
    return out


def check(lines, name=''):
    ins = [I(x) for x in lines]
    ins = [x for x in ins if x.kind != 'meta']
    probs = []
    for j, c in enumerate(ins):
        n, why = need_states(ins[max(0, j - 16):j], c)
        if n > 0: probs.append(f"{name} hazard short by {n}: {why}")
    vq = []; lq = []
    for c in ins:
        if c.kind == 'wait':
            m = re.search(r'vmcnt\((\d+)\)', c.txt)
            if m:
                k = int(m.group(1)); assert k <= 63
                while len(vq) > k: vq.pop(0)
            m = re.search(r'lgkmcnt\((\d+)\)', c.txt)
            if m:
                k = int(m.group(1)); assert k <= 15
                if k > 0 and any(x[1] for x in lq): probs.append(f"{name} counted lgkmcnt with smem outstanding: {c.txt}")
                while len(lq) > k: lq.pop(0)
            continue
        if c.kind in ('label', 'nop', 'barrier', 'branch'): continue
        touched = c.uses | c.defs
        for q, nmq in ((vq, 'vm'), (lq, 'lgkm')):
            for e in q:
                t = touched
                if (nmq == 'lgkm' and c.kind == 'lds') or (nmq == 'vm' and c.kind == 'vmem'): t = c.uses
                if e[0] & t: probs.append(f"{name} pending {nmq} reg touched: [{e[2]}] -> [{c.txt}]")
        if c.kind in ('vmem', 'dma'): vq.append((c.defs, False, c.txt))
        if c.kind == 'lds': lq.append((c.defs, False, c.txt))
        if c.kind == 'smem': lq.append((c.defs, True, c.txt))
    return probs


class Em:
    def __init__(self):
        self.L = []
        self.vm = []
        self.lg = []
        self.old = set()

    def __call__(self, txt, tag=None):
        for t in txt.split('\n'):
            t = t.strip()
            if not t: continue
            if '@@' in t:
                t, tag_ = t.split('@@'); t = t.strip(); tag_ = tag_.strip()
            else:
                tag_ = tag
            if t.startswith('WAITVM'):
                p = t.split()
                tags = p[1].split(',')
                n = self.vmwait(tags)
                t = f"s_waitcnt vmcnt({n})" + (" lgkmcnt(0)" if len(p) > 2 else "")
            elif t.startswith('WAITLG'):
                tags = t.split()[1].split(',')
                last = -1
                for i, x in enumerate(self.lg):
                    if x in tags: last = i
                for x in tags: assert x in self.lg or x in self.old, f"lds tag {x} never issued"
                t = f"s_waitcnt lgkmcnt({min(15, len(self.lg) - 1 - last)})"
            self.L.append(t)
            op = t.split()[0]
            if op.startswith('buffer_') or op.startswith('global_'):
                self.vm.append(tag_)
            if op.startswith('ds_'):
                self.lg.append(tag_)

    def vmwait(self, tags):
        last = -1
        for i, t in enumerate(self.vm):
            if t in tags: last = i
        for t in tags: assert t in self.vm or t in self.old, f"tag {t} never issued"
        return min(63, sum(1 for t in self.vm[last + 1:] if not (t or '').startswith('?')))

    def fork(self):
        o = Em(); o.vm = list(self.vm); o.lg = list(self.lg); o.old = set(self.old); return o

    def merge(self, other):
        for nm in ('vm', 'lg'):
            a, b = getattr(self, nm), getattr(other, nm)
            k = 0
            while k < min(len(a), len(b)) and a[len(a) - 1 - k] == b[len(b) - 1 - k]: k += 1
            suf = a[len(a) - k:] if k else []
            self.old |= set(a[:len(a) - k]) | set(b[:len(b) - k])
            setattr(self, nm, suf)

    def weave(self, mf, gaps):
        for i, m in enumerate(mf):
            self(m)
            for f in gaps.get(i, []): self(f)
        for k in gaps:
            assert 0 <= k < len(mf), f"gap {k} out of range {len(mf)}"
```

```python
import sys, struct, math
sys.path.insert(0, 'dev')
from asmlib import *

OPT = dict(ks=(0, 9), e30=32, y31=56, perE=3, perF=8, perG=6, sideA=2, msum=(1, 3), eB=36, lthr=2.0**60, fq='', fx='', fkv='', fwo='', ff='', rotq=0, roto=0, q0bar=20, npre=2, pollat=3, fo='sc1', warm=1, cw=1, tl={27:'w',28:'w',29:'w'})
for arg in sys.argv[2:]:
    k, val = arg.split('=')
    OPT[k] = eval(val)

def f2u(x): return struct.unpack('<I', struct.pack('<f', x))[0]
def fh(x): return f"0x{f2u(x):08x}"
MF = 'v_mfma_f32_16x16x32_bf16'
LOG2E = 1.4426950408889634
QSCALE = LOG2E / math.sqrt(128.0)
KNAME = 'recurrent_scan__mha_block_cached__moe_arch_mod__prompt_kernel'

WS_O = 0
WS_ST = 16 << 20
WS_KEY = WS_ST + 16384
WS_FLAG = WS_KEY + 2048
WS_FLAG2 = WS_FLAG + 1024
WS_EPOCH = WS_FLAG + 2048
WS_Y = WS_ST + 32768
WS_DBG = 32 << 20
WS_SIZE = 268435456
NFFN = 172
FAR = 0x40000000
SPIN = 20000

S0, S1, QF, NEGM, LACC, ONES, VA, KA, DKV, LV = 0, 64, 128, 192, 208, 216, 220, 228, 232, 236
WOV, OUTV, STV, TRB, KEYR, L16, DUM, TCH, Z0 = 240, 241, 242, 243, 244, 252, 253, 254, 255
AO, AK, AV = 0, 128, 192
XVO, WVO, XRA, CSA, CSW, CSACC, RAW, STT = 128, 136, 140, 144, 146, 148, 156, 168
STQ = 184
def CSV(db): return 192 + 4 * db if db < 6 else 176 + 4 * (db - 6)
SX, SWQ, SK, SV_, SWS = 4, 8, 12, 16, 20
SWO = 8
MK, MV = 24, 28
OFFK, OFFV, CNT, SH, SQB, XSO, WSO = 32, 33, 34, 35, 36, 37, 38
MX = 39
T0, T1 = 42, 43
PX, PK, PV_, PWQ, PWS = 44, 46, 48, 50, 52
SKEY, STS, SFS = 54, 55, 58
PWO, PWR, PG, PU, PD, POUT = 56, 60, 62, 64, 66, 68
TAG, EPO, SRB, SCB, MODE, SU = 70, 71, 72, 73, 74, 75
RA, RB, RC = 76, 80, 84
ROT = 59
FSO, FSUM, FM0, FD, FW, FDO = 80, 81, 82, 83, 39, 40
XBASE = [0, 32768, 131072]
def xslot(st): return {2: 0, 5: 0, 0: 1, 3: 1, 6: 1, 1: 2, 4: 2, 7: 2}[st]
def wslot(st): return 1 + st % 3
L_CS = 131072
L_FAIL = L_CS + 512
L_YW = L_CS + 576
L_F = L_CS + 2048
L_GS = L_F + 28672
L_KEY = L_CS + 528
L_DUM = L_GS + 512
assert L_DUM + 1024 <= 163840

NST = [0]
STREG = list(range(88, 100)) + [62, 63, 60, 61]
def stamp(e, real=False, grp=1):
    if not (OPT.get('stamp', 0) & grp): return
    i = NST[0]; NST[0] += 1
    real = real or OPT.get('rt')
    e(f"{'s_memrealtime' if real else 's_memtime'} s[100:101]\ns_waitcnt lgkmcnt(0)\ns_mov_b32 {s(STREG[i])}, s100")

def stamp_out(e):
    if not OPT.get('stamp'): return
    stamp(e, grp=255); stamp(e, True, grp=255)
    e("v_mov_b32 v1, 0")
    for i in range(NST[0]): e(f"v_writelane_b32 v1, {s(STREG[i])}, {i}")
    e("v_mbcnt_lo_u32_b32 v2, -1, 0\nv_lshlrev_b32 v2, 2, v2\ns_mov_b64 exec, 0xffff")
    e(f"s_lshl_b32 s100, s2, 2\ns_add_u32 s100, s100, s3\ns_lshl_b32 s100, s100, 6\ns_add_u32 s100, s100, {WS_DBG + (48 << 20)}")
    e(f"buffer_store_dword v1, v2, {s(SWS,4)}, s100 offen\ns_waitcnt vmcnt(0)")
    if OPT.get('dbg') is not None:
        e(f"v_mov_b32_dpp v3, v1 row_shr:1 row_mask:0xf bank_mask:0xf\ns_nop 1\nv_sub_u32 v3, v1, v3")
        e(f"s_lshl_b32 s100, s2, 2\ns_add_u32 s100, s100, s3\ns_cmp_eq_u32 s100, {OPT['dbg']}\ns_cselect_b32 s6, 64, 0\ns_load_dwordx2 s[4:5], s[0:1], 88\ns_mov_b32 s7, 0x20000\ns_waitcnt lgkmcnt(0)")
        e(f"v_sub_u32 v4, v1, {s(STREG[0])}\nv_cmp_eq_u32 vcc, {4*(NST[0]-1)}, v2\ns_nop 1\nv_cndmask_b32 v3, v3, v4, vcc")
        e(f"buffer_store_dword v3, v2, s[4:7], 0 offen\ns_waitcnt vmcnt(0)")

def srd(e, d, p, size, off=None):
    if off is None: e(f"s_mov_b32 {s(d)}, {s(p)}\ns_mov_b32 {s(d+1)}, {s(p+1)}")
    else: e(f"s_add_u32 {s(d)}, {s(p)}, {off}\ns_addc_u32 {s(d+1)}, {s(p+1)}, 0")
    if size is not None: e(f"s_mov_b32 {s(d+2)}, {size}")
    e(f"s_mov_b32 {s(d+3)}, 0x20000")

def allreduce(e, regs, tmps, op='v_add_f32', dpp=(8, 4, 2, 1)):
    for sh in dpp:
        for r in regs: e(f"{op}_dpp {v(r)}, {v(r)}, {v(r)} row_ror:{sh} row_mask:0xf bank_mask:0xf")
    for sw in ('v_permlane16_swap_b32', 'v_permlane32_swap_b32'):
        for r, t in zip(regs, tmps): e(f"v_mov_b32 {v(t)}, {v(r)}")
        for r, t in zip(regs, tmps): e(f"{sw} {v(t)}, {v(r)}")
        for r, t in zip(regs, tmps): e(f"{op} {v(r)}, {v(r)}, {v(t)}")

def unpack(e, dst, src):
    e(f"v_lshlrev_b32 {v(dst)}, 16, {v(src)}\nv_and_b32 {v(dst+1)}, 0xffff0000, {v(src)}")
def bfr1(e, r):
    e(f"v_cvt_pk_bf16_f32 {v(r)}, {v(r)}, {v(r)}\nv_lshlrev_b32 {v(r)}, 16, {v(r)}")
def bfr2(e, r0, r1):
    e(f"v_cvt_pk_bf16_f32 {v(r0)}, {v(r0)}, {v(r1)}\nv_and_b32 {v(r1)}, 0xffff0000, {v(r0)}\nv_lshlrev_b32 {v(r0)}, 16, {v(r0)}")
def bfrn(e, base, n):
    for j in range(0, n, 2): e(f"v_cvt_pk_bf16_f32 {v(base+j)}, {v(base+j)}, {v(base+j+1)}")
    for j in range(0, n, 2): e(f"v_and_b32 {v(base+j+1)}, 0xffff0000, {v(base+j)}\nv_lshlrev_b32 {v(base+j)}, 16, {v(base+j)}")
def silun(e, base, tmp, n):
    for j in range(n): e(f"v_mul_f32 {v(tmp+j)}, {fh(-LOG2E)}, {v(base+j)}")
    for j in range(n): e(f"v_exp_f32 {v(tmp+j)}, {v(tmp+j)}")
    for j in range(n): e(f"v_add_f32 {v(tmp+j)}, 1.0, {v(tmp+j)}")
    for j in range(n): e(f"v_rcp_f32 {v(tmp+j)}, {v(tmp+j)}")
    for j in range(n): e(f"v_mul_f32 {v(base+j)}, {v(base+j)}, {v(tmp+j)}")

class Rec(list):
    def __call__(self, txt):
        for t in txt.split('\n'):
            if t.strip(): self.append(t.strip())

SX_ = [STT + 8, STT + 16]; SW_ = STT + 24; SD_ = [STT + 32, STT + 36]
SM_ = [STT + 4, STT + 5]; SRS = [STT + 6, STT + 7]; SA_ = [STT + 40, STT + 41]; STM = [STT + 42, STT + 43]
def stats1(e):
    X, D, M, RS, A, TM = SX_, SD_, SM_, SRS, SA_, STM
    for j in range(4):
        for i in range(2): unpack(e, X[i] + 2 * j, RAW + 4 * i + j)
    for j in range(4):
        for i in range(2): e(f"v_add_f32 {v(D[i]+j)}, {v(X[i]+2*j)}, {v(X[i]+2*j+1)}")
    for i in range(2): e(f"v_add_f32 {v(D[i])}, {v(D[i])}, {v(D[i]+1)}\nv_add_f32 {v(D[i]+2)}, {v(D[i]+2)}, {v(D[i]+3)}")
    for i in range(2): e(f"v_add_f32 {v(A[i])}, {v(D[i])}, {v(D[i]+2)}")
    allreduce(e, A, TM)
    for i in range(2): e(f"v_mul_f32 {v(M[i])}, {fh(1/512)}, {v(A[i])}")
    for j in range(8):
        for i in range(2): e(f"v_sub_f32 {v(D[i] + (j & 1))}, {v(X[i]+j)}, {v(M[i])}")
        for i in range(2):
            d = v(D[i] + (j & 1))
            e(f"v_mul_f32 {v(A[i])}, {d}, {d}" if j == 0 else f"v_fmac_f32 {v(A[i])}, {d}, {d}")
    allreduce(e, A, TM)
    for i in range(2): e(f"v_mul_f32 {v(A[i])}, {fh(1/512)}, {v(A[i])}")
    for i in range(2): bfr2(e, A[i], M[i])
    for i in range(2): e(f"v_add_f32 {v(A[i])}, {fh(1e-5)}, {v(A[i])}")
    bfr2(e, A[0], A[1])
    for i in range(2): e(f"v_sqrt_f32 {v(A[i])}, {v(A[i])}")
    e(f"v_mov_b32 {v(STT+1)}, {s(TAG)}\nv_mov_b32 {v(STT+3)}, {s(TAG)}")
    bfr2(e, A[0], A[1])
    for i in range(2): e(f"v_lshrrev_b32 {v(TM[i])}, 16, {v(A[i])}")
    for i in range(2): e(f"v_or_b32 {v(STT+2*i)}, {v(TM[i])}, {v(M[i])}")
    for i in range(2): e(f"v_rcp_f32 {v(RS[i])}, {v(A[i])}")

def stats2(e, srow):
    X, W, M, RS, A, TM = SX_, SW_, SM_, SRS, SA_, STM
    for j in range(4): unpack(e, W + 2 * j, RAW + 8 + j)
    for j in range(8):
        for i in range(2): e(f"v_sub_f32 {v(X[i]+j)}, {v(X[i]+j)}, {v(M[i])}")
    for i in range(2): bfrn(e, X[i], 8)
    for j in range(8):
        for i in range(2): e(f"v_mul_f32 {v(X[i]+j)}, {v(X[i]+j)}, {v(RS[i])}")
    for i in range(2): bfrn(e, X[i], 8)
    for j in range(8):
        for i in range(2):
            e(f"v_mul_f32 {v(A[i])}, {v(X[i]+j)}, {v(W+j)}" if j == 0 else f"v_fmac_f32 {v(A[i])}, {v(X[i]+j)}, {v(W+j)}")
    allreduce(e, A, TM)
    bfr2(e, A[0], A[1])
    for i in range(2): e(f"v_ashrrev_i32 {v(TM[i])}, 31, {v(A[i])}")
    for i in range(2): e(f"v_or_b32 {v(TM[i])}, 0x80000000, {v(TM[i])}")
    for i in range(2): e(f"v_xor_b32 {v(A[i])}, {v(A[i])}, {v(TM[i])}")
    for i in range(2): e(f"v_and_b32 {v(A[i])}, 0xffff0000, {v(A[i])}")
    for i in range(2): e(f"v_mov_b32 {v(TM[i])}, {s(srow)}")
    for i in range(2): e(f"v_sub_u32 {v(TM[i])}, {2047 - i}, {v(TM[i])}")
    for i in range(2): e(f"v_or_b32 {v(A[i])}, {v(A[i])}, {v(TM[i])}")
    e(f"v_max_u32 {v(A[0])}, {v(A[0])}, {v(A[1])}")

def dma(voff, srd_, soff, ioff, tag, fl=''):
    return f"buffer_load_dwordx4 {v(voff)}, {s(srd_,4)}, {soff} offen offset:{ioff} {fl} lds @@{tag}"
def qbuf(st): return (0, 64, 96) if st & 1 else (128, 192, 224)

def q_issue(st):
    it = [('S', f"s_mov_b32 m0, {s(MV + wslot(st))}")]
    for i in range(4): it.append(('D', dma(WVO + i, SWQ, s(WSO), 1024 * i, f"q{st}", OPT['fq'])))
    it.append(('S', f"s_mov_b32 m0, {s(MX + xslot(st))}"))
    for i in range(4): it.append(('D', dma(XVO + i, SX, s(XSO), 1024 * i, f"q{st}", OPT['fx'])))
    it.append(('S', f"s_add_u32 m0, {s(MX + xslot(st))}, 4096"))
    for i in range(4, 8): it.append(('D', dma(XVO + i, SX, s(XSO), 1024 * (i & 3), f"q{st}", OPT['fx'])))
    if st < 7:
        it += [('S', f"s_add_u32 {s(XSO)}, {s(XSO)}, 128"), ('S', f"s_and_b32 {s(XSO)}, {s(XSO)}, 0x3ff"), ('S', f"s_lshl_b32 {s(WSO)}, {s(XSO)}, 12")]
    return it

def kv_issue(which, j, running=False):
    isk = which == 'K'; off = OFFK if isk else OFFV
    it = []
    if not running: it.append(('S', f"s_mov_b32 {s(off)}, {j*16384}"))
    it.append(('S', f"s_mov_b32 m0, {s((MK if isk else MV) + (j & 3))}"))
    for i in range(4):
        it.append(('D', dma(DKV + (0 if isk else 2) + (i >> 1), SK if isk else SV_, s(off), 1024 * i, f"{which}{j}", OPT['fkv'])))
    if running: it.append(('S', f"s_add_u32 {s(off)}, {s(off)}, 16384"))
    return it

WSLOT = ['K0', 'K1', 'V0', 'K2', 'V1', 'K3', 'V2', 'K0', 'K1', 'V0', 'K2', 'V3', 'V1', 'K3', 'V2']
for _n in range(15, 29): WSLOT.append(WSLOT[_n - 8])
WSLOT += ['X0', 'X1', WSLOT[21]]
WOV1 = 232
TRW = {'K': (TRB, 228), 'V': (229, 230), 'X': (231, 233)}
def wo_issue(n):
    w, k = WSLOT[n][0], int(WSLOT[n][1])
    it = [('S', f"s_add_u32 m0, {s(MK)}, {131072 + 16384*k}" if w == 'X' else f"s_mov_b32 m0, {s((MK if w == 'K' else MV) + k)}")]
    for i in range(4): it.append(('D', dma(WOV1 if i >> 1 else WOV, SWO, s(OFFV), 1024 * i, f"w{n}", OPT['fwo'])))
    it.append(('S', f"s_add_u32 {s(OFFV)}, {s(OFFV)}, 32768"))
    return it
WLOC = {0: v(128), 1: v(144), 2: v(160), 3: v(176), 20: v(192)}
for _k in range(4):
    WLOC[4 + _k] = a(AV + 16 * _k); WLOC[8 + _k] = a(AK + 16 * _k); WLOC[12 + _k] = a(16 * _k); WLOC[16 + _k] = a(64 + 16 * _k)
for _n, _m in zip(range(21, 32), range(4, 15)): WLOC[_n] = WLOC[_m]
def wreg(n, off, cnt):
    r = WLOC[n]; return (v if r[0] == 'v' else a)(int(r[1:]) + off, cnt)
def wo_reads(n):
    w, k = WSLOT[n][0], int(WSLOT[n][1])
    return [f"ds_read_b64_tr_b16 {wreg(n, 4*nb + 2*jh, 2)}, {v(TRW[w][nb >> 1])} offset:{16384*k + 512*jh + 8*(nb & 1)} @@r{n}" for nb in range(4) for jh in range(2)]
def cost(t):
    o = t.split()[0]
    return 8 if ('exp' in o or 'rcp' in o or o.startswith('buffer')) else 1 if (o.startswith('s_') or o.startswith('WAIT')) else 4
def sm_flat(sm, elimit):
    out = []
    while sm.e < elimit or sm.ready():
        if sm.e < elimit: out.append(sm.popE())
        k = 0
        while sm.v < len(sm.V) and (sm.V[sm.v][0] < sm.e - 1 or (sm.e >= elimit and sm.V[sm.v][0] < sm.e)) and k < 3: out.append(sm.popV()); k += 1
    return out
def level(n, Y, X, yend):
    cy = sum(map(cost, Y)); cx = sum(map(cost, X)); Y = list(Y); X = list(X)
    g = {}; dy = 0; dt = 0
    for p in range(n):
        l = []
        while Y and dy + cost(Y[0]) / 2 <= cy * (p + 1) / yend: t = Y.pop(0); l.append(t); dy += cost(t); dt += cost(t)
        lx = []
        while X and (dt + cost(X[0]) / 2 <= (cx + cy) * (p + 1) / n or p == n - 1): t = X.pop(0); lx.append(t); dt += cost(t)
        g[p] = lx + l
    assert not Y and not X
    return g
def riffle(A, B):
    nd = sum(1 for t in A if t.startswith('buffer')); out = []; B = list(B); nb = len(B); k = 0
    for t in A:
        out.append(t)
        if t.startswith('buffer'):
            k += 1
            while B and (nb - len(B)) < nb * k / nd: out.append(B.pop(0))
    return out + B

def q_reads(st):
    W, X, C = qbuf(st)
    L = []
    xo = XBASE[xslot(st)]; xr = XRA
    if xo >= 65536: xo -= 131072; xr += 2
    wo = wslot(st) * 16384
    for ks in range(2):
        for d2 in range(2):
            for jh in range(2):
                L.append(f"ds_read_b64_tr_b16 {a(C + 8*ks + 4*d2 + 2*jh, 2)}, {v(CSA + d2)} offset:{wo + ks*8192 + jh*1024}")
    for qb in range(4):
        for ks in range(2):
            L.append(f"ds_read_b128 {a(X + 16*ks + 4*qb, 4)}, {v(xr + ks)} offset:{xo + qb*2048}")
    for db in range(8):
        for ks in range(2):
            for jh in range(2):
                L.append(f"ds_read_b64_tr_b16 {a(W + 32*ks + 4*db + 2*jh, 2)}, {v(VA + db)} offset:{wo + ks*8192 + jh*1024}")
    return L

def qacc(db, qb): return 4 * (8 * qb + db)
def q_mfmas(st):
    W, X, C = qbuf(st)
    M = []
    for d2 in range(2):
        for ks in range(2):
            c = '0' if (st == 0 and ks == 0) else v(CSACC + 4 * d2, 4)
            M.append(f"{MF} {v(CSACC + 4*d2, 4)}, {a(C + 8*ks + 4*d2, 4)}, {v(ONES, 4)}, {c}")
    for db in range(8):
        for qb in range(4):
            for ks in range(2):
                d = v(qacc(db, qb), 4)
                c = '0' if (st == 0 and ks == 0) else d
                M.append(f"{MF} {d}, {a(W + 32*ks + 4*db, 4)}, {a(X + 16*ks + 4*qb, 4)}, {c}")
    return M

def pack_gaps(n, dq, lq, vq=None, start=0, lend=None, fixed=None):
    gaps = dict(fixed or {})
    dq = list(dq); lq = list(lq); vq = vq if vq is not None else []
    lend = n if lend is None else lend
    turn = 0
    for p in range(start, n):
        if p in gaps: continue
        lurg = lq and (lend - p) * 2 <= len(lq) + 1
        if dq and dq[0][0] == 'S' and not (lurg and len(lq) > 1 and False):
            if lq: g = [lq.pop(0), dq.pop(0)[1]]
            else:
                g = [dq.pop(0)[1]]
                if dq and dq[0][0] == 'S': g.append(dq.pop(0)[1])
                elif vq:
                    g.append(vq.pop(0))
                    if vq: g.append(vq.pop(0))
            gaps[p] = g; continue
        order = [(turn + k) % 3 for k in range(3)]
        if lurg: order = [1, 0, 2]
        for o in order:
            if o == 0 and dq:
                gaps[p] = [dq.pop(0)[1]]; break
            if o == 1 and lq:
                gaps[p] = [lq.pop(0)] + ([lq.pop(0)] if lq else []); break
            if o == 2 and vq:
                gaps[p] = [vq.pop(0)] + ([vq.pop(0)] if vq else []); break
        else: continue
        turn = (o + 1) % 3
    assert not dq and not lq, (len(dq), len(lq))
    return gaps

def sgrp(buf, qb, ks): return buf + (2 * qb + ks) * 8
def k_reads(j, dst=AK):
    return [f"ds_read_b128 {a(dst + 16*(2*ks+jh) + 4*ksd, 4)}, {v(KA + ksd)} offset:{(j & 3)*16384 + ks*8192 + jh*1024}"
            for ks in range(2) for jh in range(2) for ksd in range(4)]
def v_reads(j, dst=AV):
    return [f"ds_read_b64_tr_b16 {a(dst + 32*ks + 4*db + 2*jh, 2)}, {v(VA + db)} offset:{(j & 3)*16384 + ks*8192 + jh*1024}"
            for db in range(8) for ks in range(2) for jh in range(2)]
def qk_chain(buf, qb, kb, src=AK, c0=None):
    d = v(sgrp(buf, qb, kb >> 1) + 4 * (kb & 1), 4)
    M = []
    for ksd in range(4):
        c = (c0 if c0 is not None else v(NEGM + 4 * qb, 4)) if ksd == 0 else d
        M.append(f"{MF} {d}, {a(src + 16*kb + 4*ksd, 4)}, {v(QF + 16*qb + 4*ksd, 4)}, {c}")
    return M
def qk_mfmas(j, src=AK):
    buf = S1 if j & 1 else S0
    return [m for qb in range(4) for kb in range(4) for m in qk_chain(buf, qb, kb, src)]
def lacc(qb): return LACC + 4 * OPT['msum'].index(qb)
def pv_mfmas(j, first=False, src=AV, ksmajor=()):
    buf = S1 if j & 1 else S0
    M = []; st = {}
    for qb in range(4):
        order = [(db, ks) for ks in range(2) for db in range(8)] if qb in ksmajor else [(db, ks) for db in range(8) for ks in range(2)]
        for db, ks in order:
            d = a(AO + 4 * (8 * qb + db), 4)
            c = '0' if (first and ks == 0) else d
            st.setdefault((qb, ks), len(M))
            M.append(f"{MF} {d}, {a(src + 32*ks + 4*db, 4)}, {v(sgrp(buf, qb, ks), 4)}, {c}")
        if qb in OPT['msum']:
            d = v(lacc(qb), 4)
            for ks in range(2):
                c = '0' if (first and ks == 0) else d
                M.append(f"{MF} {d}, {v(ONES, 4)}, {v(sgrp(buf, qb, ks), 4)}, {c}")
    return M, st

class SM:
    def __init__(self, j):
        buf = S1 if j & 1 else S0
        E = []; V = []
        for qb in range(4):
            for ks in range(2):
                b = sgrp(buf, qb, ks); e0 = len(E)
                for i in range(8): E.append(f"v_exp_f32 {v(b+i)}, {v(b+i)}")
                for p in range(4):
                    if qb not in OPT['msum']:
                        for i in (2 * p, 2 * p + 1):
                            V.append((e0 + i, f"v_add_f32 {v(LV+qb)}, {v(LV+qb)}, {v(b+i)}"))
                    V.append((e0 + 2 * p + 1, f"v_cvt_pk_bf16_f32 {v(b+p)}, {v(b+2*p)}, {v(b+2*p+1)}"))
        self.E, self.V, self.e, self.v = E, V, 0, 0
    def ready(self):
        n = 0
        while self.v + n < len(self.V) and self.V[self.v + n][0] < self.e: n += 1
        return n
    def popE(self): self.e += 1; return self.E[self.e - 1]
    def popV(self): self.v += 1; return self.V[self.v - 1][1]
    def remE(self): return len(self.E) - self.e
    def remV(self): return len(self.V) - self.v

def fill(n, sm, L, lfirst, llast, dpos=None, scal=None, futureL=0, elimit=None, eearly=None, finish=False):
    gaps = {}
    L = list(L); nL = len(L); dpos = dict(dpos or {}); scal = dict(scal or {})
    elimit = len(sm.E) if elimit is None else elimit
    for p in range(n):
        g = []
        done = nL - len(L)
        lav = bool(L) and p >= lfirst + (llast - lfirst) * done / max(1, nL - 1) - 1e-9
        urgent = bool(L) and ((llast - p + 1) * 2 <= len(L) + 1 or p >= llast)
        vr = sm.ready()
        eok = sm.e < elimit and (eearly is None or p >= eearly(sm.e))
        if p in dpos:
            assert p not in scal
            g = [dpos.pop(p)]
        elif p in scal:
            g = [scal.pop(p)]
            if eok: g.append(sm.popE())
            else:
                for _ in range(min(2, vr)): g.append(sm.popV())
        elif lav and vr >= 1: g = [L.pop(0), sm.popV()]
        elif urgent or (lav and not eok):
            g = [L.pop(0)]
            if L: g.append(L.pop(0))
        elif vr >= 2 and (sm.remV() - len(L) - futureL >= 2 or not eok): g = [sm.popV(), sm.popV()]
        elif eok: g = [sm.popE()]
        elif vr >= 1 and finish: g = [sm.popV()]
        if g: gaps[p] = g
    assert not L and not dpos and not scal, (len(L), dpos, scal)
    return gaps

def spread(items, first, last):
    nD = sum(1 for k, _ in items if k == 'D')
    dpos = {}; scal = {}
    step = (last - first) / max(1, nD - 1) if nD > 1 else 0
    k = 0; p = -1; pend = []
    for kind, t in items:
        if kind == 'S': pend.append(t); continue
        want = max(int(round(first + k * step)), p + 1 + len(pend))
        q = want - len(pend)
        for x in pend: scal[q] = x; q += 1
        pend = []
        dpos[want] = t; p = want; k += 1
    for x in pend: p += 1; scal[p] = x
    return dpos, scal

NB = 64 + 2 * len(OPT['msum'])

def show(tag, g, n):
    def ch(x):
        o = x.split()[0]
        return 'E' if 'exp' in o else 'L' if o.startswith('ds_') else 'D' if o.startswith('buffer') else 's' if o.startswith('s_') or o == 'WAITVM' else 'v'
    if OPT.get('show'): print(tag, ' '.join(''.join(ch(x) for x in g.get(i, [])) or '-' for i in range(n)), file=sys.stderr)

def phaseA(e, j, sm, last_wait, ffn=None, tail=None):
    M = qk_mfmas(j + 1)
    g = fill(64, sm, v_reads(j), 0, 54, finish=True)
    assert sm.remE() == 0 and sm.remV() == 0, (sm.remE(), sm.remV())
    if ffn is not None:
        assert 61 not in g and 62 not in g
        g[60] = [f"s_cmp_eq_u32 {s(FW)}, {ffn}"] + g[60]
        g[61] = [f"s_cselect_b32 {s(T0)}, {s(FSO)}, {FAR}", f"s_cselect_b32 m0, {s(FM0)}, {L_DUM}"]
        g[62] = [dma(TCH, RA, s(T0), 0, 'fw', OPT['ff'])]
    if tail:
        assert 61 not in g and 62 not in g
        g[61], g[62] = tail
    g[63] = g.get(63, []) + [last_wait, "s_barrier"]
    show(f'A{j}', g, 64)
    e.weave(M, g)

def phaseB(e, j, items, L=None, target=None, extra=None, endbar=False):
    M, st = pv_mfmas(j, j == 0)
    sm = SM(j + 1)
    dpos, scal = spread(items, 4, NB - 8)
    fut = 32
    if L is None: L = k_reads(j + 2)
    else: fut = 0
    scal[NB - 1] = "s_waitcnt lgkmcnt(0)"
    g = fill(NB, sm, L, 3, NB - 12, dpos, scal, futureL=fut, elimit=OPT['eB'])
    if endbar: g[NB - 1].insert(1, "s_barrier")
    if target is not None:
        while sm.e < target[0]: g[NB - 1].append(sm.popE())
        while sm.v < target[1]: g[NB - 1].append(sm.popV())
    for p, xs in (extra or {}).items(): g[p] = g.get(p, []) + xs
    show(f'B{j}', g, NB)
    e.weave(M, g)
    return sm

def spin_check(e, name, reload_, ncmp, cond_sgpr=None):
    def test(x):
        for k, r in enumerate(ncmp):
            x(f"v_cmp_ne_u32 {'vcc' if k == 0 else s(T0,2)}, {s(TAG)}, {v(r)}")
            if k: x(f"s_or_b64 vcc, vcc, {s(T0,2)}")
        if cond_sgpr is not None: x(f"s_and_b64 vcc, vcc, {s(cond_sgpr,2)}")
    test(e)
    e(f"s_cbranch_vccnz {name}_slow\n{name}_ok:")
    o = Rec()
    o(f"{name}_slow:\ns_mov_b32 {s(CNT)}, {SPIN}\n{name}_spin:\ns_sleep 2")
    for t in reload_: o(t.split('@@')[0])
    o("s_waitcnt vmcnt(0)")
    test(o)
    o(f"s_cbranch_vccz {name}_ok\ns_sub_u32 {s(CNT)}, {s(CNT)}, 1\ns_cmp_lg_u32 {s(CNT)}, 0\ns_cbranch_scc1 {name}_spin\ns_branch {name}_ok")
    OOL.extend(o)
OOL = []
ALT = []

def kernel():
    e = Em()
    e("s_cmp_ge_u32 s2, 256\ns_cbranch_scc1 L_end")
    e(f"s_load_dwordx4 s[44:47], s[0:1], 0\ns_load_dwordx4 s[48:51], s[0:1], 16\ns_load_dwordx2 s[52:53], s[0:1], 96")
    e(f"s_load_dwordx4 s[60:63], s[0:1], 48\ns_load_dwordx2 s[56:57], s[0:1], 32\ns_load_dwordx4 s[64:67], s[0:1], 64\ns_load_dwordx2 s[68:69], s[0:1], 80")
    stamp(e, True, grp=255); stamp(e, grp=255)
    e(f"v_lshrrev_b32 v2, 6, v0\ns_mov_b32 {s(MODE)}, 0\nv_readfirstlane_b32 s3, v2")
    e(f"s_and_b32 {s(T0)}, s2, 7\ns_lshl_b32 {s(SH)}, {s(T0)}, 2\ns_lshr_b32 {s(T1)}, s2, 3\ns_and_b32 {s(T1)}, {s(T1)}, 3\ns_add_u32 {s(SH)}, {s(SH)}, {s(T1)}\ns_lshr_b32 {s(SQB)}, s2, 5")
    e("s_branch L_start")
    e("L_restart:")
    e("v_mbcnt_lo_u32_b32 v0, -1, 0\nv_mbcnt_hi_u32_b32 v0, -1, v0\nv_mov_b32 v2, s3")
    e("L_start:")
    e("v_and_b32 v1, 63, v0\nv_and_b32 v3, 15, v0\nv_bfe_u32 v4, v0, 4, 2")
    e("v_lshlrev_b32 v5, 1, v4\nv_xor_b32 v5, v5, v3\nv_lshlrev_b32 v5, 4, v5")
    e("v_lshlrev_b32 v6, 4, v2\nv_add_u32 v6, v6, v4")
    e(f"v_lshlrev_b32 v7, 13, v6\nv_add_u32 {v(WVO)}, v7, v5")
    e(f"v_add_u32 {v(WVO+1)}, {4*8192-1024}, {v(WVO)}")
    e(f"v_xor_b32 v8, 128, {v(WVO)}\nv_add_u32 {v(WVO+2)}, {8*8192-2048}, v8\nv_add_u32 {v(WVO+3)}, {12*8192-3072}, v8")
    if OPT['rotq']: e(f"s_and_b32 {s(T0)}, {s(SH)}, 3\ns_lshl_b32 {s(T0)}, {s(T0)}, 1\ns_add_u32 {s(T0)}, {s(T0)}, {s(SQB)}\ns_and_b32 {s(T0)}, {s(T0)}, 7\ns_lshl_b32 {s(XSO)}, {s(T0)}, 7\ns_lshl_b32 {s(WSO)}, {s(T0)}, 19")
    else: e(f"s_mov_b32 {s(XSO)}, 0\ns_mov_b32 {s(WSO)}, 0")
    e(f"s_lshl_b32 {s(T0)}, s3, 12\ns_lshl_b32 {s(T1)}, s3, 13")
    for i in range(4): e(f"s_add_u32 {s(MV+i)}, {s(T0)}, {65536+i*16384}")
    for i in range(3): e(f"s_add_u32 {s(MX+i)}, {s(T1)}, {XBASE[i]}")
    e("v_lshrrev_b32 v8, 3, v1\nv_lshlrev_b32 v9, 6, v2\nv_add_u32 v8, v8, v9\nv_lshlrev_b32 v8, 10, v8")
    e("v_and_b32 v9, 7, v1\nv_xor_b32 v9, v9, v4\nv_lshlrev_b32 v9, 4, v9\nv_add_u32 v8, v8, v9\nv_xor_b32 v9, 64, v8")
    for i in range(8): e(f"v_add_u32 {v(XVO+i)}, {8192*i - 1024*(i&3)}, {v(9 if i & 1 else 8)}")
    e(f"s_lshl_b32 {s(T0)}, {s(SH)}, 8\ns_sub_u32 {s(SWQ+2)}, {512*8192}, {s(T0)}\ns_lshl_b32 {s(T1)}, {s(SQB)}, 18\ns_waitcnt lgkmcnt(0)")
    srd(e, SWQ, PWQ, None, s(T0)); srd(e, SX, PX, 262144, s(T1))
    stamp(e, grp=2)
    for k, t in q_issue(0): e(t)
    stamp(e, grp=2)
    e(f"s_cmp_lg_u32 {s(MODE)}, 0\ns_cbranch_scc1 L_noepo\ns_mov_b32 {s(T0)}, {WS_EPOCH}\ns_load_dword {s(EPO)}, s[52:53], {s(T0)}\nL_noepo:")
    e(f"v_lshlrev_b32 {v(L16)}, 4, v1")
    e(f"s_and_b32 {s(T0)}, s2, 7\ns_lshr_b32 {s(T1)}, s2, 3\ns_and_b32 {s(SCB)}, {s(T1)}, 7\ns_mul_i32 {s(SU)}, {s(T0)}, 22\ns_add_u32 {s(SU)}, {s(SU)}, {s(T1)}")
    e(f"s_cmp_lt_u32 {s(T1)}, 22\ns_cselect_b32 {s(SU)}, {s(SU)}, 255")
    e(f"s_lshl_b32 {s(T0)}, {s(T0)}, 2\ns_lshr_b32 {s(SRB)}, s2, 6\ns_add_u32 {s(SRB)}, {s(SRB)}, {s(T0)}")
    e(f"s_lshl_b32 {s(T0)}, s3, 12")
    for i in range(4): e(f"s_add_u32 {s(MK+i)}, {s(T0)}, {i*16384}")
    srd(e, RA, PWR, 1024)
    e(f"s_lshl_b32 {s(T0)}, {s(SH)}, 19"); srd(e, SK, PK, 524288, s(T0)); srd(e, SV_, PV_, 524288, s(T0)); srd(e, SWS, PWS, WS_SIZE)
    e(f"v_lshlrev_b32 v7, 8, v6\nv_add_u32 {v(DKV+2)}, v7, v5\nv_xor_b32 {v(DKV+3)}, 128, {v(DKV+2)}")
    e("v_and_b32 v8, 1, v2\nv_lshlrev_b32 v8, 3, v8\nv_or_b32 v8, v8, v4\nv_xor_b32 v8, v8, v3\nv_lshlrev_b32 v8, 4, v8")
    e(f"v_add_u32 {v(DKV)}, v7, v8\nv_xor_b32 {v(DKV+1)}, 64, {v(DKV)}")
    e("v_lshrrev_b32 v8, 2, v3\nv_lshlrev_b32 v8, 3, v8\nv_and_b32 v9, 3, v3\nv_add_u32 v8, v8, v9\nv_lshlrev_b32 v8, 8, v8")
    e(f"v_xor_b32 v9, v4, v3\nv_lshlrev_b32 v9, 4, v9\nv_add_u32 {v(KA)}, v8, v9")
    for k in range(1, 4): e(f"v_xor_b32 {v(KA+k)}, {k << 6}, {v(KA)}")
    e("v_lshrrev_b32 v8, 2, v3\nv_lshlrev_b32 v9, 3, v4\nv_add_u32 v9, v9, v8\nv_lshlrev_b32 v9, 8, v9")
    e("v_lshlrev_b32 v8, 1, v8\nv_and_b32 v10, 1, v4\nv_lshlrev_b32 v10, 3, v10\nv_or_b32 v8, v8, v10")
    e("v_bfe_u32 v10, v1, 1, 1\nv_or_b32 v8, v8, v10\nv_lshlrev_b32 v8, 4, v8\nv_add_u32 v9, v9, v8")
    e(f"v_and_b32 v10, 1, v1\nv_lshlrev_b32 v10, 3, v10\nv_add_u32 v9, v9, v10\nv_add_u32 {v(VA)}, 65536, v9")
    for k in range(1, 8): e(f"v_xor_b32 {v(VA+k)}, {k << 5}, {v(VA)}")
    e(f"v_lshlrev_b32 v8, 6, v2\nv_xor_b32 {v(CSA)}, v8, {v(VA)}\nv_xor_b32 {v(CSA+1)}, 32, {v(CSA)}")
    e("v_lshlrev_b32 v8, 13, v2\nv_lshlrev_b32 v9, 7, v3\nv_add_u32 v8, v8, v9\nv_lshrrev_b32 v9, 1, v3\nv_xor_b32 v9, v9, v4\nv_lshlrev_b32 v9, 4, v9")
    e(f"v_add_u32 {v(XRA)}, v8, v9\nv_xor_b32 {v(XRA+1)}, 64, {v(XRA)}\nv_add_u32 {v(XRA+2)}, 131072, {v(XRA)}\nv_add_u32 {v(XRA+3)}, 131072, {v(XRA+1)}")
    e(f"v_lshlrev_b32 v8, 4, v4\nv_add_u32 {v(CSW+1)}, {L_CS}, v8\nv_lshlrev_b32 v9, 7, v2\nv_add_u32 {v(CSW)}, {v(CSW+1)}, v9")
    for i in range(4): e(f"v_mov_b32 {v(ONES+i)}, 0x3f803f80\nv_mov_b32 {v(LV+i)}, 0")
    e(f"v_lshrrev_b32 v8, 3, v1\nv_lshlrev_b32 v8, 12, v8\nv_and_b32 v10, 7, v1\nv_lshlrev_b32 v10, 4, v10\nv_add_u32 {v(WOV)}, v8, v10")
    e("v_lshrrev_b32 v8, 2, v3\nv_lshlrev_b32 v9, 10, v8\nv_lshrrev_b32 v8, 1, v8\nv_and_b32 v10, 3, v1\nv_lshlrev_b32 v10, 1, v10\nv_xor_b32 v10, v10, v8\nv_lshlrev_b32 v10, 4, v10")
    e(f"v_add_u32 v9, v9, v10\nv_lshlrev_b32 v10, 7, v4\nv_lshlrev_b32 v11, 12, v2\nv_add3_u32 {v(TRB)}, v9, v10, v11")
    e(f"v_lshlrev_b32 v9, 10, v3\nv_lshlrev_b32 v10, 5, v4\nv_add_u32 {v(OUTV)}, v9, v10\nv_lshlrev_b32 {v(STV)}, 3, v3")
    e(f"v_mul_u32_u24 {v(TCH)}, 2752, v1")
    e(f"v_cmp_eq_u32 vcc, 0, v1\nv_mov_b32 v8, {FAR}\nv_mov_b32 v9, 0\nv_cndmask_b32 {v(Z0)}, v8, v9, vcc")
    stamp(e, grp=2)
    for k, t in q_issue(1): e(t)
    e(f"s_lshl_b32 {s(T0)}, {s(SH)}, 3\ns_lshl_b32 {s(T1)}, s3, 1\ns_add_u32 {s(STS)}, {s(T0)}, {s(T1)}\ns_lshl_b32 {s(T0)}, {s(STS)}, 10")
    e(f"buffer_load_dwordx4 {v(RAW,4)}, {v(L16)}, {s(SX,4)}, {s(T0)} offen @@rows\nbuffer_load_dwordx4 {v(RAW+4,4)}, {v(L16)}, {s(SX,4)}, {s(T0)} offen offset:1024 @@rows")
    e(f"buffer_load_dwordx4 {v(RAW+8,4)}, {v(L16)}, {s(RA,4)}, 0 offen @@rows")
    if OPT['cw']:
        e(f"s_getpc_b64 {s(RC,2)}\nL_pc0:\ns_mov_b32 {s(RC+2)}, L_codeend-L_pc0\ns_mov_b32 {s(RC+3)}, 0x20000\ns_lshr_b32 {s(T0)}, s2, 3\ns_lshl_b32 {s(T0)}, {s(T0)}, 7\ns_cmp_eq_u32 s3, 0\ns_cselect_b32 {s(T0)}, {s(T0)}, {FAR}")
        e(f"buffer_load_dword {v(KEYR)}, {v(TCH)}, {s(RC,4)}, {s(T0)} offen @@cw")
    e(f"s_waitcnt lgkmcnt(0)\ns_mul_i32 {s(TAG)}, {s(EPO)}, 0x9e3779b1\ns_add_u32 {s(TAG)}, {s(TAG)}, 0x85ebca6b")
    e(f"s_lshl_b32 {s(T0)}, {s(SQB)}, 8\ns_add_u32 {s(STS)}, {s(STS)}, {s(T0)}")
    e(f"s_lshl_b32 {s(SFS)}, {s(STS)}, 3\ns_add_u32 {s(SFS)}, {s(SFS)}, {WS_ST}")
    e(f"s_lshl_b32 {s(SKEY)}, {s(SQB)}, 11\ns_lshl_b32 {s(T1)}, s3, 9\ns_add_u32 {s(SKEY)}, {s(SKEY)}, {s(T1)}\ns_add_u32 {s(SKEY)}, {s(SKEY)}, {WS_ST}")
    stamp(e, grp=2)
    e("WAITVM q0\ns_barrier")
    stamp(e, grp=7)
    for t in q_reads(0): e(t)
    vq = Rec(); stats1(vq)
    vq(f"buffer_store_dwordx4 {v(STT,4)}, {v(Z0)}, {s(SWS,4)}, {s(SFS)} offen sc1")
    vq(f"v_and_b32 {v(RAW)}, 0xf0, {v(L16)}\nv_lshrrev_b32 {v(RAW)}, 1, {v(RAW)}")
    stats2(vq, STS)
    vq(f"v_mov_b32 {v(STM[0])}, s3\nv_lshlrev_b32 {v(STM[0])}, 2, {v(STM[0])}\nv_add_u32 {v(STM[0])}, {L_KEY}, {v(STM[0])}")
    stq_loads = [f"buffer_load_dwordx2 {v(STQ+2*i,2)}, {v(RAW)}, {s(SWS,4)}, {s(SKEY)} offen offset:{128*i} sc1 @@st" for i in range(4)]
    KX = RAW + 4
    for st in range(8):
        if st == 0: e("s_waitcnt lgkmcnt(0)")
        elif st < 7: e(f"WAITVM q{st+1} lgkm\ns_barrier")
        else: e("s_waitcnt lgkmcnt(0)\ns_barrier")
        stamp(e, grp=(6 if st < 4 else 4))
        M = q_mfmas(st)
        if st + 3 < 8: dq = q_issue(st + 3)
        elif st == 5: dq = kv_issue('K', 0) + kv_issue('K', 1)
        elif st == 6:
            assert not vq, len(vq)
            dq = [('D', t) for t in stq_loads] + kv_issue('V', 0) + kv_issue('K', 2)
            vq(f"s_cmp_lt_u32 {s(SU)}, {NFFN}\ns_cselect_b32 {s(RA+2)}, {512*2752}, 0\ns_cselect_b32 {s(RC+2)}, {1376*1024}, 0")
            srd(vq, RA, PG, None); srd(vq, RC, PD, None)
            vq(f"s_mul_i32 {s(T0)}, s3, {128*2752}\ns_lshl_b32 {s(T1)}, {s(SU)}, 4\ns_add_u32 {s(FSO)}, {s(T0)}, {s(T1)}\ns_lshl_b32 {s(FSUM)}, {s(FSO)}, 1\ns_add_u32 {s(FSUM)}, {s(FSUM)}, {64*2752}")
            vq(f"s_lshl_b32 {s(FDO)}, {s(SU)}, 13\ns_lshl_b32 {s(T1)}, s3, 11\ns_add_u32 {s(FDO)}, {s(FDO)}, {s(T1)}\ns_add_u32 {s(FM0)}, {s(T1)}, {L_F}")
            vq(f"s_mov_b32 {s(FD)}, 1024\ns_mov_b32 {s(FW)}, s3")
            vq(f"v_mov_b32 {v(KX+4)}, {L_KEY}\nv_mov_b32 {v(KX+5)}, {s(TAG)}")
            srd(vq, SX, PWO, 4096 * 1024)
            vq(f"s_lshl_b32 {s(XSO)}, s2, 2\ns_add_u32 {s(XSO)}, {s(XSO)}, s3\ns_lshl_b32 {s(XSO)}, {s(XSO)}, 12\nv_lshlrev_b32 {v(DUM)}, 2, {v(L16)}")
            vq(f"s_lshr_b32 {s(SFS)}, s2, 3\ns_lshl_b32 {s(WSO)}, {s(SFS)}, 13\ns_lshl_b32 {s(SFS)}, {s(SFS)}, 7\ns_lshl_b32 {s(T1)}, s3, 20\ns_add_u32 {s(WSO)}, {s(WSO)}, {s(T1)}")
        if st == 0:
            g = pack_gaps(OPT['q0bar'], q_issue(2), [])
            g[OPT['q0bar']] = ["WAITVM q1", "s_barrier"]
            g = pack_gaps(len(M), dq, q_reads(1), start=OPT['q0bar'] + 1, lend=len(M) - 6, fixed=g)
        elif st < 7:
            g = pack_gaps(len(M), dq, q_reads(st + 1), vq, lend=len(M) - 8)
        else:
            assert not vq
            dq = kv_issue('V', 1)
            fixed = {8: [f"ds_write_b128 {v(CSW)}, {v(CSACC,4)}", f"ds_write_b128 {v(CSW)}, {v(CSACC+4,4)} offset:64"], 0: [f"ds_write_b32 {v(STM[0])}, {v(SA_[0])}"]}
            g = pack_gaps(22, dq, [], fixed=fixed)
            g[22] = ["WAITVM K0,K1 lgkm", "s_barrier"]
            lq = [f"ds_read_b128 {v(KX,4)}, {v(KX+4)}"] + [f"ds_read_b128 {v(CSV(db),4)}, {v(CSW+1)} offset:{64*db}" for db in range(8)] + k_reads(0, AV) + k_reads(1, AK)
            g = pack_gaps(len(M), [], lq, start=23, fixed=g)
            p = max(g) + 1
            g[p] = [f"s_lshl_b32 {s(T0)}, s2, 3", f"s_add_u32 {s(T0)}, {s(T0)}, {WS_KEY}"]
            g[p + 1] = ["s_waitcnt lgkmcnt(15)", f"v_max3_u32 {v(KX)}, {v(KX)}, {v(KX+1)}, {v(KX+2)}", f"v_max_u32 {v(KX+4)}, {v(KX)}, {v(KX+3)}"]
            g[p + 2] = [f"buffer_store_dwordx2 {v(KX+4,2)}, {v(Z0)}, {s(SWS,4)}, {s(T0)} offen sc1"]
            g = pack_gaps(len(M), kv_issue('K', 3) + kv_issue('V', 2), [], start=p + 3, fixed=g)
        show(f'Q{st}', g, len(M))
        e.weave(M, g)
    stamp(e, grp=5)
    e(f"s_mov_b32 {s(OFFK)}, {4*16384}\ns_mov_b32 {s(OFFV)}, {3*16384}")
    e(f"s_lshl_b32 {s(T0)}, {s(SCB)}, 7\ns_lshl_b32 {s(T1)}, s3, 20\ns_add_u32 {s(T0)}, {s(T0)}, {s(T1)}\ns_sub_u32 {s(SWO+2)}, {4096*1024}, {s(T0)}"); srd(e, SWO, PWO, None, s(T0))
    e("WAITVM st lgkm")
    spin_check(e, 'L_st', stq_loads, [STQ + 1, STQ + 3, STQ + 5, STQ + 7])
    for qb in range(4): e(f"v_lshlrev_b32 {v(STQ+2*qb+1)}, 16, {v(STQ+2*qb)}")
    for qb in range(4): e(f"v_rcp_f32 {v(STQ+2*qb+1)}, {v(STQ+2*qb+1)}\nv_and_b32 {v(STQ+2*qb)}, 0xffff0000, {v(STQ+2*qb)}")
    for qb in range(4): e(f"v_mul_f32 {v(STQ+2*qb+1)}, {fh(QSCALE)}, {v(STQ+2*qb+1)}")
    for qb in range(4):
        for db in range(8):
            b = qacc(db, qb)
            for r in range(4): e(f"v_fma_f32 {v(b+r)}, -{v(STQ+2*qb)}, {v(CSV(db)+r)}, {v(b+r)}")
        for db in range(8):
            b = qacc(db, qb)
            for r in range(4): e(f"v_mul_f32 {v(b+r)}, {v(b+r)}, {v(STQ+2*qb+1)}")
        for db in range(8):
            b = qacc(db, qb); f = QF + 16 * qb + 4 * (db >> 1) + 2 * (db & 1)
            e(f"v_cvt_pk_bf16_f32 {v(f)}, {v(b)}, {v(b+1)}\nv_cvt_pk_bf16_f32 {v(f+1)}, {v(b+2)}, {v(b+3)}")
        for sw in ('v_permlane32_swap_b32', 'v_permlane16_swap_b32'):
            for ksd in range(4):
                f = QF + 16 * qb + 4 * ksd
                e(f"{sw} {v(f)}, {v(f+2)}\n{sw} {v(f+1)}, {v(f+3)}")
    MT = LACC
    for qb in range(4): e(f"v_mov_b32 {v(MT+qb)}, 0xff800000")
    e(f"s_cmp_lg_u32 {s(MODE)}, 0\ns_cbranch_scc1 L_maxpass\nL_maxdone:")
    o = Rec()
    o(f"L_maxpass:\nv_lshrrev_b32 v64, 4, {v(L16)}\nv_and_b32 v65, 15, v64\nv_lshrrev_b32 v64, 4, v64\nv_lshlrev_b32 v65, 8, v65\nv_lshlrev_b32 v64, 4, v64\nv_add_u32 v64, v64, v65")
    o(f"s_mov_b32 {s(T0)}, 0\nL_maxloop:")
    for kb in range(4):
        if kb: o(f"s_add_u32 {s(T0)}, {s(T0)}, 4096")
        for ksd in range(4): o(f"buffer_load_dwordx4 {a(16*kb + 4*ksd, 4)}, v64, {s(SK,4)}, {s(T0)} offen offset:{64*ksd}")
    o(f"s_add_u32 {s(T0)}, {s(T0)}, 4096\ns_waitcnt vmcnt(0)")
    for qb in range(4):
        for kb in range(4):
            for m in qk_chain(S0, qb, kb, 0, '0'): o(m)
    o("s_nop 7\ns_nop 1")
    for qb in range(4):
        for i in range(0, 16, 2): o(f"v_max3_f32 {v(MT+qb)}, {v(MT+qb)}, {v(16*qb+i)}, {v(16*qb+i+1)}")
    o(f"s_cmp_lt_u32 {s(T0)}, 524288\ns_cbranch_scc1 L_maxloop\ns_branch L_maxdone")
    OOL.extend(o)
    stamp(e)
    for qb in range(4):
        for m in qk_chain(S0, qb, 0, AV, '0'): e(m)
    MXR = [S1 + i for i in range(4)]; TT = [S1 + 4 + i for i in range(4)]
    for qb in range(4):
        b = sgrp(S0, qb, 0)
        e(f"v_max3_f32 {v(MXR[qb])}, {v(b)}, {v(b+1)}, {v(b+2)}\nv_max3_f32 {v(MXR[qb])}, {v(MXR[qb])}, {v(b+3)}, {v(MT+qb)}")
    allreduce(e, MXR, TT, 'v_max_f32', dpp=())
    for qb in range(4):
        for i in range(4): e(f"v_xor_b32 {v(NEGM+4*qb+i)}, 0x80000000, {v(MXR[qb])}")
    for qb in range(4):
        b = sgrp(S0, qb, 0)
        for i in range(4): e(f"v_sub_f32 {v(b+i)}, {v(b+i)}, {v(MXR[qb])}")
    M = [m for qb in range(4) for kb in range(1, 4) for m in qk_chain(S0, qb, kb, AV)]
    std = lambda j: kv_issue('V', j + 4, True) + kv_issue('K', j + 5, True)
    smd = phaseB(Em(), 1, std(1)); tgt = (smd.e, smd.v)
    sm = SM(0)
    def early(ei):
        qb, kb = ei >> 4, (ei >> 2) & 3
        return 0 if kb == 0 else 12 * qb + 4 * (kb - 1) + 6
    g = fill(48, sm, [], 0, 1, elimit=tgt[0], eearly=early, futureL=len(sm.V) - tgt[1])
    for k, (kind, t) in enumerate(kv_issue('V', 3, True)): g[4 + 8 * k - (3 if kind == 'S' and k else 0)].insert(0 if kind == 'S' else 9, t)
    g[47] += ["WAITVM V0", "s_barrier"]
    show('P', g, 48)
    e.weave(M, g)
    while sm.e < tgt[0]: e(sm.popE())
    while sm.v < tgt[1]: e(sm.popV())
    warm = [[f"s_mov_b32 m0, {L_DUM}"], [f"buffer_load_dword {v(DUM)}, {s(SX,4)}, {s(XSO)} offen lds @@warm"]] if OPT['warm'] else None
    phaseA(e, 0, sm, "WAITVM K2,V1,K3,V2 lgkm", tail=warm)
    down = [('S', f"s_add_u32 m0, {s(FM0)}, 16384"), ('D', dma(L16, RC, s(FDO), 0, 'fw', OPT['ff'])), ('D', dma(L16, RC, s(FDO), 1024, 'fw', OPT['ff']))]
    sm = phaseB(e, 0, kv_issue('K', 4, True) + down + std(0), target=tgt)
    stamp(e)
    e(f"v_lshlrev_b32 {v(DUM)}, 3, {v(L16)}")
    e(f"s_lshl_b32 {s(T0)}, {s(SQB)}, 2\ns_add_u32 {s(T0)}, {s(T0)}, s3\ns_lshl_b32 {s(T0)}, {s(T0)}, 19\ns_lshl_b32 {s(T1)}, {s(SH)}, 14\ns_add_u32 {s(XSO)}, {s(T0)}, {s(T1)}")
    if OPT['cw']: e(f"s_getpc_b64 {s(RC,2)}\nL_pc1:\ns_mov_b32 {s(RC+2)}, L_codeend-L_pc1")
    e(f"s_mov_b32 {s(CNT)}, 0\n.p2align 6\nL_loop:")
    l0 = len(e.L)
    for j in range(1, 5):
        phaseA(e, j, sm, "s_waitcnt vmcnt(19) lgkmcnt(0)", ffn=j - 1)
        it = std(j)
        if j == 4:
            it = it[:2] + [('S', f"s_cmp_eq_u32 {s(CNT)}, 1"), ('S', f"s_cselect_b64 {s(RA,2)}, {s(PU,2)}, {s(RA,2)}")] + it[2:3] + \
                 [('S', f"s_sub_u32 {s(FSO)}, {s(FSUM)}, {s(FSO)}"), ('S', f"s_add_u32 {s(FM0)}, {s(FM0)}, {s(FD)}"), ('S', f"s_sub_u32 {s(FD)}, 8192, {s(FD)}")] + it[3:4]
            it2 = std(j)[4:]
            if OPT['cw']:
                it += [('S', f"s_cmp_ge_u32 {s(CNT)}, 3"), ('S', f"s_cselect_b64 {s(RA,2)}, {s(RC,2)}, {s(RA,2)}"), ('S', f"s_cselect_b32 {s(RA+2)}, {s(RC+2)}, {s(RA+2)}"), ('S', f"s_cselect_b32 {s(FSO)}, {s(SFS)}, {s(FSO)}"), ('S', f"s_cselect_b32 {s(FM0)}, {L_DUM}, {s(FM0)}")] + it2
            else:
                it += [('S', f"s_cmp_eq_u32 {s(CNT)}, 3"), ('S', f"s_cselect_b32 {s(FW)}, 99, {s(FW)}")] + it2
        sm = phaseB(e, j, it, target=tgt)
    e(f"s_add_u32 {s(CNT)}, {s(CNT)}, 1\ns_cmp_lt_u32 {s(CNT)}, 6\ns_cbranch_scc1 L_loop")
    loop = e.L[l0:]
    for p in check(loop + loop, 'loop'): print(p, file=sys.stderr)
    n = len(e.vm)
    for i in range(n - 36, n):
        t = e.vm[i]
        if t != 'fw': e.vm[i] = t[0] + str(int(t[1:]) + 20)
    stamp(e, grp=9)
    key_loads = [f"buffer_load_dwordx4 {v(KEYR+4*i,4)}, {v(L16)}, {s(SWS,4)}, {s(SKEY)} offen offset:{1024*i} sc1 @@key" for i in range(2)]
    for j in range(25, 30):
        tk = OPT['tl'].get(j); tail = None
        if tk == 'w': tail = [[f"s_mov_b32 m0, {L_DUM}", f"s_add_u32 {s(WSO)}, {s(WSO)}, {1 << 18}"], [f"buffer_load_dword {v(DUM)}, {s(SX,4)}, {s(WSO)} offen lds @@tch"]]
        if tk == 'w0': tail = [[f"s_mov_b32 m0, {L_DUM}"], [f"buffer_load_dword {v(DUM)}, {s(SX,4)}, {s(WSO)} offen lds @@tch"]]
        if tk == 'o': tail = [[f"s_mov_b32 m0, {L_DUM}", f"s_xor_b32 {s(XSO)}, {s(XSO)}, 8192"], [f"buffer_load_dword {v(DUM)}, {s(SWS,4)}, {s(XSO)} offen sc1 lds @@tch"]]
        phaseA(e, j, sm, f"WAITVM K{min(j+2,31)},V{j+1}{',key' if j == 27 else ''} lgkm", tail=tail)
        items = []; extra = {}; L = None
        if j == 25:
            items += [('S', f"s_mov_b32 {s(SKEY)}, {WS_KEY}")] + [('D', t) for t in key_loads]
        if j + 4 < 32: items += kv_issue('V', j + 4, True)
        if j + 5 < 32: items += kv_issue('K', j + 5, True)
        if j == 27:
            items += [('S', f"s_mov_b32 {s(OFFV)}, 0")] + wo_issue(0)
            extra[1] = [f"v_xor_b32 {v(WOV1)}, 16, {v(WOV)}"]
        if j in (28, 29): items += wo_issue(2 * j - 55) + wo_issue(2 * j - 54)
        if j == 29:
            items = [('S', f"s_lshl_b32 {s(XSO)}, {s(SRB)}, 2"), ('S', f"s_add_u32 {s(XSO)}, {s(XSO)}, s3"), ('S', f"s_lshl_b32 {s(XSO)}, {s(XSO)}, 4")] + items[:5] + [
              ('S', f"s_lshl_b32 {s(WSO)}, {s(XSO)}, 10"), ('S', f"s_lshl_b32 {s(T0)}, {s(SCB)}, 7"), ('S', f"s_add_u32 {s(WSO)}, {s(WSO)}, {s(T0)}")] + items[5:9] + [
              ('S', f"s_lshl_b32 {s(SFS)}, {s(XSO)}, 3"), ('S', f"s_add_u32 {s(SFS)}, {s(SFS)}, {WS_ST}")] + items[9:]
        if j == 27:
            spin_check(e, 'L_key', key_loads, [KEYR + 1, KEYR + 3, KEYR + 5, KEYR + 7])
            r = Rec()
            r(f"v_max3_u32 {v(KEYR)}, {v(KEYR)}, {v(KEYR+2)}, {v(KEYR+4)}\nv_max_u32 {v(KEYR)}, {v(KEYR)}, {v(KEYR+6)}")
            allreduce(r, [KEYR], [KEYR + 1], 'v_max_u32')
            r(f"v_readfirstlane_b32 {s(SKEY)}, {v(KEYR)}")
            r(f"s_andn2_b32 {s(STS)}, 2047, {s(SKEY)}")
            srd(r, RA, PX, 2097152)
            r(f"s_lshl_b32 {s(T0)}, {s(STS)}, 10\ns_lshl_b32 {s(T1)}, {s(STS)}, 3\ns_add_u32 {s(T1)}, {s(T1)}, {WS_ST}")
            r(f"v_mov_b32 {v(KEYR+6)}, 0\nv_lshrrev_b32 {v(KEYR+7)}, 3, {v(L16)}")
            r(f"buffer_load_dwordx4 {v(KEYR,4)}, {v(L16)}, {s(RA,4)}, {s(T0)} offen @@xs")
            r(f"buffer_load_dwordx2 {v(KEYR+4,2)}, {v(KEYR+6)}, {s(SWS,4)}, {s(T1)} offen sc1 @@xs")
            r(f"s_lshl_b32 {s(T1)}, {s(SCB)}, 7\ns_add_u32 {s(T0)}, {s(T0)}, {s(T1)}")
            r(f"buffer_load_ushort {v(KEYR+6)}, {v(KEYR+7)}, {s(RA,4)}, {s(T0)} offen @@xs")
            for k, t in enumerate(r): extra[2 + 2 * k] = [t]
        sm = phaseB(e, j, items, L=L, target=tgt, extra=extra)
        stamp(e, grp=8)
    flat = lambda its: [t for _, t in its]
    phaseA(e, 30, sm, "WAITVM K31,V31,w0,w1,w2 lgkm")
    M, st = pv_mfmas(30)
    sm = SM(31)
    Y = sm_flat(sm, OPT['e30'])
    pre = [f"v_xor_b32 {v(TRW['K'][1])}, 16, {v(TRB)}", f"v_add_u32 {v(TRW['V'][0])}, 65536, {v(TRB)}", f"v_xor_b32 {v(TRW['V'][1])}, 16, {v(TRW['V'][0])}"]
    D = flat(wo_issue(5)) + flat(wo_issue(6))
    for n in range(7, 11): D += [f"WAITLG r{n-7}"] + flat(wo_issue(n))
    X = pre + riffle(D, wo_reads(0) + wo_reads(1) + wo_reads(2) + ["WAITVM w3"] + wo_reads(3) + v_reads(31, AK))
    g = level(NB, Y, X, NB - 1)
    g[NB - 1] += ["s_waitcnt lgkmcnt(0)", "s_barrier"]
    show('B30', g, NB)
    e.weave(M, g)
    stamp(e, grp=8)
    XR, GP, FST, OV = 220, 208, 234, 236
    M, st = pv_mfmas(31, src=AK, ksmajor=(3,))
    Y = sm_flat(sm, 64)
    assert sm.remE() == 0 and sm.remV() == 0
    ex = [f"buffer_load_dwordx4 {v(XR,4)}, {v(OUTV)}, {s(RA,4)}, {s(WSO)} offen @@ex", f"buffer_load_dwordx4 {v(XR+4,4)}, {v(OUTV)}, {s(RA,4)}, {s(WSO)} offen offset:16 @@ex",
          f"buffer_load_dwordx2 {v(FST,2)}, {v(STV)}, {s(SWS,4)}, {s(SFS)} offen sc1 @@ex"]
    X = ["WAITVM w4,w5"] + riffle(flat(wo_issue(11)) + ex, wo_reads(4) + wo_reads(5)) + ["WAITVM w6", "WAITLG r4"] + riffle(flat(wo_issue(12)), wo_reads(6)) + \
        ["WAITLG r5"] + flat(wo_issue(13)) + ["WAITLG r6"] + flat(wo_issue(14))
    g = level(NB, Y, X, OPT['y31'])
    for p, its in g.items():
        for t in its:
            if 'cvt_pk' in t:
                r = int(t.split()[1].strip('v,')) - S1
                assert p < st[(r >> 4, (r >> 3) & 1)] - 1, (t, p, st)
    show('B31', g, NB)
    e.weave(M, g)
    stamp(e, grp=9)
    ZB, IL, TT = 196, 200, [204 + i for i in range(4)]; CHK = 204
    OSO = OFFK
    vq_ = [q for q in range(4) if q not in OPT['msum']]
    if vq_: allreduce(e, [LV + q for q in vq_], [TT[q] for q in vq_], dpp=())
    e(f"s_lshl_b32 {s(T0)}, {s(SQB)}, 2\ns_add_u32 {s(T0)}, {s(T0)}, s3\ns_lshl_b32 {s(T0)}, {s(T0)}, 19\ns_lshl_b32 {s(T1)}, {s(SH)}, 14\ns_add_u32 {s(OSO)}, {s(T0)}, {s(T1)}")
    e(f"s_mov_b32 {s(T1)}, {fh(OPT['lthr'])}")
    for q in range(4): e(f"v_rcp_f32 {v(IL+q)}, {v(LV + q if q in vq_ else lacc(q))}")
    for q in range(4): e(f"v_cmp_nlt_f32 {s(RB + 2*q, 2)}, {v(LV + q if q in vq_ else lacc(q))}, {s(T1)}")
    e(f"s_lshr_b32 {s(T0)}, {s(SH)}, 3")
    for q in range(4): e(f"s_sub_u32 {s(T1)}, {q}, {s(T0)}\ns_and_b32 {s(T1)}, {s(T1)}, 3\ns_lshl_b32 {s(T1)}, {s(T1)}, 10\nv_add_u32 {v(OV+q)}, {s(T1)}, {v(L16)}\nv_mov_b32 {v(ZB+q)}, 0")
    e(f"s_or_b64 {s(RB,2)}, {s(RB,2)}, {s(RB+2,2)}\ns_or_b64 {s(RB+4,2)}, {s(RB+4,2)}, {s(RB+6,2)}\ns_or_b64 {s(RB,2)}, {s(RB,2)}, {s(RB+4,2)}")
    for i in range(1, 4): e(f"s_add_u32 {s(MX+i-1)}, {s(OSO)}, {4096*i}")
    ost = lambda q, t: f"buffer_store_dwordx4 {v(S0 + 16*q + 4*t, 4)}, {v(OV+q)}, {s(SWS,4)}, {s(OSO if t == 0 else MX + t - 1)} offen sc1 @@o"
    YV, FL, YB = KEYR, 192, 192
    poll = [f"buffer_load_dword {v(YV+2)}, {v(YV+1)}, {s(SWS,4)}, {s(MX+2)} offen sc1 @@poll"]
    U = S1
    def u(i, n=1): return v(U + i, n)
    def rd(n): return [f"WAITVM w{n}"] + wo_reads(n)
    def dm(n): return ([f"WAITLG r{n-8}"] if n < 29 else []) + flat(wo_issue(n))
    def window(e, k, name):
        def mix(items, stream, per):
            for t in items:
                e(t)
                if t.startswith('buffer'):
                    for _ in range(per):
                        if stream: e(stream.pop(0))
        side = []
        for n in range(7, 15):
            at = 0 if n < 11 else 4 if n < 12 else 4 * ((n - 12) // 2 + 1) + (4 if k == 0 else 0)
            side += [(at, t) for t in rd(n)]
            if n + 8 < 15 + k: side += [(at, t) for t in dm(n + 8)]
        per = OPT['perE'] if k else OPT['sideA']
        def pop(step, cnt):
            while cnt > 0 and side and side[0][0] <= step:
                t = side.pop(0)[1]; e(t)
                if cost(t) > 1: cnt -= 1
        pend = None
        for q in range(4):
            for t in range(4):
                step = 4 * q + t; b = U + (step & 7) * 8; d = S0 + 4 * step
                for i in range(8): e(f"v_accvgpr_read_b32 {v(b+i)}, {a(AO + 4*(8*q + 2*t) + i)}")
                if pend: e(pend)
                pop(step, per)
                for i in range(8): e(f"v_mul_f32 {v(b+i)}, {v(b+i)}, {v(IL+q)}")
                pop(step, per)
                for i in range(4): e(f"v_cvt_pk_bf16_f32 {v(d+i)}, {v(b+2*i)}, {v(b+2*i+1)}")
                if k == 0: e(ost(q, t))
                pop(step, per - 1)
                pend = f"{MF} {v(CHK,4)}, {v(ZB,4)}, {v(d,4)}, {'0' if step == 0 else v(CHK,4)}"
        e(pend)
        pop(99, 999)
        nr, nd = 15, min(15 + k, 23)
        if k > 8:
            for t in rd(15) + dm(23): e(t)
            nr, nd = 16, 24
        if k:
            for q in range(4):
                for t in range(4): e(ost(q, t))
        stamp(e)
        e(f"s_lshl_b32 {s(T1)}, s3, 2\ns_add_u32 {s(T1)}, {s(T1)}, {L_FAIL}\nv_mov_b32 {u(1)}, {s(T1)}")
        e(f"v_cmp_u_f32 vcc, {v(CHK)}, {v(CHK)}\ns_or_b64 vcc, vcc, {s(RB,2)}\ns_cmp_lg_u64 vcc, 0\ns_cselect_b32 {s(T0)}, 1, 0\ns_andn2_b32 {s(T0)}, {s(T0)}, {s(MODE)}")
        e(f"v_mov_b32 {u(0)}, {s(T0)}\nds_write_b32 {u(1)}, {u(0)}")
        f_ = e
        XS, SS, XC = KEYR, KEYR + 4, KEYR + 6
        FA, FB = 64, 96
        e("WAITVM xs,fw,ex")
        f_(f"v_lshrrev_b32 {u(18)}, 4, {v(L16)}\nv_lshrrev_b32 {u(19)}, 4, {u(18)}\nv_lshlrev_b32 {u(19)}, 3, {u(19)}\nv_bfe_u32 {u(20)}, {u(18)}, 2, 2\nv_add_u32 {u(19)}, {u(19)}, {u(20)}\nv_lshlrev_b32 {u(19)}, 4, {u(19)}")
        f_(f"v_and_b32 {u(20)}, 1, {u(18)}\nv_lshlrev_b32 {u(20)}, 3, {u(20)}\nv_add_u32 {u(19)}, {u(19)}, {u(20)}\nv_bfe_u32 {u(20)}, {u(18)}, 1, 1\nv_lshlrev_b32 {u(20)}, 13, {u(20)}\nv_add_u32 {u(19)}, {u(19)}, {u(20)}\nv_add_u32 {u(19)}, {L_F}, {u(19)}")
        f_(f"v_lshlrev_b32 {v(SS+1)}, 16, {v(SS)}\nv_and_b32 {v(SS)}, 0xffff0000, {v(SS)}\nv_rcp_f32 {v(SS+1)}, {v(SS+1)}\nv_lshlrev_b32 {u(8)}, 16, {v(XC)}")
        fra = lambda h: [f"ds_read_b64_tr_b16 {a(FA+4*kk+2*jh,2)}, {u(19)} offset:{512*(8*h+kk) + 64*jh} @@fa{h}" for kk in range(8) for jh in range(2)]
        frb = lambda h: [f"ds_read_b128 {a(FB+4*kk,4)}, {u(17)} offset:{64*(8*h+kk)} @@fb{h}" for kk in range(8)]
        fr = fra(0)
        x_ = Rec()
        for j in range(4): unpack(x_, U + 2 * j, XS + j)
        for j in range(9): x_(f"v_sub_f32 {u(j)}, {u(j)}, {v(SS)}")
        bfrn(x_, U, 10)
        for j in range(9): x_(f"v_mul_f32 {u(j)}, {u(j)}, {v(SS+1)}")
        for j in range(4): x_(f"v_cvt_pk_bf16_f32 {u(12+j)}, {u(2*j)}, {u(2*j+1)}")
        x_(f"v_cvt_pk_bf16_f32 {u(8)}, {u(8)}, {u(8)}\ns_lshl_b32 {s(T1)}, s3, 10\ns_add_u32 {s(T1)}, {s(T1)}, {L_F + 24576}\nv_add_u32 {u(16)}, {s(T1)}, {v(L16)}\nv_lshlrev_b32 {v(STV)}, 16, {u(8)}")
        while x_ or fr:
            if x_: f_(x_.pop(0))
            if x_: f_(x_.pop(0))
            if fr: f_(fr.pop(0))
        f_(f"ds_write_b128 {u(16)}, {u(12,4)}")
        f_(f"v_lshrrev_b32 {u(17)}, 8, {v(L16)}\nv_lshlrev_b32 {u(17)}, 4, {u(17)}\nv_add_u32 {u(17)}, {s(T1)}, {u(17)}")
        for t in frb(0): f_(t)
        f_(f"v_lshlrev_b32 {u(18)}, 2, {u(18)}\ns_lshl_b32 {s(T1)}, s3, 8\ns_add_u32 {s(T1)}, {s(T1)}, {L_F + 16384}\nv_add_u32 {u(18)}, {s(T1)}, {u(18)}")
        for f in range(8): f_(f"ds_read_b32 {u(32+f)}, {u(18)} offset:{1024*f} @@fd")
        f_(f"v_lshrrev_b32 {u(30)}, 1, {v(L16)}\ns_lshl_b32 {s(CNT)}, {s(SU)}, 11\ns_lshl_b32 {s(T1)}, s3, 9\ns_add_u32 {s(CNT)}, {s(CNT)}, {s(T1)}\ns_add_u32 {s(CNT)}, {s(CNT)}, {WS_Y}")
        f_("WAITLG fb0")
        h1 = [t for kk in range(8) for t in fra(1)[2*kk:2*kk+2] + frb(1)[kk:kk+1]]
        for kk in range(8):
            f_(f"{MF} {u(20 + 4*(kk&1), 4)}, {a(FA+4*kk,4)}, {a(FB+4*kk,4)}, {'0' if kk < 2 else u(20 + 4*(kk&1), 4)}")
            if kk:
                for t in h1[3*(kk-1):3*kk]: f_(t)
        f_("s_nop 1")
        for t in h1[21:]: f_(t)
        f_("WAITLG fd")
        for f in range(8): unpack(f_, U + 40 + 2 * f, U + 32 + f)
        f_("s_waitcnt lgkmcnt(0)")
        for kk in range(8): f_(f"{MF} {u(20 + 4*(kk&1), 4)}, {a(FA+4*kk,4)}, {a(FB+4*kk,4)}, {u(20 + 4*(kk&1), 4)}")
        for r in range(4): f_(f"v_add_f32 {u(20+r)}, {u(20+r)}, {u(24+r)}")
        bfrn(f_, U + 20, 4)
        for r in range(4): f_(f"v_mov_b32 {u(24+r)}, {u(20+r)}")
        for r in range(4): f_(f"v_permlane32_swap_b32 {u(20+r)}, {u(24+r)}")
        silun(f_, U + 20, U + 32, 4); bfrn(f_, U + 20, 4)
        for r in range(4): f_(f"v_mul_f32 {u(20+r)}, {u(20+r)}, {u(24+r)}")
        bfrn(f_, U + 20, 4)
        for f in range(8): f_(f"v_readlane_b32 {s(RB+f)}, {u(20+(f&3))}, {16*(f>>2)}")
        f_(f"v_mov_b32 {u(3)}, {L_FAIL}")
        for f in range(8):
            for h in range(2): f_(f"{'v_mul_f32' if f == 0 else 'v_fmac_f32'} {u(28+h)}, {s(RB+f)}, {u(40+2*f+h)}")
        srd(f_, RC, PWS, WS_Y + NFFN * 2048)
        f_(f"buffer_store_dwordx2 {u(28,2)}, {u(30)}, {s(RC,4)}, {s(CNT)} offen sc1 @@ys")
        e(f"s_barrier\nds_read_b128 {u(4,4)}, {u(3)}")
        e(f"s_lshl_b32 {s(T0)}, {s(SQB)}, 5\ns_add_u32 {s(T0)}, {s(T0)}, {s(SH)}\ns_lshl_b32 {s(T0)}, {s(T0)}, 2\ns_add_u32 {s(T0)}, {s(T0)}, {WS_FLAG}")
        e(f"s_cmp_eq_u32 s3, 0\ns_cselect_b32 {s(SFS)}, {s(T0)}, {FAR}\nv_mov_b32 {u(2)}, {s(TAG)}")
        e(f"s_waitcnt lgkmcnt(0)\nv_or3_b32 {u(4)}, {u(4)}, {u(5)}, {u(6)}\nv_or_b32 {u(4)}, {u(4)}, {u(7)}\nv_readfirstlane_b32 {s(T1)}, {u(4)}\ns_cmp_lg_u32 {s(T1)}, 0\ns_cbranch_scc1 L_fail")
        stamp(e)
        G, TG = U + 16, U + 32
        g_ = Rec()
        g_(f"v_lshlrev_b32 {v(FST+1)}, 16, {v(FST)}\nv_and_b32 {v(FST)}, 0xffff0000, {v(FST)}\nv_rcp_f32 {v(FST+1)}, {v(FST+1)}")
        for j in range(8): unpack(g_, G + 2 * j, XR + j)
        for j in range(16): g_(f"v_sub_f32 {v(G+j)}, {v(G+j)}, {v(FST)}")
        bfrn(g_, G, 16)
        for j in range(16): g_(f"v_mul_f32 {v(G+j)}, {v(G+j)}, {v(FST+1)}")
        bfrn(g_, G, 16)
        silun(g_, G, TG, 16)
        for j in range(8): g_(f"v_cvt_pk_bf16_f32 {v(GP+j)}, {v(G+2*j)}, {v(G+2*j+1)}")
        e(f"s_lshr_b32 {s(T0)}, {s(STS)}, 6\ns_cmp_eq_u32 {s(T0)}, {s(SRB)}\ns_cselect_b64 {s(RB,2)}, -1, 0")
        e(f"v_bfe_u32 {v(YV+1)}, {v(L16)}, 4, 3\nv_lshlrev_b32 {v(YV+1)}, 2, {v(YV+1)}")
        e(f"s_and_b32 {s(T0)}, s2, 7\ns_lshl_b32 {s(T0)}, {s(T0)}, 7\ns_lshl_b32 {s(T1)}, s3, 5\ns_add_u32 {s(T0)}, {s(T0)}, {s(T1)}\ns_add_u32 {s(MX+2)}, {s(T0)}, {WS_FLAG}")
        e(f"s_lshl_b32 {s(T0)}, {s(SRB)}, 19\ns_lshl_b32 {s(T1)}, s3, 17\ns_add_u32 {s(T0)}, {s(T0)}, {s(T1)}"); srd(e, SX, PWS, 0x20000, s(T0))
        g_(f"s_lshl_b32 {s(OFFK)}, s3, 13\ns_lshl_b32 {s(T0)}, {s(SCB)}, 8\ns_add_u32 {s(OFFK)}, {s(OFFK)}, {s(T0)}\ns_add_u32 {s(OFFK)}, {s(OFFK)}, {WS_Y}")
        g_(f"v_lshrrev_b32 {v(YV)}, 8, {v(L16)}\nv_lshlrev_b32 {v(YV)}, 11, {v(YV)}\nv_and_b32 {v(YV+3)}, 0xf0, {v(L16)}\nv_add_u32 {v(YV)}, {v(YV)}, {v(YV+3)}")
        g_(f"v_add_u32 {v(TRW['X'][0])}, 131072, {v(TRB)}\nv_xor_b32 {v(TRW['X'][1])}, 16, {v(TRW['X'][0])}")
        seq = []
        for n in range(nd, 31):
            while nr <= n - 8 and n < 29: seq += rd(nr); nr += 1
            if n == nd + OPT['npre']: seq += ['PUB']
            if n == 31 - OPT['pollat']: seq += poll
            seq += dm(n)
        if OPT['pollat'] == 0: seq += poll
        assert nr == 21 and 'PUB' in seq and seq.index('PUB') < seq.index(wo_issue(29)[0][1])
        ip = seq.index('PUB')
        mix(seq[:ip], g_, OPT['perG'])
        e(f"WAITVM ys\ns_barrier\nbuffer_store_dword {u(2)}, {v(Z0)}, {s(SWS,4)}, {s(SFS)} offen sc1")
        stamp(e)
        mix(seq[ip + 1:], g_, OPT['perG'])
        for x in g_: e(x)
        stamp(e)
    OOL.extend(f"L_fail:\ns_mov_b32 {s(MODE)}, 1\ns_waitcnt vmcnt(0)\ns_barrier\ns_branch L_restart".split('\n'))
    ks = OPT['ks']
    if len(ks) > 1:
        e(f"s_lshr_b32 {s(T0)}, s2, 3\ns_and_b32 {s(T0)}, {s(T0)}, {len(ks) - 1}")
        for gi in range(1, len(ks)): e(f"s_cmp_eq_u32 {s(T0)}, {gi}\ns_cbranch_scc1 L_win{gi}")
    alts = []; n0 = NST[0]; ALT.append(len(e.L))
    for gi in range(1, len(ks)):
        o = e.fork(); o(f"L_win{gi}:"); window(o, ks[gi], gi); o("s_branch L_windone"); alts.append(o); NST[0] = n0
    window(e, ks[0], 0)
    ALT.append(len(e.L))
    for o in alts: e.merge(o); ALT.append(o.L); OOL.extend(o.L)
    e("L_windone:\nWAITVM poll")
    spin_check(e, 'L_poll', poll, [YV + 2])
    stamp(e, grp=17)
    CO = [0, 1, 2, 3, 20] + list(range(4, 20)) + list(range(21, 32))
    BL = [0, 16, 32, 48, 0, 16, 128, 144, 32, 48, 160, 176]
    for ci in range(12, 32): BL.append(BL[ci - 8])
    BO = [MX, MX + 1, T0, T1]
    def bso(ci): return BO[2 + (ci & 1)] if ci in (2, 3, 6, 7, 10, 11) else BO[ci & 1]
    def bset(ci): return f"s_mov_b32 {s(bso(ci))}, {4096 * CO[ci]}"
    def bload(ci, i): return f"buffer_load_dwordx4 {v(BL[ci] + 4*i, 4)}, {v(L16)}, {s(SX,4)}, {s(bso(ci))} offen offset:{1024*i} {OPT['fo']} @@b{ci}_{i}"
    def acc(nb, i): return S1 + 4 * (4 * nb + i)
    for ci in range(4): e(bset(ci))
    for p in range(2):
        for i in range(4): e(bload(2 * p, i)); e(bload(2 * p + 1, i))
    e(bset(4)); e(bset(5))
    allf = [f"buffer_load_dwordx4 {v(FL,4)}, {v(L16)}, {s(SWS,4)}, {s(CNT)} offen sc1 @@?allf"]
    YS = KEYR + 4
    R = OV
    def yload(i, k): return f"buffer_load_dwordx4 {v(YB + 4*k, 4)}, {v(YV)}, {s(RC,4)}, {s(OFFK)} offen sc1 @@?y{i}"
    yadv = f"s_add_u32 {s(OFFK)}, {s(OFFK)}, 32768"
    L_YW, L_GS = 0, 1024
    GF, XF = 160, 176
    for p in range(16):
        M = []; fixed = {}
        order = [1, 2, 3, 0] if p == 15 else [0, 1, 2, 3]
        for i in order:
            for nb in range(4):
                d = v(acc(nb, i), 4)
                for h in range(2):
                    ci = 2 * p + h
                    M.append(f"{MF} {d}, {wreg(CO[ci], 4*nb, 4)}, {v(BL[ci] + 4*i, 4)}, {'0' if ci == 0 else d}")
        pre = []; own = []
        if p == 0: pre.append("WAITVM b0_0,b1_0 lgkm")
        lq = []; dq = []; vq = Rec()
        if p in (1, 2):
            x = 4 * p + 2
            dq = [('S', bset(x)), ('S', bset(x + 1))] + [('D', bload(x + h, i)) for i in range(4) for h in range(2)]
        if p == 3: lq = wo_reads(21); pre.append("WAITVM w21,w22,w23,w24,w25,w26,w27,w28,w29,w30")
        if 4 <= p <= 8: lq = wo_reads(2 * p + 14) + wo_reads(2 * p + 15)
        if p == 4: dq = wo_issue(31)[:-1]
        if p == 8: pre.append("WAITVM w31")
        if p == 3: own = [f"s_mov_b32 {s(CNT)}, {WS_FLAG}"] + allf
        if p == 5: own = ["WAITVM ?allf", ('spin', 'L_allf', [f"s_mov_b32 {s(T1)}, {WS_FLAG}", allf[0].replace(s(CNT), s(T1))], [FL, FL + 1, FL + 2, FL + 3])]
        if p in (5, 8, 11):
            b = (p - 5) // 3
            for k in range(4 if b < 2 else 3): own += [yload(b, k), yadv]
        if p in (7, 10, 13):
            b = (p - 7) // 3
            own = [f"WAITVM ?y{b}"]
            for k in range(4 if b < 2 else 3):
                if b == 0 and k == 0: continue
                for r in range(4): vq(f"v_add_f32 {v(YS+r)}, {v(YB + r) if (b == 0 and k == 1) else v(YS+r)}, {v(YB+4*k+r)}")
        if p == 13:
            allreduce(vq, [YS + r for r in range(4)], [YB + r for r in range(4)], dpp=())
            vq(f"v_and_b32 {v(YB)}, 0xf0, {v(L16)}\nv_add_u32 {v(YB)}, {s(MK)}, {v(YB)}")
            vq(f"ds_write_b128 {v(YB)}, {v(YS,4)} offset:{L_YW}")
        if p == 12:
            for k in range(1, 4): vq(f"s_add_u32 {s(T0)}, s3, {k}\ns_and_b32 {s(T0)}, {s(T0)}, 3\ns_mul_i32 {s(T0)}, {s(T0)}, 12288\ns_add_u32 {s(T0)}, {s(T0)}, {65536 + 4096*(k-1)}\nv_add_u32 {v(R+k)}, {s(T0)}, {v(L16)}")
            vq(f"s_mul_i32 {s(T0)}, s3, 12288\ns_add_u32 {s(T0)}, {s(T0)}, 65536\nv_add_u32 {v(R)}, {s(T0)}, {v(L16)}")
        if p == 14:
            pre.append("s_barrier")
            vq(f"v_lshrrev_b32 {v(YB)}, 2, {v(L16)}")
            for w in range(4): vq(f"ds_read_b32 {v(YB+4+w)}, {v(YB)} offset:{L_YW + 4096*w}")
            vq(f"s_and_b32 {s(T0)}, {s(SKEY)}, 0xffff0000\ns_xor_b32 {s(T1)}, {s(T0)}, 0x80000000\ns_xor_b32 {s(CNT)}, {s(T0)}, 0xffff0000\ns_bitcmp1_b32 {s(T0)}, 31\ns_cselect_b32 {s(T0)}, {s(T1)}, {s(CNT)}")
            vq(f"v_mov_b32 {v(YB+8)}, {s(T0)}\nv_mul_f32 {v(YB+8)}, {fh(-LOG2E)}, {v(YB+8)}\nv_exp_f32 {v(YB+8)}, {v(YB+8)}\nv_lshrrev_b32 {v(YB+1)}, 3, {v(L16)}\nv_add_f32 {v(YB+8)}, 1.0, {v(YB+8)}\nv_rcp_f32 {v(YB+8)}, {v(YB+8)}")
            vq(f"v_add_u32 {v(YB+1)}, {s(MK)}, {v(YB+1)}")
            bfr1(vq, YB + 8)
            vq("s_waitcnt lgkmcnt(0)")
            vq(f"v_add_f32 {v(YB+4)}, {v(YB+4)}, {v(YB+5)}\nv_add_f32 {v(YB+6)}, {v(YB+6)}, {v(YB+7)}\nv_add_f32 {v(YB+4)}, {v(YB+4)}, {v(YB+6)}")
            bfr1(vq, YB + 4)
            vq(f"v_mul_f32 {v(YB+4)}, {v(YB+4)}, {v(YB+8)}"); bfr1(vq, YB + 4)
            vq(f"v_add_f32 {v(YB+4)}, {v(YB+4)}, {v(STV)}"); bfr1(vq, YB + 4)
            silun(vq, YB + 4, YB + 5, 1)
            vq(f"v_cvt_pk_bf16_f32 {v(YB+4)}, {v(YB+4)}, {v(YB+4)}\nds_write_b16 {v(YB+1)}, {v(YB+4)} offset:{L_GS}")
            vq(f"v_lshrrev_b32 {v(YB+2)}, 8, {v(L16)}\nv_lshlrev_b32 {v(YB+2)}, 5, {v(YB+2)}\nv_add_u32 {v(YB+2)}, {s(MK)}, {v(YB+2)}")
            vq(f"ds_read_b128 {v(YB+8,4)}, {v(YB+2)} offset:{L_GS}\nds_read_b128 {v(YB+12,4)}, {v(YB+2)} offset:{L_GS+16}")
            for j in range(8): unpack(vq, XF + 2 * j, XR + j)
        if p == 15:
            vq(f"s_sub_u32 {s(T0)}, {s(STS)}, {s(XSO)}\nv_bfe_u32 {v(YB)}, {v(L16)}, 4, 4\nv_cmp_eq_u32 vcc, {s(T0)}, {v(YB)}\ns_nop 0")
            for j in range(8): vq(f"v_cndmask_b32 {v(GP+j)}, {v(GP+j)}, {v(YB+8+j)}, vcc")
            for j in range(8): unpack(vq, GF + 2 * j, GP + j)
            srd(vq, RA, POUT, 2097152)
            for k in range(1, 4):
                for nb in range(4): fixed[8 * k + 2 * nb + 1 - (1 if (k == 3 or nb == 3) and False else 0)] = [f"ds_write_b128 {v(R+k)}, {v(acc(nb, k), 4)} offset:{1024*nb}"]
        lg = bool(lq) or p in (13, 14)
        for k in range(4):
            gp = 8 * k + 7
            if k < 3: nx = f"b{2*p}_{order[k+1]},b{2*p+1}_{order[k+1]}"
            else: nx = f"b{2*p+2}_{1 if p == 14 else 0},b{2*p+3}_{1 if p == 14 else 0}"
            if not (p == 15 and k == 3): fixed[gp] = fixed.get(gp, []) + [f"WAITVM {nx}" + (" lgkm" if (k == 3 and lg) else "")]
            x = 2 * p + (4 if p == 0 else 6 if p == 1 else 8)
            if p < 12 and k < 3: fixed[gp + 1] = [bload(x, k)]; fixed[gp + 2] = [bload(x + 1, k)]
            if 1 <= p < 13 and k == 0:
                xp = 2 * (p - 1) + (4 if p == 1 else 6 if p == 2 else 8)
                fixed[0] = [bload(xp, 3)]; fixed[1] = [bload(xp + 1, 3)]
                if p < 12: fixed[2] = [bset(x), bset(x + 1)]
        for x in pre: e(x)
        if own:
            e(f"s_cmp_eq_u32 {s(RB)}, 0\ns_cbranch_scc1 L_own{p}\n;OPT{{")
            for x in own:
                if isinstance(x, tuple): spin_check(e, x[1], x[2], x[3])
                else: e(x)
            e(f";OPT}}\nL_own{p}:")
        if p in (0, 1, 2, 4, 6, 8, 10, 12, 14): stamp(e, grp=16)
        g = pack_gaps(32, dq, lq, vq, lend=28, fixed=fixed)
        if vq: g[31] = list(vq) + g.get(31, []); del vq[:]
        show(f'O{p}', g, 32)
        e.weave(M, g)
    stamp(e, grp=17)
    e("s_waitcnt lgkmcnt(0)\ns_barrier")
    for k in range(3):
        for nb in range(4): e(f"ds_read_b128 {v(16*k + 4*nb, 4)}, {v(R)} offset:{4096*k + 1024*nb} @@f{k}")
    e("WAITLG f0")
    for j in range(16): e(f"v_add_f32 {v(j)}, {v(j)}, {v(acc(j >> 2, 0) + (j & 3))}")
    e("WAITLG f1")
    for j in range(16): e(f"v_add_f32 {v(j)}, {v(j)}, {v(16+j)}")
    e("WAITLG f2")
    for j in range(16): e(f"v_add_f32 {v(j)}, {v(j)}, {v(32+j)}")
    bfrn(e, 0, 16)
    for j in range(16): e(f"v_mul_f32 {v(j)}, {v(j)}, {v(GF+j)}")
    bfrn(e, 0, 16)
    for j in range(16): e(f"v_add_f32 {v(j)}, {v(j)}, {v(XF+j)}")
    for j in range(8): e(f"v_cvt_pk_bf16_f32 {v(16+j)}, {v(2*j)}, {v(2*j+1)}")
    e(f"buffer_store_dwordx4 v[16:19], {v(OUTV)}, {s(RA,4)}, {s(WSO)} offen\nbuffer_store_dwordx4 v[20:23], {v(OUTV)}, {s(RA,4)}, {s(WSO)} offen offset:16")
    e(f"s_add_u32 {s(T0)}, s2, s3\ns_cmp_eq_u32 {s(T0)}, 0\ns_cselect_b32 {s(T0)}, {WS_EPOCH}, {FAR}\ns_add_u32 {s(T1)}, {s(EPO)}, 1\nv_mov_b32 v0, {s(T1)}")
    e(f"buffer_store_dword v0, {v(Z0)}, {s(SWS,4)}, {s(T0)} offen")
    e("s_waitcnt vmcnt(0)")
    stamp_out(e)
    e("L_end:\ns_endpgm")
    return e.L

HDR = open('recurrent_scan__mha_block_cached__moe_arch_mod__prompt.s.ref').read().split('; Override launch')[0]

def main():
    L = kernel()
    rep = []
    L2 = autonop(L, rep)
    if OPT.get('shownop'):
        for k, why in rep: print('nop', k, why, file=sys.stderr)
    for p in check(L2, 'main'): print(p, file=sys.stderr)
    def noopt(X):
        out = []; on = True
        for x in X:
            if x == ';OPT{': on = False
            if on: out.append(x)
            if x == ';OPT}': on = True
        return out
    for p in check(noopt(L2), 'noopt'): print(p, file=sys.stderr)
    for alt in ALT[2:]:
        X = autonop(L[:ALT[0]] + alt + L[ALT[1]:])
        for p in check(X, 'alt') + check(noopt(X), 'altnoopt'): print(p, file=sys.stderr)
    O2 = autonop(OOL)
    out = [HDR.rstrip(), "; @launch grid=(256,1,1) block=(256,1,1) lds=163840", '.amdgcn_target "amdgcn-amd-amdhsa--gfx950"\n.text']
    out.append(f".globl {KNAME}\n.p2align 8\n.type {KNAME},@function\n{KNAME}:")
    out += ['    ' + x if not x.endswith(':') else x for x in L2 + O2 + ['L_codeend:']]
    out.append(f""".section .rodata,"a"
.p2align 6
.amdhsa_kernel {KNAME}
  .amdhsa_next_free_vgpr 512
  .amdhsa_next_free_sgpr 102
  .amdhsa_accum_offset 256
  .amdhsa_group_segment_fixed_size 0
  .amdhsa_kernarg_size 104
  .amdhsa_user_sgpr_count 2
  .amdhsa_user_sgpr_kernarg_segment_ptr 1
  .amdhsa_system_sgpr_workgroup_id_x 1
.end_amdhsa_kernel""")
    open(sys.argv[1], 'w').write('\n'.join(out) + '\n')

main()
```

```python
import sys, struct, math
sys.path.insert(0, 'dev')
from asmlib import *

OPT = dict(pat=(28, 0, 0), rstep=2, pstep=1, d2at=4, dstep=4.5, pearly=40, qstep=4, padd=50, late=4, fpre=0, pollead=30, dlead=4, f2at=10, ylead=5, plead=5, ywait=5, nrep=8, fsplit=0, b30bar=24, b31bar=60, ebar=6, pwait=5, ychk=49, pchk=58, qko='', pvo='', ts=([],[],[],[]), t1e=1, q2e=0, tq=0, qord=0, epol=0, ks=(0, 9), e30=32, y31=56, perE=3, perF=8, perG=6, sideA=2, msum=(1, 3), eB=36, lthr=2.0**60, fq='', fx='', fkv='', fwo='', ff='', rotq=0, roto=0, q0bar=20, npre=2, pollat=8, fo='sc1', warm=1, cw=1, tl={25:'w0'})
for arg in sys.argv[2:]:
    k, val = arg.split('=')
    OPT[k] = eval(val)

def f2u(x): return struct.unpack('<I', struct.pack('<f', x))[0]
def fh(x): return f"0x{f2u(x):08x}"
MF = 'v_mfma_f32_16x16x32_bf16'
LOG2E = 1.4426950408889634
QSCALE = LOG2E / math.sqrt(128.0)
KNAME = 'recurrent_scan__mha_block_cached__moe_arch_mod__prompt_kernel'

WS_O = 0
WS_ST = 16 << 20
WS_KEY = WS_ST + 16384
WS_FLAG = WS_KEY + 2048
WS_EPOCH = WS_FLAG + 2048
WS_FLAG2 = WS_ST + 24576
WS_Y = WS_ST + 32768
WS_F3 = WS_ST + (512 << 10)
WS_P = 20 << 20
WS_DBG = 32 << 20
WS_SIZE = 268435456
NFFN = 172
FAR = 0x40000000
SPIN = 20000

S0, S1, QF, NEGM, LACC, ONES, VA, KA, DKV, LV = 0, 64, 128, 192, 208, 216, 220, 228, 232, 236
WOV, OUTV, STV, TRB, KEYR, L16, DUM, TCH, Z0 = 240, 241, 242, 243, 244, 252, 253, 254, 255
AO, AK, AV = 0, 128, 192
XVO, WVO, XRA, CSA, CSW, CSACC, RAW, STT = 128, 136, 140, 144, 146, 148, 156, 168
STQ = 184
def CSV(db): return 192 + 4 * db if db < 6 else 176 + 4 * (db - 6)
SX, SWQ, SK, SV_, SWS = 4, 8, 12, 16, 20
SWO = 8
MK, MV = 24, 28
OFFK, OFFV, CNT, SH, SQB, XSO, WSO = 32, 33, 34, 35, 36, 37, 38
MX = 39
T0, T1 = 42, 43
PX, PK, PV_, PWQ, PWS = 44, 46, 48, 50, 52
SKEY, STS, SFS = 54, 55, 58
PWO, PWR, PG, PU, PD, POUT = 56, 60, 62, 64, 66, 68
TAG, EPO, SRB, SCB, MODE, SU = 70, 71, 72, 73, 74, 75
RA, RB, RC = 76, 80, 84
SKS = 59
FSO, FSUM, FM0, FD, FW, FDO = 80, 81, 82, 83, 39, 40
XBASE = [0, 32768, 131072]
def xslot(st): return {2: 0, 5: 0, 0: 1, 3: 1, 6: 1, 1: 2, 4: 2, 7: 2}[st]
def wslot(st): return 1 + st % 3
L_CS = 131072
L_FAIL = L_CS + 512
L_YW = L_CS + 576
L_F = L_CS + 2048
L_GS = L_F + 28672
L_KEY = L_CS + 528
L_DUM = L_GS + 512
assert L_DUM + 1024 <= 163840

NST = [0]
STREG = list(range(88, 100)) + [62, 63, 60, 61]
def stamp(e, real=False, grp=1):
    if not (OPT.get('stamp', 0) & grp): return
    i = NST[0]; NST[0] += 1
    real = real or OPT.get('rt')
    e(f"{'s_memrealtime' if real else 's_memtime'} s[100:101]\ns_waitcnt lgkmcnt(0)\ns_mov_b32 {s(STREG[i])}, s100")

def stamp_out(e):
    if not OPT.get('stamp'): return
    stamp(e, grp=255); stamp(e, True, grp=255)
    e("v_mov_b32 v1, 0")
    for i in range(NST[0]): e(f"v_writelane_b32 v1, {s(STREG[i])}, {i}")
    e("v_mbcnt_lo_u32_b32 v2, -1, 0\nv_lshlrev_b32 v2, 2, v2\ns_mov_b64 exec, 0xffff")
    e(f"s_lshl_b32 s100, s2, 2\ns_add_u32 s100, s100, s3\ns_lshl_b32 s100, s100, 6\ns_add_u32 s100, s100, {WS_DBG + (48 << 20)}")
    e(f"buffer_store_dword v1, v2, {s(SWS,4)}, s100 offen\ns_waitcnt vmcnt(0)")
    if OPT.get('dbg') is not None:
        e(f"v_mov_b32_dpp v3, v1 row_shr:1 row_mask:0xf bank_mask:0xf\ns_nop 1\nv_sub_u32 v3, v1, v3")
        e(f"s_lshl_b32 s100, s2, 2\ns_add_u32 s100, s100, s3\ns_cmp_eq_u32 s100, {OPT['dbg']}\ns_cselect_b32 s6, 64, 0\ns_load_dwordx2 s[4:5], s[0:1], 88\ns_mov_b32 s7, 0x20000\ns_waitcnt lgkmcnt(0)")
        e(f"v_sub_u32 v4, v1, {s(STREG[0])}\nv_cmp_eq_u32 vcc, {4*(NST[0]-1)}, v2\ns_nop 1\nv_cndmask_b32 v3, v3, v4, vcc")
        e(f"buffer_store_dword v3, v2, s[4:7], 0 offen\ns_waitcnt vmcnt(0)")

def srd(e, d, p, size, off=None):
    if off is None: e(f"s_mov_b32 {s(d)}, {s(p)}\ns_mov_b32 {s(d+1)}, {s(p+1)}")
    else: e(f"s_add_u32 {s(d)}, {s(p)}, {off}\ns_addc_u32 {s(d+1)}, {s(p+1)}, 0")
    if size is not None: e(f"s_mov_b32 {s(d+2)}, {size}")
    e(f"s_mov_b32 {s(d+3)}, 0x20000")

def allreduce(e, regs, tmps, op='v_add_f32', dpp=(8, 4, 2, 1)):
    for sh in dpp:
        for r in regs: e(f"{op}_dpp {v(r)}, {v(r)}, {v(r)} row_ror:{sh} row_mask:0xf bank_mask:0xf")
    for sw in ('v_permlane16_swap_b32', 'v_permlane32_swap_b32'):
        for r, t in zip(regs, tmps): e(f"v_mov_b32 {v(t)}, {v(r)}")
        for r, t in zip(regs, tmps): e(f"{sw} {v(t)}, {v(r)}")
        for r, t in zip(regs, tmps): e(f"{op} {v(r)}, {v(r)}, {v(t)}")

def unpack(e, dst, src):
    e(f"v_lshlrev_b32 {v(dst)}, 16, {v(src)}\nv_and_b32 {v(dst+1)}, 0xffff0000, {v(src)}")
def bfr1(e, r):
    e(f"v_cvt_pk_bf16_f32 {v(r)}, {v(r)}, {v(r)}\nv_lshlrev_b32 {v(r)}, 16, {v(r)}")
def bfr2(e, r0, r1):
    e(f"v_cvt_pk_bf16_f32 {v(r0)}, {v(r0)}, {v(r1)}\nv_and_b32 {v(r1)}, 0xffff0000, {v(r0)}\nv_lshlrev_b32 {v(r0)}, 16, {v(r0)}")
def bfrn(e, base, n):
    for j in range(0, n, 2): e(f"v_cvt_pk_bf16_f32 {v(base+j)}, {v(base+j)}, {v(base+j+1)}")
    for j in range(0, n, 2): e(f"v_and_b32 {v(base+j+1)}, 0xffff0000, {v(base+j)}\nv_lshlrev_b32 {v(base+j)}, 16, {v(base+j)}")
def silun(e, base, tmp, n):
    for j in range(n): e(f"v_mul_f32 {v(tmp+j)}, {fh(-LOG2E)}, {v(base+j)}")
    for j in range(n): e(f"v_exp_f32 {v(tmp+j)}, {v(tmp+j)}")
    for j in range(n): e(f"v_add_f32 {v(tmp+j)}, 1.0, {v(tmp+j)}")
    for j in range(n): e(f"v_rcp_f32 {v(tmp+j)}, {v(tmp+j)}")
    for j in range(n): e(f"v_mul_f32 {v(base+j)}, {v(base+j)}, {v(tmp+j)}")

class Rec(list):
    def __call__(self, txt):
        for t in txt.split('\n'):
            if t.strip(): self.append(t.strip())

SX_ = [STT + 8, STT + 16]; SW_ = STT + 24; SD_ = [STT + 32, STT + 36]
SM_ = [STT + 4, STT + 5]; SRS = [STT + 6, STT + 7]; SA_ = [STT + 40, STT + 41]; STM = [STT + 42, STT + 43]
def stats1(e):
    X, D, M, RS, A, TM = SX_, SD_, SM_, SRS, SA_, STM
    for j in range(4):
        for i in range(2): unpack(e, X[i] + 2 * j, RAW + 4 * i + j)
    for j in range(4):
        for i in range(2): e(f"v_add_f32 {v(D[i]+j)}, {v(X[i]+2*j)}, {v(X[i]+2*j+1)}")
    for i in range(2): e(f"v_add_f32 {v(D[i])}, {v(D[i])}, {v(D[i]+1)}\nv_add_f32 {v(D[i]+2)}, {v(D[i]+2)}, {v(D[i]+3)}")
    for i in range(2): e(f"v_add_f32 {v(A[i])}, {v(D[i])}, {v(D[i]+2)}")
    allreduce(e, A, TM)
    for i in range(2): e(f"v_mul_f32 {v(M[i])}, {fh(1/512)}, {v(A[i])}")
    for j in range(8):
        for i in range(2): e(f"v_sub_f32 {v(D[i] + (j & 1))}, {v(X[i]+j)}, {v(M[i])}")
        for i in range(2):
            d = v(D[i] + (j & 1))
            e(f"v_mul_f32 {v(A[i])}, {d}, {d}" if j == 0 else f"v_fmac_f32 {v(A[i])}, {d}, {d}")
    allreduce(e, A, TM)
    for i in range(2): e(f"v_mul_f32 {v(A[i])}, {fh(1/512)}, {v(A[i])}")
    for i in range(2): bfr2(e, A[i], M[i])
    for i in range(2): e(f"v_add_f32 {v(A[i])}, {fh(1e-5)}, {v(A[i])}")
    bfr2(e, A[0], A[1])
    for i in range(2): e(f"v_sqrt_f32 {v(A[i])}, {v(A[i])}")
    e(f"v_mov_b32 {v(STT+1)}, {s(TAG)}\nv_mov_b32 {v(STT+3)}, {s(TAG)}")
    bfr2(e, A[0], A[1])
    for i in range(2): e(f"v_lshrrev_b32 {v(TM[i])}, 16, {v(A[i])}")
    for i in range(2): e(f"v_or_b32 {v(STT+2*i)}, {v(TM[i])}, {v(M[i])}")
    for i in range(2): e(f"v_rcp_f32 {v(RS[i])}, {v(A[i])}")

def stats2(e, srow):
    X, W, M, RS, A, TM = SX_, SW_, SM_, SRS, SA_, STM
    for j in range(4): unpack(e, W + 2 * j, RAW + 8 + j)
    for j in range(8):
        for i in range(2): e(f"v_sub_f32 {v(X[i]+j)}, {v(X[i]+j)}, {v(M[i])}")
    for i in range(2): bfrn(e, X[i], 8)
    for j in range(8):
        for i in range(2): e(f"v_mul_f32 {v(X[i]+j)}, {v(X[i]+j)}, {v(RS[i])}")
    for i in range(2): bfrn(e, X[i], 8)
    for j in range(8):
        for i in range(2):
            e(f"v_mul_f32 {v(A[i])}, {v(X[i]+j)}, {v(W+j)}" if j == 0 else f"v_fmac_f32 {v(A[i])}, {v(X[i]+j)}, {v(W+j)}")
    allreduce(e, A, TM)
    bfr2(e, A[0], A[1])
    for i in range(2): e(f"v_ashrrev_i32 {v(TM[i])}, 31, {v(A[i])}")
    for i in range(2): e(f"v_or_b32 {v(TM[i])}, 0x80000000, {v(TM[i])}")
    for i in range(2): e(f"v_xor_b32 {v(A[i])}, {v(A[i])}, {v(TM[i])}")
    for i in range(2): e(f"v_and_b32 {v(A[i])}, 0xffff0000, {v(A[i])}")
    for i in range(2): e(f"v_mov_b32 {v(TM[i])}, {s(srow)}")
    for i in range(2): e(f"v_sub_u32 {v(TM[i])}, {2047 - i}, {v(TM[i])}")
    for i in range(2): e(f"v_or_b32 {v(A[i])}, {v(A[i])}, {v(TM[i])}")
    e(f"v_max_u32 {v(A[0])}, {v(A[0])}, {v(A[1])}")

def dma(voff, srd_, soff, ioff, tag, fl=''):
    return f"buffer_load_dwordx4 {v(voff)}, {s(srd_,4)}, {soff} offen offset:{ioff} {fl} lds @@{tag}"
def qbuf(st): return (0, 64, 96) if st & 1 else (128, 192, 224)

def q_issue(st):
    it = [('S', f"s_mov_b32 m0, {s(MV + wslot(st))}")]
    for i in range(4): it.append(('D', dma(WVO + i, SWQ, s(WSO), 1024 * i, f"q{st}", OPT['fq'])))
    it.append(('S', f"s_mov_b32 m0, {s(MX + xslot(st))}"))
    for i in range(4): it.append(('D', dma(XVO + i, SX, s(XSO), 1024 * i, f"q{st}", OPT['fx'])))
    it.append(('S', f"s_add_u32 m0, {s(MX + xslot(st))}, 4096"))
    for i in range(4, 8): it.append(('D', dma(XVO + i, SX, s(XSO), 1024 * (i & 3), f"q{st}", OPT['fx'])))
    if st < 7:
        it += [('S', f"s_add_u32 {s(XSO)}, {s(XSO)}, 128"), ('S', f"s_and_b32 {s(XSO)}, {s(XSO)}, 0x3ff"), ('S', f"s_lshl_b32 {s(WSO)}, {s(XSO)}, 12")]
    return it

def kv_issue(which, j, running=False):
    isk = which == 'K'; off = OFFK if isk else OFFV
    it = []
    if not running: it.append(('S', f"s_mov_b32 {s(off)}, {j*16384}"))
    it.append(('S', f"s_mov_b32 m0, {s((MK if isk else MV) + (j & 3))}"))
    for i in range(4):
        it.append(('D', dma(DKV + (0 if isk else 2) + (i >> 1), SK if isk else SV_, s(off), 1024 * i, f"{which}{j}", OPT['fkv'])))
    if running: it.append(('S', f"s_add_u32 {s(off)}, {s(off)}, 16384"))
    return it

WSLOT = ['K0', 'K1', 'V0', 'K2', 'V1', 'K3', 'V2', 'K0', 'K1', 'V0', 'K2', 'V3', 'V1', 'V2', 'V0', 'V3']
WOV1 = 232
TRW = {'K': TRB, 'V': 229}
def wo_issue(n):
    w, k = WSLOT[n][0], int(WSLOT[n][1])
    it = [('S', f"s_mov_b32 m0, {s((MK if w == 'K' else MV) + k)}")]
    for i in range(4): it.append(('D', dma(WOV1 if i >> 1 else WOV, SWO, s(OFFV), 1024 * i, f"w{n}", OPT['fwo'])))
    it.append(('S', f"s_add_u32 {s(OFFV)}, {s(OFFV)}, 65536"))
    return it
WLOC = {}
for _k in range(4):
    WLOC[_k] = v(128 + 16 * _k); WLOC[4 + _k] = a(AV + 16 * _k); WLOC[8 + _k] = a(AK + 16 * _k); WLOC[12 + _k] = a(16 * _k)
def wreg(n, off, cnt):
    r = WLOC[n]; return (v if r[0] == 'v' else a)(int(r[1:]) + off, cnt)
def wo_reads(n):
    w, k = WSLOT[n][0], int(WSLOT[n][1])
    return [f"ds_read_b64_tr_b16 {wreg(n, 8*ksl + 4*nb + 2*jh, 2)}, {v(TRW[w])} offset:{16384*k + 4096*(2*ksl + jh) + 8*nb} @@r{n}" for ksl in range(2) for nb in range(2) for jh in range(2)]
def cost(t):
    o = t.split()[0]
    return 8 if ('exp' in o or 'rcp' in o or o.startswith('buffer')) else 1 if (o.startswith('s_') or o.startswith('WAIT')) else 4
def sm_flat(sm, elimit):
    out = []
    while sm.e < elimit or sm.ready():
        if sm.e < elimit: out.append(sm.popE())
        k = 0
        while sm.v < len(sm.V) and (sm.V[sm.v][0] < sm.e - 1 or (sm.e >= elimit and sm.V[sm.v][0] < sm.e)) and k < 3: out.append(sm.popV()); k += 1
    return out
def level(n, Y, X, yend):
    cy = sum(map(cost, Y)); cx = sum(map(cost, X)); Y = list(Y); X = list(X)
    g = {}; dy = 0; dt = 0
    for p in range(n):
        l = []
        while Y and dy + cost(Y[0]) / 2 <= cy * (p + 1) / yend: t = Y.pop(0); l.append(t); dy += cost(t); dt += cost(t)
        lx = []
        while X and (dt + cost(X[0]) / 2 <= (cx + cy) * (p + 1) / n or p == n - 1): t = X.pop(0); lx.append(t); dt += cost(t)
        g[p] = lx + l
    assert not Y and not X
    return g
def riffle(A, B):
    nd = sum(1 for t in A if t.startswith('buffer')); out = []; B = list(B); nb = len(B); k = 0
    for t in A:
        out.append(t)
        if t.startswith('buffer'):
            k += 1
            while B and (nb - len(B)) < nb * k / nd: out.append(B.pop(0))
    return out + B

def q_reads(st):
    W, X, C = qbuf(st)
    L = []
    xo = XBASE[xslot(st)]; xr = XRA
    if xo >= 65536: xo -= 131072; xr += 2
    wo = wslot(st) * 16384
    for ks in range(2):
        for d2 in range(2):
            for jh in range(2):
                L.append(f"ds_read_b64_tr_b16 {a(C + 8*ks + 4*d2 + 2*jh, 2)}, {v(CSA + d2)} offset:{wo + ks*8192 + jh*1024}")
    for qb in range(4):
        for ks in range(2):
            L.append(f"ds_read_b128 {a(X + 16*ks + 4*qb, 4)}, {v(xr + ks)} offset:{xo + qb*2048}")
    for db in range(8):
        for ks in range(2):
            for jh in range(2):
                L.append(f"ds_read_b64_tr_b16 {a(W + 32*ks + 4*db + 2*jh, 2)}, {v(VA + db)} offset:{wo + ks*8192 + jh*1024}")
    return L

def qacc(db, qb): return 4 * (8 * qb + db)
def q_mfmas(st):
    W, X, C = qbuf(st)
    M = []
    for d2 in range(2):
        for ks in range(2):
            c = '0' if (st == 0 and ks == 0) else v(CSACC + 4 * d2, 4)
            M.append(f"{MF} {v(CSACC + 4*d2, 4)}, {a(C + 8*ks + 4*d2, 4)}, {v(ONES, 4)}, {c}")
    for db in range(8):
        for qb in range(4):
            for ks in range(2):
                d = v(qacc(db, qb), 4)
                c = '0' if (st == 0 and ks == 0) else d
                M.append(f"{MF} {d}, {a(W + 32*ks + 4*db, 4)}, {a(X + 16*ks + 4*qb, 4)}, {c}")
    return M

def pack_gaps(n, dq, lq, vq=None, start=0, lend=None, fixed=None):
    gaps = dict(fixed or {})
    dq = list(dq); lq = list(lq); vq = vq if vq is not None else []
    lend = n if lend is None else lend
    turn = 0
    for p in range(start, n):
        if p in gaps: continue
        lurg = lq and (lend - p) * 2 <= len(lq) + 1
        if dq and dq[0][0] == 'S' and not (lurg and len(lq) > 1 and False):
            if lq: g = [lq.pop(0), dq.pop(0)[1]]
            else:
                g = [dq.pop(0)[1]]
                if dq and dq[0][0] == 'S': g.append(dq.pop(0)[1])
                elif vq:
                    g.append(vq.pop(0))
                    if vq: g.append(vq.pop(0))
            gaps[p] = g; continue
        order = [(turn + k) % 3 for k in range(3)]
        if lurg: order = [1, 0, 2]
        for o in order:
            if o == 0 and dq:
                gaps[p] = [dq.pop(0)[1]]; break
            if o == 1 and lq:
                gaps[p] = [lq.pop(0)] + ([lq.pop(0)] if lq else []); break
            if o == 2 and vq:
                gaps[p] = [vq.pop(0)] + ([vq.pop(0)] if vq else []); break
        else: continue
        turn = (o + 1) % 3
    assert not dq and not lq, (len(dq), len(lq))
    return gaps

def sgrp(buf, qb, ks): return buf + (2 * qb + ks) * 8
def k_reads(j, dst=AK):
    return [f"ds_read_b128 {a(dst + 16*(2*ks+jh) + 4*ksd, 4)}, {v(KA + ksd)} offset:{(j & 3)*16384 + ks*8192 + jh*1024}"
            for ks in range(2) for jh in range(2) for ksd in range(4)]
def v_reads(j, dst=AV):
    return [f"ds_read_b64_tr_b16 {a(dst + 32*ks + 4*db + 2*jh, 2)}, {v(VA + db)} offset:{(j & 3)*16384 + ks*8192 + jh*1024}"
            for db in range(8) for ks in range(2) for jh in range(2)]
def qk_chain(buf, qb, kb, src=AK, c0=None):
    d = v(sgrp(buf, qb, kb >> 1) + 4 * (kb & 1), 4)
    M = []
    for ksd in range(4):
        c = (c0 if c0 is not None else v(NEGM + 4 * qb, 4)) if ksd == 0 else d
        M.append(f"{MF} {d}, {a(src + 16*kb + 4*ksd, 4)}, {v(QF + 16*qb + 4*ksd, 4)}, {c}")
    return M
def qk_mfmas(j, src=AK):
    buf = S1 if j & 1 else S0
    ch = {(qb, kb): qk_chain(buf, qb, kb, src) for qb in range(4) for kb in range(4)}
    o = OPT['qko']
    if o == 'B': return [ch[qb, kb][ksd] for qb in range(4) for ksd in range(4) for kb in range(4)]
    if o == 'A': return [ch[qb, kb][ksd] for kb in range(4) for ksd in range(4) for qb in range(4)]
    if o == 'A2': return [ch[qb, kb][ksd] for q2 in range(2) for kb in range(4) for ksd in range(4) for qb in (2*q2, 2*q2+1)]
    if o == 'S': return [ch[qb, (kb if not qb & 1 else 3 - kb)][ksd] for ksd in range(4) for qb in range(4) for kb in range(4)]
    return [m for qb in range(4) for kb in range(4) for m in ch[qb, kb]]
def lacc(qb): return LACC + 4 * OPT['msum'].index(qb)
def pv_mfmas(j, first=False, src=AV, ksmajor=()):
    buf = S1 if j & 1 else S0
    M = []; st = {}
    o = OPT['pvo'] if j < 30 else ''
    def pv(qb, db, ks):
        d = a(AO + 4 * (8 * qb + db), 4)
        return f"{MF} {d}, {a(src + 32*ks + 4*db, 4)}, {v(sgrp(buf, qb, ks), 4)}, {'0' if (first and ks == 0) else d}"
    def sm_(qb, ks):
        if qb not in OPT['msum']: return []
        d = v(lacc(qb), 4)
        return [f"{MF} {d}, {v(ONES, 4)}, {v(sgrp(buf, qb, ks), 4)}, {'0' if (first and ks == 0) else d}"]
    if o == 'B': return [m for qb in range(4) for ks in range(2) for m in [pv(qb, db, ks) for db in range(8)] + sm_(qb, ks)], st
    if o == 'A': return [pv(qb, db, ks) for db in range(8) for ks in range(2) for qb in range(4)] + [m for ks in range(2) for qb in range(4) for m in sm_(qb, ks)], st
    if o == 'S': return [m for ks in range(2) for m in [pv(qb, (db if not qb & 1 else 7 - db), ks) for qb in range(4) for db in range(8)]] + [m for ks in range(2) for qb in range(4) for m in sm_(qb, ks)], st
    for qb in range(4):
        order = [(db, ks) for ks in range(2) for db in range(8)] if qb in ksmajor else [(db, ks) for db in range(8) for ks in range(2)]
        for db, ks in order:
            d = a(AO + 4 * (8 * qb + db), 4)
            c = '0' if (first and ks == 0) else d
            st.setdefault((qb, ks), len(M))
            M.append(f"{MF} {d}, {a(src + 32*ks + 4*db, 4)}, {v(sgrp(buf, qb, ks), 4)}, {c}")
        if qb in OPT['msum']:
            d = v(lacc(qb), 4)
            for ks in range(2):
                c = '0' if (first and ks == 0) else d
                M.append(f"{MF} {d}, {v(ONES, 4)}, {v(sgrp(buf, qb, ks), 4)}, {c}")
    return M, st

class SM:
    def __init__(self, j):
        buf = S1 if j & 1 else S0
        E = []; V = []
        for qb in range(4):
            for ks in range(2):
                b = sgrp(buf, qb, ks); e0 = len(E)
                for i in range(8): E.append(f"v_exp_f32 {v(b+i)}, {v(b+i)}")
                for p in range(4):
                    if qb not in OPT['msum']:
                        for i in (2 * p, 2 * p + 1):
                            V.append((e0 + i, f"v_add_f32 {v(LV+qb)}, {v(LV+qb)}, {v(b+i)}"))
                    V.append((e0 + 2 * p + 1, f"v_cvt_pk_bf16_f32 {v(b+p)}, {v(b+2*p)}, {v(b+2*p+1)}"))
        self.E, self.V, self.e, self.v = E, V, 0, 0
    def ready(self):
        n = 0
        while self.v + n < len(self.V) and self.V[self.v + n][0] < self.e: n += 1
        return n
    def popE(self): self.e += 1; return self.E[self.e - 1]
    def popV(self): self.v += 1; return self.V[self.v - 1][1]
    def remE(self): return len(self.E) - self.e
    def remV(self): return len(self.V) - self.v

def fill(n, sm, L, lfirst, llast, dpos=None, scal=None, futureL=0, elimit=None, eearly=None, finish=False):
    gaps = {}
    L = list(L); nL = len(L); dpos = dict(dpos or {}); scal = dict(scal or {})
    elimit = len(sm.E) if elimit is None else elimit
    for p in range(n):
        g = []
        done = nL - len(L)
        lav = bool(L) and p >= lfirst + (llast - lfirst) * done / max(1, nL - 1) - 1e-9
        urgent = bool(L) and ((llast - p + 1) * 2 <= len(L) + 1 or p >= llast)
        vr = sm.ready()
        eok = sm.e < elimit and (eearly is None or p >= eearly(sm.e))
        if p in dpos:
            assert p not in scal
            g = [dpos.pop(p)]
        elif p in scal:
            g = [scal.pop(p)]
            if eok: g.append(sm.popE())
            else:
                for _ in range(min(2, vr)): g.append(sm.popV())
        elif lav and vr >= 1: g = [L.pop(0), sm.popV()]
        elif urgent or (lav and not eok):
            g = [L.pop(0)]
            if L: g.append(L.pop(0))
        elif vr >= 2 and (sm.remV() - len(L) - futureL >= 2 or not eok): g = [sm.popV(), sm.popV()]
        elif eok: g = [sm.popE()]
        elif vr >= 1 and finish: g = [sm.popV()]
        if g: gaps[p] = g
    assert not L and not dpos and not scal, (len(L), dpos, scal)
    return gaps

def spread(items, first, last):
    nD = sum(1 for k, _ in items if k == 'D')
    dpos = {}; scal = {}
    step = (last - first) / max(1, nD - 1) if nD > 1 else 0
    k = 0; p = -1; pend = []
    for kind, t in items:
        if kind == 'S': pend.append(t); continue
        want = max(int(round(first + k * step)), p + 1 + len(pend))
        q = want - len(pend)
        for x in pend: scal[q] = x; q += 1
        pend = []
        dpos[want] = t; p = want; k += 1
    for x in pend: p += 1; scal[p] = x
    return dpos, scal

NB = 64 + 2 * len(OPT['msum'])

def show(tag, g, n):
    def ch(x):
        o = x.split()[0]
        return 'E' if 'exp' in o else 'L' if o.startswith('ds_') else 'D' if o.startswith('buffer') else 's' if o.startswith('s_') or o == 'WAITVM' else 'v'
    if OPT.get('show'): print(tag, ' '.join(''.join(ch(x) for x in g.get(i, [])) or '-' for i in range(n)), file=sys.stderr)

def phaseA(e, j, sm, last_wait, ffn=None, tail=None):
    M = qk_mfmas(j + 1)
    g = fill(64, sm, v_reads(j), 0, 54, finish=True)
    assert sm.remE() == 0 and sm.remV() == 0, (sm.remE(), sm.remV())
    if ffn is not None:
        assert 61 not in g and 62 not in g
        g[60] = [f"s_cmp_eq_u32 {s(FW)}, {ffn}"] + g[60]
        g[61] = [f"s_cselect_b32 {s(T0)}, {s(FSO)}, {FAR}", f"s_cselect_b32 m0, {s(FM0)}, {L_DUM}"]
        g[62] = [dma(TCH, RA, s(T0), 0, 'fw', OPT['ff'])]
    if tail:
        assert 61 not in g and 62 not in g
        g[61], g[62] = tail
    g[63] = g.get(63, []) + [last_wait, "s_barrier"]
    show(f'A{j}', g, 64)
    e.weave(M, g)

def phaseB(e, j, items, L=None, target=None, extra=None, endbar=False):
    M, st = pv_mfmas(j, j == 0)
    sm = SM(j + 1)
    dpos, scal = spread(items, 4, NB - 8)
    fut = 32
    if L is None: L = k_reads(j + 2)
    else: fut = 0
    scal[NB - 1] = "s_waitcnt lgkmcnt(0)"
    g = fill(NB, sm, L, 3, NB - 12, dpos, scal, futureL=fut, elimit=OPT['eB'])
    if endbar: g[NB - 1].insert(1, "s_barrier")
    if target is not None:
        while sm.e < target[0]: g[NB - 1].append(sm.popE())
        while sm.v < target[1]: g[NB - 1].append(sm.popV())
    for p, xs in (extra or {}).items(): g[p] = g.get(p, []) + xs
    show(f'B{j}', g, NB)
    e.weave(M, g)
    return sm

def spin_check(e, name, reload_, ncmp, cond_sgpr=None, pre=()):
    def test(x):
        for k, r in enumerate(ncmp):
            x(f"v_cmp_ne_u32 {'vcc' if k == 0 else s(T0,2)}, {s(TAG)}, {v(r)}")
            if k: x(f"s_or_b64 vcc, vcc, {s(T0,2)}")
        if cond_sgpr is not None: x(f"s_and_b64 vcc, vcc, {s(cond_sgpr,2)}")
    test(e)
    e(f"s_cbranch_vccnz {name}_slow\n{name}_ok:")
    o = Rec()
    o(f"{name}_slow:\ns_mov_b32 {s(CNT)}, {SPIN}\n{name}_spin:\ns_sleep 2")
    for t in reload_: o(t.split('@@')[0])
    o("s_waitcnt vmcnt(0)")
    for t in pre: o(t)
    test(o)
    o(f"s_cbranch_vccz {name}_ok\ns_sub_u32 {s(CNT)}, {s(CNT)}, 1\ns_cmp_lg_u32 {s(CNT)}, 0\ns_cbranch_scc1 {name}_spin\ns_branch {name}_ok")
    OOL.extend(o)
OOL = []
ALT = []

def kernel():
    e = Em()
    e("s_cmp_ge_u32 s2, 256\ns_cbranch_scc1 L_end")
    e(f"s_load_dwordx4 s[44:47], s[0:1], 0\ns_load_dwordx4 s[48:51], s[0:1], 16\ns_load_dwordx2 s[52:53], s[0:1], 96")
    e(f"s_load_dwordx4 s[60:63], s[0:1], 48\ns_load_dwordx2 s[56:57], s[0:1], 32\ns_load_dwordx4 s[64:67], s[0:1], 64\ns_load_dwordx2 s[68:69], s[0:1], 80")
    stamp(e, True, grp=255); stamp(e, grp=255)
    e(f"v_lshrrev_b32 v2, 6, v0\ns_mov_b32 {s(MODE)}, 0\nv_readfirstlane_b32 s3, v2")
    e(f"s_and_b32 {s(T0)}, s2, 7\ns_lshl_b32 {s(SH)}, {s(T0)}, 2\ns_lshr_b32 {s(T1)}, s2, 3\ns_and_b32 {s(T1)}, {s(T1)}, 3\ns_add_u32 {s(SH)}, {s(SH)}, {s(T1)}\ns_lshr_b32 {s(SQB)}, s2, 5")
    e("s_branch L_start")
    e("L_restart:")
    e("v_mbcnt_lo_u32_b32 v0, -1, 0\nv_mbcnt_hi_u32_b32 v0, -1, v0\nv_mov_b32 v2, s3")
    e("L_start:")
    e("v_and_b32 v1, 63, v0\nv_and_b32 v3, 15, v0\nv_bfe_u32 v4, v0, 4, 2")
    e("v_lshlrev_b32 v5, 1, v4\nv_xor_b32 v5, v5, v3\nv_lshlrev_b32 v5, 4, v5")
    e("v_lshlrev_b32 v6, 4, v2\nv_add_u32 v6, v6, v4")
    e(f"v_lshlrev_b32 v7, 13, v6\nv_add_u32 {v(WVO)}, v7, v5")
    e(f"v_add_u32 {v(WVO+1)}, {4*8192-1024}, {v(WVO)}")
    e(f"v_xor_b32 v8, 128, {v(WVO)}\nv_add_u32 {v(WVO+2)}, {8*8192-2048}, v8\nv_add_u32 {v(WVO+3)}, {12*8192-3072}, v8")
    if OPT['rotq']: e(f"s_and_b32 {s(T0)}, {s(SH)}, 3\ns_lshl_b32 {s(T0)}, {s(T0)}, 1\ns_add_u32 {s(T0)}, {s(T0)}, {s(SQB)}\ns_and_b32 {s(T0)}, {s(T0)}, 7\ns_lshl_b32 {s(XSO)}, {s(T0)}, 7\ns_lshl_b32 {s(WSO)}, {s(T0)}, 19")
    else: e(f"s_mov_b32 {s(XSO)}, 0\ns_mov_b32 {s(WSO)}, 0")
    e(f"s_lshl_b32 {s(T0)}, s3, 12\ns_lshl_b32 {s(T1)}, s3, 13")
    for i in range(4): e(f"s_add_u32 {s(MV+i)}, {s(T0)}, {65536+i*16384}")
    for i in range(3): e(f"s_add_u32 {s(MX+i)}, {s(T1)}, {XBASE[i]}")
    e("v_lshrrev_b32 v8, 3, v1\nv_lshlrev_b32 v9, 6, v2\nv_add_u32 v8, v8, v9\nv_lshlrev_b32 v8, 10, v8")
    e("v_and_b32 v9, 7, v1\nv_xor_b32 v9, v9, v4\nv_lshlrev_b32 v9, 4, v9\nv_add_u32 v8, v8, v9\nv_xor_b32 v9, 64, v8")
    for i in range(8): e(f"v_add_u32 {v(XVO+i)}, {8192*i - 1024*(i&3)}, {v(9 if i & 1 else 8)}")
    e(f"s_lshl_b32 {s(T0)}, {s(SH)}, 8\ns_sub_u32 {s(SWQ+2)}, {512*8192}, {s(T0)}\ns_lshl_b32 {s(T1)}, {s(SQB)}, 18\ns_waitcnt lgkmcnt(0)")
    srd(e, SWQ, PWQ, None, s(T0)); srd(e, SX, PX, 262144, s(T1))
    stamp(e, grp=2)
    TX, TW, TM_ = 12, 13, 14
    tks = OPT['ts']
    tn = [0]
    def touch(grp):
        for a_, n_ in grp:
            r = KEYR + 1 + tn[0] % 7; tn[0] += 1
            if n_ < 4: e(f"v_and_b32 v15, 3, v1\nv_cmp_gt_u32 vcc, {n_}, v15\nv_cndmask_b32 v15, {v(TM_)}, {v(TX)}, vcc")
            e(f"buffer_load_dword {v(r)}, {'v15' if n_ < 4 else v(TX)}, {s(SX,4)}, {s(RB)} offen offset:{128*a_} @@tq")
            r = KEYR + 1 + tn[0] % 7; tn[0] += 1
            e(f"v_cmp_gt_u32 vcc, {4*n_}, v1\ns_add_u32 {s(RB+2)}, {s(RB+1)}, {a_ << 19}\nv_cndmask_b32 v16, {v(TM_)}, {v(TW)}, vcc")
            e(f"buffer_load_dword {v(r)}, v16, {s(SWQ,4)}, {s(RB+2)} offen @@tq")
    if any(tks):
        e(f"s_and_b32 {s(RB)}, {s(SH)}, 3\ns_lshl_b32 {s(RB)}, {s(RB)}, 2\ns_add_u32 {s(RB)}, {s(RB)}, s3\ns_lshl_b32 {s(RB)}, {s(RB)}, 14")
        e(f"s_lshl_b32 {s(RB+1)}, {s(SQB)}, 2\ns_add_u32 {s(RB+1)}, {s(RB+1)}, s3\ns_lshl_b32 {s(RB+1)}, {s(RB+1)}, 14")
        e(f"v_lshrrev_b32 v15, 2, v1\nv_lshlrev_b32 {v(TX)}, 10, v15\nv_lshlrev_b32 {v(TW)}, 19, v15\nv_and_b32 v15, 3, v1\nv_lshlrev_b32 v15, 7, v15\nv_add_u32 {v(TX)}, {v(TX)}, v15")
        e(f"v_bfe_u32 v15, v1, 1, 1\nv_lshlrev_b32 v15, 13, v15\nv_add_u32 {v(TW)}, {v(TW)}, v15\nv_and_b32 v15, 1, v1\nv_lshlrev_b32 v15, 7, v15\nv_add_u32 {v(TW)}, {v(TW)}, v15\nv_mov_b32 {v(TM_)}, {FAR}")
    touch(tks[0])
    if OPT['qord']:
        it = q_issue(0)
        e(f"s_cmp_lt_u32 s3, 2\ns_cbranch_scc1 L_qw")
        o = e.fork()
        for k, t in it[5:15] + it[:5] + it[15:]: e(t)
        e("s_branch L_qx\nL_qw:")
        for k, t in it: o(t)
        e.merge(o); e.L.extend(o.L)
        e("L_qx:")
    else:
        for k, t in q_issue(0): e(t)
    if OPT['t1e']: touch(tks[1])
    stamp(e, grp=2)
    e(f"s_cmp_lg_u32 {s(MODE)}, 0\ns_cbranch_scc1 L_noepo\ns_mov_b32 {s(T0)}, {WS_EPOCH}\ns_load_dword {s(EPO)}, s[52:53], {s(T0)}\nL_noepo:")
    e(f"v_lshlrev_b32 {v(L16)}, 4, v1")
    e(f"s_and_b32 {s(T0)}, s2, 7\ns_lshr_b32 {s(T1)}, s2, 3\ns_and_b32 {s(SCB)}, {s(T1)}, 3\ns_mul_i32 {s(SU)}, {s(T0)}, 22\ns_add_u32 {s(SU)}, {s(SU)}, {s(T1)}")
    e(f"s_cmp_lt_u32 {s(T1)}, 22\ns_cselect_b32 {s(SU)}, {s(SU)}, 255")
    e(f"s_lshr_b32 {s(SKS)}, {s(T0)}, 1\ns_and_b32 {s(T0)}, {s(T0)}, 1\ns_lshl_b32 {s(SRB)}, {s(SQB)}, 1\ns_add_u32 {s(SRB)}, {s(SRB)}, {s(T0)}")
    e(f"s_lshl_b32 {s(T0)}, s3, 12")
    for i in range(4): e(f"s_add_u32 {s(MK+i)}, {s(T0)}, {i*16384}")
    srd(e, RA, PWR, 1024)
    e(f"s_lshl_b32 {s(T0)}, {s(SH)}, 19"); srd(e, SK, PK, 524288, s(T0)); srd(e, SV_, PV_, 524288, s(T0)); srd(e, SWS, PWS, WS_SIZE)
    e(f"v_lshlrev_b32 v7, 8, v6\nv_add_u32 {v(DKV+2)}, v7, v5\nv_xor_b32 {v(DKV+3)}, 128, {v(DKV+2)}")
    e("v_and_b32 v8, 1, v2\nv_lshlrev_b32 v8, 3, v8\nv_or_b32 v8, v8, v4\nv_xor_b32 v8, v8, v3\nv_lshlrev_b32 v8, 4, v8")
    e(f"v_add_u32 {v(DKV)}, v7, v8\nv_xor_b32 {v(DKV+1)}, 64, {v(DKV)}")
    e("v_lshrrev_b32 v8, 2, v3\nv_lshlrev_b32 v8, 3, v8\nv_and_b32 v9, 3, v3\nv_add_u32 v8, v8, v9\nv_lshlrev_b32 v8, 8, v8")
    e(f"v_xor_b32 v9, v4, v3\nv_lshlrev_b32 v9, 4, v9\nv_add_u32 {v(KA)}, v8, v9")
    for k in range(1, 4): e(f"v_xor_b32 {v(KA+k)}, {k << 6}, {v(KA)}")
    e("v_lshrrev_b32 v8, 2, v3\nv_lshlrev_b32 v9, 3, v4\nv_add_u32 v9, v9, v8\nv_lshlrev_b32 v9, 8, v9")
    e("v_lshlrev_b32 v8, 1, v8\nv_and_b32 v10, 1, v4\nv_lshlrev_b32 v10, 3, v10\nv_or_b32 v8, v8, v10")
    e("v_bfe_u32 v10, v1, 1, 1\nv_or_b32 v8, v8, v10\nv_lshlrev_b32 v8, 4, v8\nv_add_u32 v9, v9, v8")
    e(f"v_and_b32 v10, 1, v1\nv_lshlrev_b32 v10, 3, v10\nv_add_u32 v9, v9, v10\nv_add_u32 {v(VA)}, 65536, v9")
    for k in range(1, 8): e(f"v_xor_b32 {v(VA+k)}, {k << 5}, {v(VA)}")
    e(f"v_lshlrev_b32 v8, 6, v2\nv_xor_b32 {v(CSA)}, v8, {v(VA)}\nv_xor_b32 {v(CSA+1)}, 32, {v(CSA)}")
    e("v_lshlrev_b32 v8, 13, v2\nv_lshlrev_b32 v9, 7, v3\nv_add_u32 v8, v8, v9\nv_lshrrev_b32 v9, 1, v3\nv_xor_b32 v9, v9, v4\nv_lshlrev_b32 v9, 4, v9")
    e(f"v_add_u32 {v(XRA)}, v8, v9\nv_xor_b32 {v(XRA+1)}, 64, {v(XRA)}\nv_add_u32 {v(XRA+2)}, 131072, {v(XRA)}\nv_add_u32 {v(XRA+3)}, 131072, {v(XRA+1)}")
    e(f"v_lshlrev_b32 v8, 4, v4\nv_add_u32 {v(CSW+1)}, {L_CS}, v8\nv_lshlrev_b32 v9, 7, v2\nv_add_u32 {v(CSW)}, {v(CSW+1)}, v9")
    for i in range(4): e(f"v_mov_b32 {v(ONES+i)}, 0x3f803f80\nv_mov_b32 {v(LV+i)}, 0")
    e(f"v_and_b32 v8, 1, v4\nv_lshlrev_b32 v8, 2, v8\nv_xor_b32 v9, v8, v3\nv_lshlrev_b32 v9, 4, v9\nv_lshlrev_b32 v10, 12, v4\nv_add_u32 {v(WOV)}, v9, v10")
    e("v_lshrrev_b32 v9, 2, v3\nv_lshlrev_b32 v10, 10, v9\nv_lshrrev_b32 v9, 1, v9\nv_lshlrev_b32 v9, 3, v9\nv_or_b32 v8, v8, v9\nv_and_b32 v9, 3, v1\nv_lshlrev_b32 v11, 2, v2\nv_add_u32 v9, v9, v11\nv_xor_b32 v9, v9, v8")
    e(f"v_lshlrev_b32 v9, 4, v9\nv_lshlrev_b32 v11, 8, v4\nv_add3_u32 {v(TRB)}, v9, v10, v11")
    e(f"v_lshlrev_b32 v9, 10, v3\nv_lshlrev_b32 v10, 4, v4\nv_add_u32 {v(OUTV)}, v9, v10\nv_lshlrev_b32 {v(STV)}, 3, v3")
    e(f"v_mul_u32_u24 {v(TCH)}, 2752, v1")
    e(f"v_cmp_eq_u32 vcc, 0, v1\nv_mov_b32 v8, {FAR}\nv_mov_b32 v9, 0\nv_cndmask_b32 {v(Z0)}, v8, v9, vcc")
    stamp(e, grp=2)
    if not OPT['t1e']: touch(tks[1])
    for k, t in q_issue(1): e(t)
    e(f"s_lshl_b32 {s(T0)}, {s(SH)}, 3\ns_lshl_b32 {s(T1)}, s3, 1\ns_add_u32 {s(STS)}, {s(T0)}, {s(T1)}\ns_lshl_b32 {s(T0)}, {s(STS)}, 10")
    e(f"buffer_load_dwordx4 {v(RAW,4)}, {v(L16)}, {s(SX,4)}, {s(T0)} offen @@rows\nbuffer_load_dwordx4 {v(RAW+4,4)}, {v(L16)}, {s(SX,4)}, {s(T0)} offen offset:1024 @@rows")
    e(f"buffer_load_dwordx4 {v(RAW+8,4)}, {v(L16)}, {s(RA,4)}, 0 offen @@rows")
    if OPT['cw']:
        e(f"s_getpc_b64 {s(RC,2)}\nL_pc0:\ns_mov_b32 {s(RC+2)}, L_codeend-L_pc0\ns_mov_b32 {s(RC+3)}, 0x20000\ns_lshr_b32 {s(T0)}, s2, 3\ns_lshl_b32 {s(T0)}, {s(T0)}, 7\ns_cmp_eq_u32 s3, 0\ns_cselect_b32 {s(T0)}, {s(T0)}, {FAR}")
        e(f"buffer_load_dword {v(KEYR)}, {v(TCH)}, {s(RC,4)}, {s(T0)} offen @@cw")
    touch(tks[2])
    if OPT['q2e']:
        for k, t in q_issue(2): e(t)
    touch(tks[3])
    if OPT['tq']:
        e(f"s_and_b32 {s(T0)}, {s(SH)}, 3\ns_lshl_b32 {s(T0)}, {s(T0)}, 2\ns_add_u32 {s(T0)}, {s(T0)}, s3\ns_lshl_b32 {s(T0)}, {s(T0)}, 14")
        e(f"v_lshrrev_b32 v8, 2, v1\nv_lshlrev_b32 v8, 10, v8\nv_and_b32 v9, 3, v1\nv_lshlrev_b32 v9, 7, v9\nv_add_u32 v8, v8, v9")
        if OPT['tq'] & 2:
            e(f"v_lshlrev_b32 v9, 10, v1\nv_cmp_gt_u32 vcc, 16, v1\nv_mov_b32 v10, {FAR}\nv_cndmask_b32 v9, v10, v9, vcc")
            e(f"buffer_load_dword {v(KEYR+1)}, v9, {s(SX,4)}, {s(T0)} offen offset:384 @@tq")
        if OPT['tq'] & 4:
            e(f"s_lshl_b32 {s(T1)}, {s(SQB)}, 2\ns_add_u32 {s(T1)}, {s(T1)}, s3\ns_mul_i32 {s(T1)}, {s(T1)}, {10*8192}\ns_add_u32 {s(T1)}, {s(T1)}, {192*8192}")
            e(f"v_lshrrev_b32 v9, 1, v1\nv_lshlrev_b32 v9, 13, v9\nv_and_b32 v11, 1, v1\nv_lshlrev_b32 v11, 7, v11\nv_add_u32 v9, v9, v11\nv_cmp_gt_u32 vcc, 20, v1\nv_mov_b32 v10, {FAR}\nv_cndmask_b32 v9, v10, v9, vcc")
            e(f"buffer_load_dword {v(KEYR+2)}, v9, {s(SWQ,4)}, {s(T1)} offen @@tq")
        if OPT['tq'] & 1:
            e(f"buffer_load_dword {v(KEYR+3)}, v8, {s(SX,4)}, {s(T0)} offen offset:512 @@tq")
    tagc = f"s_mul_i32 {s(TAG)}, {s(EPO)}, 0x9e3779b1\ns_add_u32 {s(TAG)}, {s(TAG)}, 0x85ebca6b"
    if not OPT['epol']: e("s_waitcnt lgkmcnt(0)\n" + tagc)
    e(f"s_lshl_b32 {s(T0)}, {s(SQB)}, 8\ns_add_u32 {s(STS)}, {s(STS)}, {s(T0)}")
    e(f"s_lshl_b32 {s(SFS)}, {s(STS)}, 3\ns_add_u32 {s(SFS)}, {s(SFS)}, {WS_ST}")
    e(f"s_lshl_b32 {s(SKEY)}, {s(SQB)}, 11\ns_lshl_b32 {s(T1)}, s3, 9\ns_add_u32 {s(SKEY)}, {s(SKEY)}, {s(T1)}\ns_add_u32 {s(SKEY)}, {s(SKEY)}, {WS_ST}")
    NREP = OPT['nrep']
    e(f"s_lshl_b32 {s(T0)}, s2, 11\ns_lshl_b32 {s(T1)}, s3, 9\ns_add_u32 {s(T0)}, {s(T0)}, {s(T1)}\ns_add_u32 {s(T0)}, {s(T0)}, {WS_Y}\ns_lshl_b32 {s(T1)}, {s(MODE)}, 8\ns_add_u32 {s(T1)}, {s(T1)}, s2")
    e(f"s_cmp_lt_u32 {s(T1)}, {NREP}\ns_cselect_b32 {s(FD)}, {s(T0)}, {FAR}")
    stamp(e, grp=2)
    e("WAITVM q0\ns_barrier")
    stamp(e, grp=6)
    for t in q_reads(0): e(t)
    vq = Rec()
    vq(f"v_lshrrev_b32 {v(STT)}, 1, {v(L16)}\nbuffer_store_dwordx2 {v(LV,2)}, {v(STT)}, {s(SWS,4)}, {s(FD)} offen sc1")
    stats1(vq)
    vq(f"buffer_store_dwordx4 {v(STT,4)}, {v(Z0)}, {s(SWS,4)}, {s(SFS)} offen sc1")
    vq(f"v_and_b32 {v(RAW)}, 0xf0, {v(L16)}\nv_lshrrev_b32 {v(RAW)}, 1, {v(RAW)}")
    stats2(vq, STS)
    vq(f"v_mov_b32 {v(STM[0])}, s3\nv_lshlrev_b32 {v(STM[0])}, 2, {v(STM[0])}\nv_add_u32 {v(STM[0])}, {L_KEY}, {v(STM[0])}")
    stq_loads = [f"buffer_load_dwordx2 {v(STQ+2*i,2)}, {v(RAW)}, {s(SWS,4)}, {s(SKEY)} offen offset:{128*i} sc1 @@st" for i in range(4)]
    KX = RAW + 4
    for st in range(8):
        if st == 0: e("s_waitcnt lgkmcnt(0)" + ("\n" + tagc if OPT['epol'] else ""))
        elif st < 7: e(f"WAITVM q{st+1} lgkm\ns_barrier")
        else: e("s_waitcnt lgkmcnt(0)\ns_barrier")
        stamp(e, grp=(6 if st < 4 else 4))
        M = q_mfmas(st)
        if st + 3 < 8: dq = q_issue(st + 3)
        elif st == 5: dq = kv_issue('K', 0) + kv_issue('K', 1)
        elif st == 6:
            assert not vq, len(vq)
            dq = [('D', t) for t in stq_loads] + kv_issue('V', 0) + kv_issue('K', 2)
            vq(f"s_cmp_lt_u32 {s(SU)}, {NFFN}\ns_cselect_b32 {s(RA+2)}, {512*2752}, 0\ns_cselect_b32 {s(RC+2)}, {1376*1024}, 0")
            srd(vq, RA, PG, None); srd(vq, RC, PD, None)
            vq(f"s_mul_i32 {s(T0)}, s3, {128*2752}\ns_lshl_b32 {s(T1)}, {s(SU)}, 4\ns_add_u32 {s(FSO)}, {s(T0)}, {s(T1)}\ns_lshl_b32 {s(FSUM)}, {s(FSO)}, 1\ns_add_u32 {s(FSUM)}, {s(FSUM)}, {64*2752}")
            vq(f"s_lshl_b32 {s(FDO)}, {s(SU)}, 13\ns_lshl_b32 {s(T1)}, s3, 11\ns_add_u32 {s(FDO)}, {s(FDO)}, {s(T1)}\ns_add_u32 {s(FM0)}, {s(T1)}, {L_F}")
            vq(f"s_mov_b32 {s(FD)}, 1024\ns_mov_b32 {s(FW)}, s3")
            vq(f"v_mov_b32 {v(KX+4)}, {L_KEY}\nv_mov_b32 {v(KX+5)}, {s(TAG)}")
            srd(vq, SX, PWO, 4096 * 1024)
            vq(f"s_lshl_b32 {s(XSO)}, s2, 2\ns_add_u32 {s(XSO)}, {s(XSO)}, s3\ns_lshl_b32 {s(XSO)}, {s(XSO)}, 12\nv_lshlrev_b32 {v(DUM)}, 2, {v(L16)}")
            vq(f"s_lshr_b32 {s(SFS)}, s2, 3\ns_lshl_b32 {s(WSO)}, {s(SFS)}, 13\ns_lshl_b32 {s(SFS)}, {s(SFS)}, 7\ns_lshl_b32 {s(WSO)}, {s(WSO)}, 2\ns_lshl_b32 {s(T1)}, s3, 13\ns_add_u32 {s(WSO)}, {s(WSO)}, {s(T1)}\ns_lshl_b32 {s(T1)}, {s(SKS)}, 20\ns_add_u32 {s(WSO)}, {s(WSO)}, {s(T1)}")
        if st == 0:
            g = pack_gaps(OPT['q0bar'], [] if OPT['q2e'] else q_issue(2), [])
            g[OPT['q0bar']] = ["WAITVM q1", "s_barrier"]
            g = pack_gaps(len(M), dq, q_reads(1), start=OPT['q0bar'] + 1, lend=len(M) - 6, fixed=g)
        elif st < 7:
            g = pack_gaps(len(M), dq, q_reads(st + 1), vq, lend=len(M) - 8)
        else:
            assert not vq
            dq = kv_issue('V', 1)
            fixed = {8: [f"ds_write_b128 {v(CSW)}, {v(CSACC,4)}", f"ds_write_b128 {v(CSW)}, {v(CSACC+4,4)} offset:64"], 0: [f"ds_write_b32 {v(STM[0])}, {v(SA_[0])}"]}
            g = pack_gaps(22, dq, [], fixed=fixed)
            g[22] = ["WAITVM K0,K1 lgkm", "s_barrier"]
            lq = [f"ds_read_b128 {v(KX,4)}, {v(KX+4)}"] + [f"ds_read_b128 {v(CSV(db),4)}, {v(CSW+1)} offset:{64*db}" for db in range(8)] + k_reads(0, AV) + k_reads(1, AK)
            g = pack_gaps(len(M), [], lq, start=23, fixed=g)
            p = max(g) + 1
            g[p] = [f"s_lshl_b32 {s(T0)}, s2, 3", f"s_add_u32 {s(T0)}, {s(T0)}, {WS_KEY}"]
            g[p + 1] = ["s_waitcnt lgkmcnt(15)", f"v_max3_u32 {v(KX)}, {v(KX)}, {v(KX+1)}, {v(KX+2)}", f"v_max_u32 {v(KX+4)}, {v(KX)}, {v(KX+3)}"]
            g[p + 2] = [f"buffer_store_dwordx2 {v(KX+4,2)}, {v(Z0)}, {s(SWS,4)}, {s(T0)} offen sc1"]
            g = pack_gaps(len(M), kv_issue('K', 3) + kv_issue('V', 2), [], start=p + 3, fixed=g)
        show(f'Q{st}', g, len(M))
        e.weave(M, g)
    stamp(e, grp=5)
    e(f"s_mov_b32 {s(OFFK)}, {4*16384}\ns_mov_b32 {s(OFFV)}, {3*16384}")
    e(f"s_lshl_b32 {s(T0)}, {s(SCB)}, 8\ns_lshl_b32 {s(T1)}, s3, 14\ns_add_u32 {s(T0)}, {s(T0)}, {s(T1)}\ns_lshl_b32 {s(T1)}, {s(SKS)}, 20\ns_add_u32 {s(T0)}, {s(T0)}, {s(T1)}\ns_sub_u32 {s(SWO+2)}, {4096*1024}, {s(T0)}"); srd(e, SWO, PWO, None, s(T0))
    e("WAITVM st lgkm")
    spin_check(e, 'L_st', stq_loads, [STQ + 1, STQ + 3, STQ + 5, STQ + 7])
    for qb in range(4): e(f"v_lshlrev_b32 {v(STQ+2*qb+1)}, 16, {v(STQ+2*qb)}")
    for qb in range(4): e(f"v_rcp_f32 {v(STQ+2*qb+1)}, {v(STQ+2*qb+1)}\nv_and_b32 {v(STQ+2*qb)}, 0xffff0000, {v(STQ+2*qb)}")
    for qb in range(4): e(f"v_mul_f32 {v(STQ+2*qb+1)}, {fh(QSCALE)}, {v(STQ+2*qb+1)}")
    for qb in range(4):
        for db in range(8):
            b = qacc(db, qb)
            for r in range(4): e(f"v_fma_f32 {v(b+r)}, -{v(STQ+2*qb)}, {v(CSV(db)+r)}, {v(b+r)}")
        for db in range(8):
            b = qacc(db, qb)
            for r in range(4): e(f"v_mul_f32 {v(b+r)}, {v(b+r)}, {v(STQ+2*qb+1)}")
        for db in range(8):
            b = qacc(db, qb); f = QF + 16 * qb + 4 * (db >> 1) + 2 * (db & 1)
            e(f"v_cvt_pk_bf16_f32 {v(f)}, {v(b)}, {v(b+1)}\nv_cvt_pk_bf16_f32 {v(f+1)}, {v(b+2)}, {v(b+3)}")
        for sw in ('v_permlane32_swap_b32', 'v_permlane16_swap_b32'):
            for ksd in range(4):
                f = QF + 16 * qb + 4 * ksd
                e(f"{sw} {v(f)}, {v(f+2)}\n{sw} {v(f+1)}, {v(f+3)}")
    MT = LACC
    for qb in range(4): e(f"v_mov_b32 {v(MT+qb)}, 0xff800000")
    e(f"s_cmp_lg_u32 {s(MODE)}, 0\ns_cbranch_scc1 L_maxpass\nL_maxdone:")
    o = Rec()
    o(f"L_maxpass:\nv_lshrrev_b32 v64, 4, {v(L16)}\nv_and_b32 v65, 15, v64\nv_lshrrev_b32 v64, 4, v64\nv_lshlrev_b32 v65, 8, v65\nv_lshlrev_b32 v64, 4, v64\nv_add_u32 v64, v64, v65")
    o(f"s_mov_b32 {s(T0)}, 0\nL_maxloop:")
    for kb in range(4):
        if kb: o(f"s_add_u32 {s(T0)}, {s(T0)}, 4096")
        for ksd in range(4): o(f"buffer_load_dwordx4 {a(16*kb + 4*ksd, 4)}, v64, {s(SK,4)}, {s(T0)} offen offset:{64*ksd}")
    o(f"s_add_u32 {s(T0)}, {s(T0)}, 4096\ns_waitcnt vmcnt(0)")
    for qb in range(4):
        for kb in range(4):
            for m in qk_chain(S0, qb, kb, 0, '0'): o(m)
    o("s_nop 7\ns_nop 1")
    for qb in range(4):
        for i in range(0, 16, 2): o(f"v_max3_f32 {v(MT+qb)}, {v(MT+qb)}, {v(16*qb+i)}, {v(16*qb+i+1)}")
    o(f"s_cmp_lt_u32 {s(T0)}, 524288\ns_cbranch_scc1 L_maxloop\ns_branch L_maxdone")
    OOL.extend(o)
    stamp(e)
    for qb in range(4):
        for m in qk_chain(S0, qb, 0, AV, '0'): e(m)
    MXR = [S1 + i for i in range(4)]; TT = [S1 + 4 + i for i in range(4)]
    for qb in range(4):
        b = sgrp(S0, qb, 0)
        e(f"v_max3_f32 {v(MXR[qb])}, {v(b)}, {v(b+1)}, {v(b+2)}\nv_max3_f32 {v(MXR[qb])}, {v(MXR[qb])}, {v(b+3)}, {v(MT+qb)}")
    allreduce(e, MXR, TT, 'v_max_f32', dpp=())
    for qb in range(4):
        for i in range(4): e(f"v_xor_b32 {v(NEGM+4*qb+i)}, 0x80000000, {v(MXR[qb])}")
    for qb in range(4):
        b = sgrp(S0, qb, 0)
        for i in range(4): e(f"v_sub_f32 {v(b+i)}, {v(b+i)}, {v(MXR[qb])}")
    M = [m for qb in range(4) for kb in range(1, 4) for m in qk_chain(S0, qb, kb, AV)]
    std = lambda j: kv_issue('V', j + 4, True) + kv_issue('K', j + 5, True)
    smd = phaseB(Em(), 1, std(1)); tgt = (smd.e, smd.v)
    sm = SM(0)
    def early(ei):
        qb, kb = ei >> 4, (ei >> 2) & 3
        return 0 if kb == 0 else 12 * qb + 4 * (kb - 1) + 6
    g = fill(48, sm, [], 0, 1, elimit=tgt[0], eearly=early, futureL=len(sm.V) - tgt[1])
    for k, (kind, t) in enumerate(kv_issue('V', 3, True)): g[4 + 8 * k - (3 if kind == 'S' and k else 0)].insert(0 if kind == 'S' else 9, t)
    g[47] += ["WAITVM V0", "s_barrier"]
    show('P', g, 48)
    e.weave(M, g)
    while sm.e < tgt[0]: e(sm.popE())
    while sm.v < tgt[1]: e(sm.popV())
    warm = [[f"s_mov_b32 m0, {L_DUM}"], [f"buffer_load_dword {v(DUM)}, {s(SX,4)}, {s(XSO)} offen lds @@warm"]] if OPT['warm'] else None
    phaseA(e, 0, sm, "WAITVM K2,V1,K3,V2 lgkm", tail=warm)
    down = [('S', f"s_add_u32 m0, {s(FM0)}, 16384"), ('D', dma(L16, RC, s(FDO), 0, 'fw', OPT['ff'])), ('D', dma(L16, RC, s(FDO), 1024, 'fw', OPT['ff']))]
    sm = phaseB(e, 0, kv_issue('K', 4, True) + down + std(0), target=tgt)
    stamp(e)
    e(f"v_lshlrev_b32 {v(DUM)}, 3, {v(L16)}")
    e(f"s_lshl_b32 {s(T0)}, {s(SQB)}, 2\ns_add_u32 {s(T0)}, {s(T0)}, s3\ns_lshl_b32 {s(T0)}, {s(T0)}, 19\ns_lshl_b32 {s(T1)}, {s(SH)}, 14\ns_add_u32 {s(XSO)}, {s(T0)}, {s(T1)}")
    if OPT['cw']: e(f"s_getpc_b64 {s(RC,2)}\nL_pc1:\ns_mov_b32 {s(RC+2)}, L_codeend-L_pc1")
    e(f"s_mov_b32 {s(CNT)}, 0\n.p2align 6\nL_loop:")
    l0 = len(e.L)
    for j in range(1, 5):
        phaseA(e, j, sm, "s_waitcnt vmcnt(19) lgkmcnt(0)", ffn=j - 1)
        it = std(j)
        if j == 4:
            it = it[:2] + [('S', f"s_cmp_eq_u32 {s(CNT)}, 1"), ('S', f"s_cselect_b64 {s(RA,2)}, {s(PU,2)}, {s(RA,2)}")] + it[2:3] + \
                 [('S', f"s_sub_u32 {s(FSO)}, {s(FSUM)}, {s(FSO)}"), ('S', f"s_add_u32 {s(FM0)}, {s(FM0)}, {s(FD)}"), ('S', f"s_sub_u32 {s(FD)}, 8192, {s(FD)}")] + it[3:4]
            it2 = std(j)[4:]
            if OPT['cw']:
                it += [('S', f"s_cmp_ge_u32 {s(CNT)}, 3"), ('S', f"s_cselect_b64 {s(RA,2)}, {s(RC,2)}, {s(RA,2)}"), ('S', f"s_cselect_b32 {s(RA+2)}, {s(RC+2)}, {s(RA+2)}"), ('S', f"s_cselect_b32 {s(FSO)}, {s(SFS)}, {s(FSO)}"), ('S', f"s_cselect_b32 {s(FM0)}, {L_DUM}, {s(FM0)}")] + it2
            else:
                it += [('S', f"s_cmp_eq_u32 {s(CNT)}, 3"), ('S', f"s_cselect_b32 {s(FW)}, 99, {s(FW)}")] + it2
        sm = phaseB(e, j, it, target=tgt)
    e(f"s_add_u32 {s(CNT)}, {s(CNT)}, 1\ns_cmp_lt_u32 {s(CNT)}, 6\ns_cbranch_scc1 L_loop")
    loop = e.L[l0:]
    for p in check(loop + loop, 'loop'): print(p, file=sys.stderr)
    n = len(e.vm)
    for i in range(n - 36, n):
        t = e.vm[i]
        if t != 'fw': e.vm[i] = t[0] + str(int(t[1:]) + 20)
    stamp(e, grp=9)
    key_loads = [f"buffer_load_dwordx4 {v(KEYR+4*i,4)}, {v(L16)}, {s(SWS,4)}, {s(SKEY)} offen offset:{1024*i} sc1 @@key" for i in range(2)]
    for j in range(25, 30):
        tk = OPT['tl'].get(j); tail = None
        if tk == 'w': tail = [[f"s_mov_b32 m0, {L_DUM}", f"s_add_u32 {s(WSO)}, {s(WSO)}, {1 << 18}"], [f"buffer_load_dword {v(DUM)}, {s(SX,4)}, {s(WSO)} offen lds @@tch"]]
        if tk == 'w0': tail = [[f"s_mov_b32 m0, {L_DUM}"], [f"buffer_load_dword {v(DUM)}, {s(SX,4)}, {s(WSO)} offen lds @@tch"]]
        if tk == 'o': tail = [[f"s_mov_b32 m0, {L_DUM}", f"s_xor_b32 {s(XSO)}, {s(XSO)}, 8192"], [f"buffer_load_dword {v(DUM)}, {s(SWS,4)}, {s(XSO)} offen sc1 lds @@tch"]]
        phaseA(e, j, sm, f"WAITVM K{min(j+2,31)},V{j+1}{',key' if j == 27 else ''} lgkm", tail=tail)
        items = []; extra = {}; L = None
        if j == 25:
            items += [('S', f"s_mov_b32 {s(SKEY)}, {WS_KEY}")] + [('D', t) for t in key_loads]
        if j + 4 < 32: items += kv_issue('V', j + 4, True)
        if j + 5 < 32: items += kv_issue('K', j + 5, True)
        if j == 27:
            items += [('S', f"s_mov_b32 {s(OFFV)}, 0")] + wo_issue(0)
            extra[1] = [f"v_xor_b32 {v(WOV1)}, 128, {v(WOV)}"]
        if j in (28, 29): items += wo_issue(2 * j - 55) + wo_issue(2 * j - 54)
        if j == 29:
            items = [('S', f"s_lshl_b32 {s(XSO)}, {s(SRB)}, 2"), ('S', f"s_add_u32 {s(XSO)}, {s(XSO)}, {s(SKS)}"), ('S', f"s_lshl_b32 {s(XSO)}, {s(XSO)}, 5")] + items[:3] + [
              ('S', f"s_lshl_b32 {s(WSO)}, {s(XSO)}, 10"), ('S', f"s_lshl_b32 {s(T0)}, {s(SCB)}, 8"), ('S', f"s_add_u32 {s(WSO)}, {s(WSO)}, {s(T0)}")] + items[3:5] + [
              ('S', f"s_lshl_b32 {s(T0)}, s3, 6"), ('S', f"s_add_u32 {s(WSO)}, {s(WSO)}, {s(T0)}")] + items[5:9] + [
              ('S', f"s_lshl_b32 {s(SFS)}, {s(XSO)}, 3"), ('S', f"s_add_u32 {s(SFS)}, {s(SFS)}, {WS_ST}")] + items[9:]
        if j == 27:
            spin_check(e, 'L_key', key_loads, [KEYR + 1, KEYR + 3, KEYR + 5, KEYR + 7])
            r = Rec()
            r(f"v_max3_u32 {v(KEYR)}, {v(KEYR)}, {v(KEYR+2)}, {v(KEYR+4)}\nv_max_u32 {v(KEYR)}, {v(KEYR)}, {v(KEYR+6)}")
            allreduce(r, [KEYR], [KEYR + 1], 'v_max_u32')
            r(f"v_readfirstlane_b32 {s(SKEY)}, {v(KEYR)}")
            r(f"s_andn2_b32 {s(STS)}, 2047, {s(SKEY)}")
            srd(r, RA, PX, 2097152)
            r(f"s_lshl_b32 {s(T0)}, {s(STS)}, 10\ns_lshl_b32 {s(T1)}, {s(STS)}, 3\ns_add_u32 {s(T1)}, {s(T1)}, {WS_ST}")
            r(f"v_mov_b32 {v(KEYR+6)}, 0\nv_bfe_u32 {v(KEYR+7)}, {v(L16)}, 4, 3\nv_lshlrev_b32 {v(KEYR+7)}, 3, {v(KEYR+7)}")
            r(f"buffer_load_dwordx4 {v(KEYR,4)}, {v(L16)}, {s(RA,4)}, {s(T0)} offen @@xs")
            r(f"buffer_load_dwordx2 {v(KEYR+4,2)}, {v(KEYR+6)}, {s(SWS,4)}, {s(T1)} offen sc1 @@xs")
            r(f"s_lshl_b32 {s(T1)}, {s(SCB)}, 8\ns_add_u32 {s(T0)}, {s(T0)}, {s(T1)}\ns_lshl_b32 {s(T1)}, s3, 6\ns_add_u32 {s(T0)}, {s(T0)}, {s(T1)}")
            r(f"buffer_load_dwordx2 {v(KEYR+6,2)}, {v(KEYR+7)}, {s(RA,4)}, {s(T0)} offen @@xs")
            for k, t in enumerate(r): extra[2 + 2 * k] = [t]
        sm = phaseB(e, j, items, L=L, target=tgt, extra=extra)
        stamp(e, grp=8)
    flat = lambda its: [t for _, t in its]
    def level2(n, Y, yend, X1, X2, bar, wait):
        cy = sum(map(cost, Y)); k = 0; acc_ = 0
        while k < len(Y) and acc_ + cost(Y[k]) / 2 <= cy * (bar + 1) / yend: acc_ += cost(Y[k]); k += 1
        g = level(bar + 1, Y[:k], X1, min(bar + 1, yend))
        g[bar] += wait + ["s_barrier"]
        g2 = level(n - bar - 1, Y[k:], X2, max(1, yend - bar - 1))
        for p, x in g2.items(): g[p + bar + 1] = x
        return g
    phaseA(e, 30, sm, "WAITVM K31,V31,w0,w1,w2,w3 lgkm")
    M, st = pv_mfmas(30)
    sm = SM(31)
    Y = sm_flat(sm, OPT['e30'])
    X1 = [f"v_add_u32 {v(TRW['V'])}, 65536, {v(TRB)}"] + riffle(flat(wo_issue(5)) + flat(wo_issue(6)), wo_reads(0) + wo_reads(1) + wo_reads(2) + wo_reads(3))
    X2 = riffle(sum((flat(wo_issue(n)) for n in range(7, 11)), []), v_reads(31, AK))
    g = level2(NB, Y, NB - 1, X1, X2, OPT['b30bar'], ["WAITLG r3"])
    g[NB - 1] += ["WAITVM w7 lgkm", "s_barrier"]
    show('B30', g, NB)
    e.weave(M, g)
    stamp(e, grp=8)
    XR, GP, FST = 220, 208, (234, 230)
    WSO2, F3W, PSO, PRD, F3R, F2W, F2R, YSO, SM8, GO, ROUT = 12, 13, 16, 19, 44, 45, 46, 47, MK + 3, RA, SWO
    M, st = pv_mfmas(31, src=AK, ksmajor=(3,))
    Y = sm_flat(sm, 64)
    assert sm.remE() == 0 and sm.remV() == 0
    ex = [f"s_add_u32 {s(WSO2)}, {s(WSO)}, 16384",
          f"buffer_load_dwordx4 {v(XR,4)}, {v(OUTV)}, {s(RA,4)}, {s(WSO)} offen @@ex", f"buffer_load_dwordx4 {v(XR+4,4)}, {v(OUTV)}, {s(RA,4)}, {s(WSO2)} offen @@ex",
          f"buffer_load_dwordx2 {v(FST[0],2)}, {v(STV)}, {s(SWS,4)}, {s(SFS)} offen sc1 @@ex", f"buffer_load_dwordx2 {v(FST[1],2)}, {v(STV)}, {s(SWS,4)}, {s(SFS)} offen offset:128 sc1 @@ex"]
    X1 = riffle(flat(wo_issue(11)) + ex, wo_reads(4) + wo_reads(5) + wo_reads(6) + wo_reads(7))
    X2 = sum((flat(wo_issue(n)) for n in range(12, 16 - OPT['late'])), [])
    assert OPT['late'] >= 2
    g = level2(NB, Y, OPT['y31'], X1, X2, OPT['b31bar'], ["WAITVM w11", "WAITLG r7"])
    for p, its in g.items():
        for t in its:
            if 'cvt_pk' in t:
                r = int(t.split()[1].strip('v,')) - S1
                assert p < st[(r >> 4, (r >> 3) & 1)] - 1, (t, p, st)
    show('B31', g, NB)
    e.weave(M, g)
    stamp(e, grp=9)
    ZB, IL, TT = 196, 200, [204 + i for i in range(4)]; CHK = 204
    OSO = [OFFK, MX, MX + 1, MX + 2]
    vq_ = [q for q in range(4) if q not in OPT['msum']]
    if vq_: allreduce(e, [LV + q for q in vq_], [TT[q] for q in vq_], dpp=())
    e(f"s_lshl_b32 {s(T0)}, {s(SQB)}, 2\ns_add_u32 {s(T0)}, {s(T0)}, s3\ns_lshl_b32 {s(T0)}, {s(T0)}, 19\ns_lshl_b32 {s(T1)}, {s(SH)}, 12\ns_add_u32 {s(OSO[0])}, {s(T0)}, {s(T1)}")
    e(f"s_mov_b32 {s(T1)}, {fh(OPT['lthr'])}")
    for q in range(4): e(f"v_rcp_f32 {v(IL+q)}, {v(LV + q if q in vq_ else lacc(q))}")
    for q in range(4): e(f"v_cmp_nlt_f32 {s(RB + 2*q, 2)}, {v(LV + q if q in vq_ else lacc(q))}, {s(T1)}")
    for q in range(4): e(f"v_mov_b32 {v(ZB+q)}, 0")
    for q in range(1, 4): e(f"s_add_u32 {s(OSO[q])}, {s(OSO[0])}, {131072*q}")
    e(f"s_or_b64 {s(RB,2)}, {s(RB,2)}, {s(RB+2,2)}\ns_or_b64 {s(RB+4,2)}, {s(RB+4,2)}, {s(RB+6,2)}\ns_or_b64 {s(RB,2)}, {s(RB,2)}, {s(RB+4,2)}")
    ost = lambda q, t: f"buffer_store_dwordx4 {v(S0 + 16*q + 4*t, 4)}, {v(L16)}, {s(SWS,4)}, {s(OSO[q])} offen offset:{1024*t} sc1 @@o"
    U = S1
    def u(i, n=1): return v(U + i, n)
    side = [(0, t) for n in range(8, 12) for t in wo_reads(n)]
    sa = Rec(); sb = Rec(); X0, X1_ = 48, 49
    sa(f"s_lshl_b32 {s(SM8)}, {s(SKS)}, 3\ns_add_u32 {s(SM8)}, {s(SM8)}, s3\ns_lshl_b32 {s(SM8)}, {s(SM8)}, 12")
    for i in range(4): sa(f"s_add_u32 {s(T1)}, {s(SKS)}, {i + 1}\ns_and_b32 {s(T1)}, {s(T1)}, 3\ns_lshl_b32 {s(GO+i)}, {s(T1)}, 18\ns_add_u32 {s(GO+i)}, {s(GO+i)}, {s(SM8)}")
    sa(f"s_lshl_b32 {s(SM8)}, s3, 13")
    sa(f"s_lshl_b32 {s(T0)}, {s(SRB)}, 20"); srd(sa, SX, PWS, 1 << 20, s(T0))
    sa(f"s_lshl_b32 {s(T0)}, {s(SQB)}, 5\ns_add_u32 {s(T1)}, {s(T0)}, {s(SH)}\ns_lshl_b32 {s(T1)}, {s(T1)}, 2\ns_add_u32 {s(T1)}, {s(T1)}, {WS_FLAG}\ns_cmp_eq_u32 s3, 0\ns_cselect_b32 {s(SFS)}, {s(T1)}, {FAR}")
    sa(f"s_lshl_b32 {s(T1)}, {s(SKS)}, 3\ns_add_u32 {s(T0)}, {s(T0)}, {s(T1)}\ns_lshl_b32 {s(T0)}, {s(T0)}, 2\ns_add_u32 {s(MK+1)}, {s(T0)}, {WS_FLAG}")
    sb(f"s_and_b32 {s(X0)}, s2, {NREP - 1}\ns_lshl_b32 {s(X0)}, {s(X0)}, 11\ns_lshl_b32 {s(X1_)}, s3, 9\ns_add_u32 {s(X0)}, {s(X0)}, {s(X1_)}\ns_add_u32 {s(YSO)}, {s(X0)}, {WS_Y}")
    sb(f"s_lshl_b32 {s(X0)}, s3, 8\ns_add_u32 {s(X0)}, {s(X0)}, {s(SU)}\ns_lshl_b32 {s(X0)}, {s(X0)}, 2\ns_add_u32 {s(F2W)}, {s(X0)}, {WS_FLAG2}")
    sb(f"s_cmp_lt_u32 {s(SU)}, {NFFN}\ns_cselect_b32 {s(YSO)}, {s(YSO)}, {FAR}\ns_cselect_b32 {s(F2W)}, {s(F2W)}, {FAR}")
    sc = Rec()
    sa(f"s_lshl_b32 {s(T0)}, {s(SRB)}, 2\ns_add_u32 {s(T0)}, {s(T0)}, {s(SCB)}\ns_lshl_b32 {s(T0)}, {s(T0)}, 2")
    for i in range(4):
        sa(f"s_lshr_b32 {s(T1)}, {s(GO+i)}, 18\ns_add_u32 {s(T1)}, {s(T1)}, {s(T0)}")
        sa(f"s_mul_i32 {s(PSO+i)}, {s(T1)}, 49152\ns_add_u32 {s(PSO+i)}, {s(PSO+i)}, {s(MK)}\ns_add_u32 {s(PSO+i)}, {s(PSO+i)}, {WS_P + 16384*(i % 3)}")
    assert PRD == PSO + 3
    TB, SELA, SELB, PRS = [TAG, 13, 14, 15], 44, 50, [PRD, 60, 61]
    for k in range(1, 4): sc(f"s_lshr_b32 {s(TB[k])}, {s(TAG)}, {8*k}")
    sc(f"s_mov_b32 {s(SELA)}, 0x0c0c0400\ns_mov_b32 {s(SELB)}, 0x05040100\ns_add_u32 {s(PRS[1])}, {s(PRD)}, 16384\ns_add_u32 {s(PRS[2])}, {s(PRD)}, 32768")
    sc(f"s_lshl_b32 {s(X0)}, {s(SCB)}, 10\ns_add_u32 {s(F2R)}, {s(X0)}, {WS_FLAG2}")
    sc(f"s_lshl_b32 {s(X0)}, {s(SCB)}, 9\ns_lshl_b32 {s(X1_)}, s3, 7\ns_add_u32 {s(X0)}, {s(X0)}, {s(X1_)}\ns_add_u32 {s(MK+2)}, {s(X0)}, {WS_Y}")
    srd(sc, ROUT, POUT, 2097152)
    per = OPT['sideA']
    def pop(step, cnt):
        while cnt > 0 and side and side[0][0] <= step:
            t = side.pop(0)[1]; e(t)
            if cost(t) > 1: cnt -= 1
    pend = None
    for q in range(4):
        for t in range(4):
            step = 4 * q + t; b = U + (step & 7) * 8; d = S0 + 4 * step
            for i in range(8): e(f"v_accvgpr_read_b32 {v(b+i)}, {a(AO + 4*(8*q + 2*t) + i)}")
            if pend: e(pend)
            pop(step, per)
            for i in range(8): e(f"v_mul_f32 {v(b+i)}, {v(b+i)}, {v(IL+q)}")
            pop(step, per)
            for i in range(4): e(f"v_cvt_pk_bf16_f32 {v(d+i)}, {v(b+2*i)}, {v(b+2*i+1)}")
            e(ost(q, t))
            pop(step, per - 1)
            pend = f"{MF} {v(CHK,4)}, {v(ZB,4)}, {v(d,4)}, {'0' if step == 0 else v(CHK,4)}"
    e(pend)
    pop(99, 999)
    stamp(e)
    G, TG = U + 16, U + 32
    g_ = e
    e("WAITVM ex,xs,fw")
    for r in FST: g_(f"v_lshlrev_b32 {v(r+1)}, 16, {v(r)}\nv_and_b32 {v(r)}, 0xffff0000, {v(r)}\nv_rcp_f32 {v(r+1)}, {v(r+1)}")
    e(f"s_lshl_b32 {s(T1)}, s3, 2\ns_add_u32 {s(T1)}, {s(T1)}, {L_FAIL}\nv_mov_b32 {u(1)}, {s(T1)}")
    e(f"v_cmp_u_f32 vcc, {v(CHK)}, {v(CHK)}\ns_or_b64 vcc, vcc, {s(RB,2)}\ns_cmp_lg_u64 vcc, 0\ns_cselect_b32 {s(T0)}, 1, 0\ns_andn2_b32 {s(T0)}, {s(T0)}, {s(MODE)}")
    e(f"v_mov_b32 {u(0)}, {s(T0)}\nds_write_b32 {u(1)}, {u(0)}")
    for j in range(8): unpack(g_, G + 2 * j, XR + j)
    for j in range(16): g_(f"v_sub_f32 {v(G+j)}, {v(G+j)}, {v(FST[j >> 3])}")
    bfrn(g_, G, 16)
    for j in range(16): g_(f"v_mul_f32 {v(G+j)}, {v(G+j)}, {v(FST[j >> 3]+1)}")
    bfrn(g_, G, 16)
    silun(g_, G, TG, 16)
    for j in range(8): g_(f"v_cvt_pk_bf16_f32 {v(GP+j)}, {v(G+2*j)}, {v(G+2*j+1)}")
    PA, PR, TGV, ZV, LH, LH2 = 192, 193, 194, 233, 228, 195
    e(f"v_mov_b32 {u(3)}, {L_FAIL}\nv_mov_b32 {v(TGV)}, {s(TAG)}\nv_bfe_u32 {v(PA)}, {v(L16)}, 4, 3\nv_lshlrev_b32 {v(PA)}, 2, {v(PA)}\nv_mov_b32 {v(ZV)}, 0xff\nv_add_u32 {v(LH)}, 65536, {v(L16)}\nv_add_u32 {v(LH2)}, 131072, {v(L16)}")
    for t in sa: e(t)
    f_ = Rec()
    XS, SS, XC, XN4 = KEYR, KEYR + 4, KEYR + 6, 216
    FA, FB = 64, 96
    f_(f"v_lshrrev_b32 {u(18)}, 4, {v(L16)}\nv_lshrrev_b32 {u(19)}, 4, {u(18)}\nv_lshlrev_b32 {u(19)}, 3, {u(19)}\nv_bfe_u32 {u(20)}, {u(18)}, 2, 2\nv_add_u32 {u(19)}, {u(19)}, {u(20)}\nv_lshlrev_b32 {u(19)}, 4, {u(19)}")
    f_(f"v_and_b32 {u(20)}, 1, {u(18)}\nv_lshlrev_b32 {u(20)}, 3, {u(20)}\nv_add_u32 {u(19)}, {u(19)}, {u(20)}\nv_bfe_u32 {u(20)}, {u(18)}, 1, 1\nv_lshlrev_b32 {u(20)}, 13, {u(20)}\nv_add_u32 {u(19)}, {u(19)}, {u(20)}\nv_add_u32 {u(19)}, {L_F}, {u(19)}")
    f_(f"v_lshlrev_b32 {v(SS+1)}, 16, {v(SS)}\nv_and_b32 {v(SS)}, 0xffff0000, {v(SS)}\nv_rcp_f32 {v(SS+1)}, {v(SS+1)}")
    fra = lambda h: [f"ds_read_b64_tr_b16 {a(FA+4*kk+2*jh,2)}, {u(19)} offset:{512*(8*h+kk) + 64*jh} @@fa{h}" for kk in range(8) for jh in range(2)]
    frb = lambda h: [f"ds_read_b128 {a(FB+4*kk,4)}, {u(17)} offset:{64*(8*h+kk)} @@fb{h}" for kk in range(8)]
    fr = fra(0)
    x_ = Rec()
    for j in range(4): unpack(x_, U + 2 * j, XS + j)
    for j in range(2): unpack(x_, U + 8 + 2 * j, XC + j)
    for j in range(12): x_(f"v_sub_f32 {u(j)}, {u(j)}, {v(SS)}")
    bfrn(x_, U, 12)
    for j in range(12): x_(f"v_mul_f32 {u(j)}, {u(j)}, {v(SS+1)}")
    for j in range(4): x_(f"v_cvt_pk_bf16_f32 {u(12+j)}, {u(2*j)}, {u(2*j+1)}")
    x_(f"v_mov_b32 {u(21)}, {s(MK)}\nv_lshrrev_b32 {u(21)}, 2, {u(21)}\nv_add_u32 {u(21)}, {L_F + 24576}, {u(21)}\nv_add_u32 {u(16)}, {u(21)}, {v(L16)}")
    while x_ or fr:
        if x_: f_(x_.pop(0))
        if x_: f_(x_.pop(0))
        if fr: f_(fr.pop(0))
    f_(f"ds_write_b128 {u(16)}, {u(12,4)}")
    f_(f"v_lshrrev_b32 {u(17)}, 8, {v(L16)}\nv_lshlrev_b32 {u(17)}, 4, {u(17)}\nv_add_u32 {u(17)}, {u(21)}, {u(17)}")
    for t in frb(0): f_(t)
    for j in range(2): f_(f"v_cvt_pk_bf16_f32 {u(8+2*j)}, {u(8+2*j)}, {u(9+2*j)}")
    for j in range(2): unpack(f_, XN4 + 2 * j, U + 8 + 2 * j)
    f_(f"v_lshlrev_b32 {u(18)}, 1, {u(18)}\nv_mov_b32 {u(21)}, {s(MK)}\nv_lshrrev_b32 {u(21)}, 4, {u(21)}\nv_add_u32 {u(21)}, {L_F + 16384}, {u(21)}\nv_add_u32 {u(18)}, {u(21)}, {u(18)}")
    for f in range(16): f_(f"v_mov_b32 {u(40+f)}, 0")
    for f in range(8):
        for h in range(2): f_(f"ds_read_u16_d16_hi {u(40+2*f+h)}, {u(18)} offset:{1024*f + 128*h} @@fd")
    f_(f"v_lshrrev_b32 {u(30)}, 2, {v(L16)}")
    f_("WAITLG fb0")
    h1 = [t for kk in range(8) for t in fra(1)[2*kk:2*kk+2] + frb(1)[kk:kk+1]]
    for kk in range(8):
        f_(f"{MF} {u(20 + 4*(kk&1), 4)}, {a(FA+4*kk,4)}, {a(FB+4*kk,4)}, {'0' if kk < 2 else u(20 + 4*(kk&1), 4)}")
        if kk:
            for t in h1[3*(kk-1):3*kk]: f_(t)
    f_("s_nop 1")
    for t in h1[21:]: f_(t)
    fs0 = len(f_)
    f_("s_waitcnt lgkmcnt(0)")
    for kk in range(8): f_(f"{MF} {u(20 + 4*(kk&1), 4)}, {a(FA+4*kk,4)}, {a(FB+4*kk,4)}, {u(20 + 4*(kk&1), 4)}")
    for r in range(4): f_(f"v_add_f32 {u(20+r)}, {u(20+r)}, {u(24+r)}")
    bfrn(f_, U + 20, 4)
    for r in range(4): f_(f"v_mov_b32 {u(24+r)}, {u(20+r)}")
    for r in range(4): f_(f"v_permlane32_swap_b32 {u(20+r)}, {u(24+r)}")
    silun(f_, U + 20, U + 32, 4); bfrn(f_, U + 20, 4)
    for r in range(4): f_(f"v_mul_f32 {u(20+r)}, {u(20+r)}, {u(24+r)}")
    bfrn(f_, U + 20, 4)
    for f in range(8): f_(f"v_readlane_b32 {s(RB+f)}, {u(20+(f&3))}, {16*(f>>2)}")
    for f in range(8):
        for h in range(2): f_(f"{'v_mul_f32' if f == 0 else 'v_fmac_f32'} {u(28+h)}, {s(RB+f)}, {u(40+2*f+h)}")
    for h in range(2): f_(f"buffer_atomic_add_f32 {u(28+h)}, {u(30)}, {s(SWS,4)}, {s(YSO)} offen offset:{256*h} @@ys")
    f0 = OPT['fpre']; f1 = fs0 + OPT['fsplit']
    for t in f_[:f0]: e(t)
    e(f"WAITVM o lgkm\ns_barrier\nds_read_b128 {u(4,4) if f0 == 0 else v(ZB,4)}, {u(3) if f0 == 0 else v(PR)}")
    FR = U + 4 if f0 == 0 else ZB
    e(f"s_waitcnt lgkmcnt(0)\nv_or3_b32 {v(FR)}, {v(FR)}, {v(FR+1)}, {v(FR+2)}\nv_or_b32 {v(FR)}, {v(FR)}, {v(FR+3)}\nv_readfirstlane_b32 {s(T1)}, {v(FR)}\ns_cmp_lg_u32 {s(T1)}, 0\ns_cbranch_scc1 L_fail")
    e(f"buffer_store_dword {v(TGV)}, {v(Z0)}, {s(SWS,4)}, {s(SFS)} offen sc1")
    OOL.extend(f"L_fail:\ns_mov_b32 {s(MODE)}, 1\ns_waitcnt vmcnt(0)\ns_barrier\ns_branch L_restart".split('\n'))
    stamp(e)
    poll = [f"buffer_load_dword {v(PR)}, {v(PA)}, {s(SWS,4)}, {s(MK+1)} offen sc1 @@poll"]
    for t in sb: e(t)
    D = sum((flat(wo_issue(n)) for n in range(16 - OPT['late'], 16)), [])
    k = [i for i, t in enumerate(D) if t.startswith('buffer')]
    k = k[OPT['pollat'] - 1] + 1 if OPT['pollat'] else 0
    D = D[:k] + poll + D[k:]
    for t in riffle(D, f_[f0:f1]): e(t)
    e("WAITVM poll")
    spin_check(e, 'L_poll', poll, [PR])
    stamp(e)
    OSL = [0, 32768, 131072, 65536, 98304]
    def odma(sg):
        it = []
        for rb in range(2):
            it += [('S', f"s_add_u32 m0, {s(SM8)}, {OSL[sg % 5] + 4096*rb}"), ('S', f"s_add_u32 {s(T0 + rb)}, {s(GO + (sg >> 1))}, {16384*(sg & 1) + 131072*rb}")]
            it += [('D', dma(L16, SX, s(T0 + rb), 1024 * t, f"s{sg}", OPT['fo'])) for t in range(4)]
        return it
    rest = f_[f1:]
    D = flat(odma(0)) + flat(odma(1))
    k = 0
    for t in D:
        e(t)
        if t.startswith('buffer'):
            k += 1
            if k > OPT['dlead']:
                for _ in range(OPT['perF']):
                    if rest: e(rest.pop(0))
    for t in rest: e(t)
    def ring(m): return 16 * (m % 3)
    def breads(m):
        sg, hw, rb = m >> 3, (m >> 1) & 3, m & 1
        off = OSL[sg % 5] + 8192 * hw + 4096 * rb
        return [f"ds_read_b128 {v(ring(m) + 4*t, 4)}, {v((L16, LH, LH2)[off >> 16])} offset:{(off & 65535) + 1024*t} @@b{m}" for t in range(4)]
    def accr(i, rb, nb): return (48 if i == 3 else 64 + 16 * i) + 8 * rb + 4 * nb
    def acc(i, rb, nb): return v(accr(i, rb, nb), 4)
    e("WAITVM s0\ns_barrier")
    for t in breads(0) + breads(1): e(t)
    e(f"s_lshr_b32 {s(T0)}, {s(STS)}, 5\ns_lshr_b32 {s(T1)}, {s(XSO)}, 5\ns_cmp_eq_u32 {s(T0)}, {s(T1)}\ns_cselect_b32 {s(RB)}, -1, 0\ns_cselect_b32 {s(RB+1)}, 0x7ff, 0")
    e("WAITLG b0")
    stamp(e, grp=17)
    M = []; g = {p: [] for p in range(512)}; used = {p: 0 for p in range(512)}
    def put(p, t, c=None):
        g[p].append(t); used[p] += cost(t) if c is None else c
    for m in range(64):
        sg, hw, rb = m >> 3, (m >> 1) & 3, m & 1
        i, half = sg >> 1, sg & 1
        for nb in range(2):
            for t in range(4):
                d = acc(i, rb, nb)
                M.append(f"{MF} {d}, {wreg(8*half + 2*hw + (t >> 1), 8*(t & 1) + 4*nb, 4)}, {v(ring(m) + 4*t, 4)}, {'0' if (half == 0 and hw == 0 and t == 0) else d}")
        p = 8 * m
        if m + 2 < 64:
            if (m + 2) % 8 == 0:
                if OPT.get('stamp', 0) & 16: put(p, lambda e: stamp(e, grp=16), 8)
                put(p, f"WAITVM s{(m + 2) >> 3} lgkm"); put(p, "s_barrier", 0)
            for k, t in enumerate(breads(m + 2)): put(p + OPT['rstep'] * k, t)
        if m + 1 < 64: put(8 * m + 7, f"WAITLG b{m+1}", 0)
    def place(items, p):
        for t in items:
            c = 8 if callable(t) else cost(t)
            if c == 1: c = 0
            if c > 1:
                while p < 512 and used[p] + c > 8: p += 1
            if p < 512: put(p, t, c)
            else: over.append(t)
        return p
    over = []
    def paced(items, p, step):
        for t in items:
            p = place([t], int(p + 0.5)) + (p - int(p + 0.5))
            if t.startswith('buffer'): p += step
        return p
    for i in (2, 1, 0):
        p = 0
        for rb in range(2):
            for nb in range(2):
                r = accr(i, rb, nb)
                p = max(p, 8 * (16 * i + 14 + rb) + 4 * nb + 6, 8 * OPT['pat'][i])
                p = place([f"v_bfi_b32 {v(r+k)}, {v(ZV)}, {s(TB[k])}, {v(r+k)}" for k in range(4)], p)
                p = place([f"buffer_store_dwordx4 {v(r,4)}, {v(L16)}, {s(SWS,4)}, {s(PSO+i)} offen offset:{1024*(2*rb + nb)} sc1 @@p{i}"], p) + OPT['pstep']
    p = paced(flat(odma(2)), OPT['d2at'], OPT['dstep'])
    q = place(sum((wo_reads(n) for n in range(12, 16)), []), 0)
    assert q < 48, q
    place(["WAITVM ys", f"buffer_store_dword {v(TGV)}, {v(Z0)}, {s(SWS,4)}, {s(F2W)} offen sc1"], 8 * OPT['f2at'] + 4)
    for sg in range(3, 8): p = paced(flat(odma(sg)), max(p, 8 * (8 * max(0, sg - 5) + 6) + 1), OPT['dstep'])
    assert p - OPT['dstep'] < 8 * min(OPT['padd'], OPT['ychk']), p
    q = 48
    for t in sc:
        while used[q] + 4 > 8: q += 1
        put(q, t, 4)
    assert q < 8 * 14, q
    YR, YT, RS, BA = KEYR, KEYR + 4, 230, 231
    f2l = [f"buffer_load_dwordx4 {v(YR,4)}, {v(L16)}, {s(SWS,4)}, {s(F2R)} offen sc1 @@f2"]
    yc = OPT['ychk']
    pre = Rec()
    pre(f"s_and_b32 {s(RB+2)}, {s(SKEY)}, 0xffff0000\ns_xor_b32 {s(RB+3)}, {s(RB+2)}, 0x80000000\ns_xor_b32 {s(RC)}, {s(RB+2)}, 0xffff0000\ns_bitcmp1_b32 {s(RB+2)}, 31\ns_cselect_b32 {s(RB+2)}, {s(RB+3)}, {s(RC)}")
    pre(f"v_mov_b32 {v(RS)}, {s(RB+2)}\nv_mul_f32 {v(RS)}, {fh(-LOG2E)}, {v(RS)}\nv_exp_f32 {v(RS)}, {v(RS)}\nv_lshrrev_b32 {v(BA)}, 8, {v(L16)}\nv_add_f32 {v(RS)}, 1.0, {v(RS)}\nv_rcp_f32 {v(RS)}, {v(RS)}\nv_lshlrev_b32 {v(BA)}, 3, {v(BA)}")
    bfr1(pre, RS)
    pre(f"v_lshrrev_b32 {v(PA)}, 7, {v(L16)}\nv_lshlrev_b32 {v(PA)}, 11, {v(PA)}\nv_and_b32 {v(PR)}, 0x70, {v(L16)}\nv_add_u32 {v(PA)}, {v(PA)}, {v(PR)}\nv_bfe_u32 {v(PR)}, {v(L16)}, 4, 4")
    GF, XF, PB = 112, 196, 64
    for j in range(8): unpack(pre, GF + 2 * j, XR + j)
    place(list(pre), 8 * 20)
    place(f2l, 8 * (yc - OPT['ylead']) + 4)
    place(["WAITVM f2", lambda e: spin_check(e, 'L_f2', f2l, [YR, YR + 1, YR + 2, YR + 3], cond_sgpr=RB),
           f"buffer_load_dwordx4 {v(YR,4)}, {v(PA)}, {s(SWS,4)}, {s(MK+2)} offen sc1 @@y"], 8 * yc + 4)
    pc = OPT['pchk']; pe = OPT['pearly']
    pld = lambda i: [f"buffer_load_dwordx4 {v(PB + 16*i + 4*j, 4)}, {v(L16)}, {s(SWS,4)}, {s(PRS[i])} offen offset:{1024*j} sc1 @@q{i}" for j in range(4)]
    TG8, TT2 = 196, 204
    def tags(i):
        r = Rec()
        for j in range(4):
            b = PB + 16 * i + 4 * j; t = TT2 + 2 * (j & 1)
            r(f"v_perm_b32 {v(t)}, {v(b+1)}, {v(b)}, {s(SELA)}\nv_perm_b32 {v(t+1)}, {v(b+3)}, {v(b+2)}, {s(SELA)}\nv_perm_b32 {v(TG8 + 4*(i & 1) + j)}, {v(t+1)}, {v(t)}, {s(SELB)}")
        return list(r)
    strip = lambda i: [f"v_and_b32 {v(PB + 16*i + j)}, 0xffffff00, {v(PB + 16*i + j)}" for j in range(16)]
    paced(pld(0) + pld(1), 8 * pe, OPT['qstep'])
    p = place(["WAITVM q1"] + tags(0) + tags(1) + [lambda e: spin_check(e, 'L_p01', pld(0) + pld(1), list(range(TG8, TG8 + 8)), pre=tags(0) + tags(1))], 8 * OPT['padd'])
    p = place(strip(0) + strip(1) + [f"v_add_f32 {v(PB+j)}, {v(PB+j)}, {v(PB+16+j)}" for j in range(16)], p)
    paced(pld(2), 8 * pc, 1)
    y_ = Rec()
    y_("WAITVM y")
    allreduce(y_, [YR + r for r in range(4)], [YT + r for r in range(4)], dpp=(8,))
    bfrn(y_, YR, 4)
    for r in range(4): y_(f"v_mul_f32 {v(YR+r)}, {v(YR+r)}, {v(RS)}")
    bfrn(y_, YR, 4)
    for r in range(4): y_(f"v_add_f32 {v(YR+r)}, {v(YR+r)}, {v(XN4+r)}")
    bfrn(y_, YR, 4)
    silun(y_, YR, YT, 4)
    y_(f"v_cvt_pk_bf16_f32 {v(YR)}, {v(YR)}, {v(YR+1)}\nv_cvt_pk_bf16_f32 {v(YR+1)}, {v(YR+2)}, {v(YR+3)}")
    for j in range(4): y_(f"ds_bpermute_b32 {v(YT+j)}, {v(BA)}, {v(YR + (j & 1))} offset:{4*(j >> 1)} @@bp")
    y_(f"s_sub_u32 {s(RB+2)}, {s(STS)}, {s(XSO)}\ns_sub_u32 {s(RB+3)}, {s(RB+2)}, 16")
    y_(f"v_cmp_eq_u32 {s(RC,2)}, {s(RB+2)}, {v(PR)}\nv_cmp_eq_u32 {s(RC+2,2)}, {s(RB+3)}, {v(PR)}")
    yp = place(list(y_), max(8 * (yc + OPT['ywait']), 0))
    for p_ in range(512):
        e(M[p_])
        for t in g[p_]:
            if callable(t): t(e)
            else: e(t)
    if OPT.get('show'):
        for m in range(64): show(f'O{m}', {k: [x if not callable(x) else 's_call' for x in g[8*m+k]] for k in range(8)}, 8)
    stamp(e, grp=17)
    A = 48
    for t in over: e(t)
    e("WAITLG bp")
    for j in range(8): e(f"v_cndmask_b32 {v(GP+j)}, {v(GP+j)}, {v(YT + (j & 3))}, {s(RC + 2*(j >> 2), 2)}")
    for j in range(16): e(f"v_add_f32 {v(PB+j)}, {v(PB+j)}, {v(A+j)}")
    for j in range(8): unpack(e, 2 * j, GP + j)
    e("WAITVM q2")
    stamp(e, grp=17)
    for t in tags(2): e(t)
    spin_check(e, 'L_p2', pld(2), list(range(TG8, TG8 + 4)), pre=tags(2))
    stamp(e, grp=17)
    for t in strip(2): e(t)
    for j in range(16): e(f"v_add_f32 {v(PB+j)}, {v(PB+j)}, {v(PB+32+j)}")
    bfrn(e, PB, 16)
    for j in range(16): e(f"v_mul_f32 {v(PB+j)}, {v(PB+j)}, {v(j)}")
    bfrn(e, PB, 16)
    for j in range(16): e(f"v_add_f32 {v(PB+j)}, {v(PB+j)}, {v(GF+j)}")
    for j in range(8): e(f"v_cvt_pk_bf16_f32 {v(16+j)}, {v(PB+2*j)}, {v(PB+2*j+1)}")
    e(f"buffer_store_dwordx4 v[16:19], {v(OUTV)}, {s(ROUT,4)}, {s(WSO)} offen\nbuffer_store_dwordx4 v[20:23], {v(OUTV)}, {s(ROUT,4)}, {s(WSO2)} offen")
    e(f"s_add_u32 {s(T0)}, s2, s3\ns_cmp_eq_u32 {s(T0)}, 0\ns_cselect_b32 {s(T0)}, {WS_EPOCH}, {FAR}\ns_add_u32 {s(T1)}, {s(EPO)}, 1\nv_mov_b32 v0, {s(T1)}")
    e(f"buffer_store_dword v0, {v(Z0)}, {s(SWS,4)}, {s(T0)} offen")
    e("s_waitcnt vmcnt(0)")
    stamp_out(e)
    e("L_end:\ns_endpgm")
    return e.L

HDR = open('recurrent_scan__mha_block_cached__moe_arch_mod__prompt.s.ref').read().split('; Override launch')[0]

def main():
    L = kernel()
    rep = []
    L2 = autonop(L, rep)
    if OPT.get('shownop'):
        for k, why in rep: print('nop', k, why, file=sys.stderr)
    for p in check(L2, 'main'): print(p, file=sys.stderr)
    def noopt(X):
        out = []; on = True
        for x in X:
            if x == ';OPT{': on = False
            if on: out.append(x)
            if x == ';OPT}': on = True
        return out
    for p in check(noopt(L2), 'noopt'): print(p, file=sys.stderr)
    for alt in ALT[2:]:
        X = autonop(L[:ALT[0]] + alt + L[ALT[1]:])
        for p in check(X, 'alt') + check(noopt(X), 'altnoopt'): print(p, file=sys.stderr)
    O2 = autonop(OOL)
    out = [HDR.rstrip(), "; @launch grid=(256,1,1) block=(256,1,1) lds=163840", '.amdgcn_target "amdgcn-amd-amdhsa--gfx950"\n.text']
    out.append(f".globl {KNAME}\n.p2align 8\n.type {KNAME},@function\n{KNAME}:")
    out += ['    ' + x if not x.endswith(':') else x for x in L2 + O2 + ['L_codeend:']]
    out.append(f""".section .rodata,"a"
.p2align 6
.amdhsa_kernel {KNAME}
  .amdhsa_next_free_vgpr 512
  .amdhsa_next_free_sgpr 102
  .amdhsa_accum_offset 256
  .amdhsa_group_segment_fixed_size 0
  .amdhsa_kernarg_size 104
  .amdhsa_user_sgpr_count 2
  .amdhsa_user_sgpr_kernarg_segment_ptr 1
  .amdhsa_system_sgpr_workgroup_id_x 1
.end_amdhsa_kernel""")
    open(sys.argv[1], 'w').write('\n'.join(out) + '\n')

main()
```
